```python
import torch

def _softmax(x, axis=-1):
    return torch.softmax(x, dim=axis)
def _gelu(x):
    return torch.nn.functional.gelu(x, approximate="tanh")
def _silu(x):
    return torch.nn.functional.silu(x)
def _sigmoid(x):
    return torch.sigmoid(x)
def _layernorm(x, axis=-1, eps=1e-5):
    m = x.mean(dim=axis, keepdim=True)
    v = x.var(dim=axis, keepdim=True, unbiased=False)
    return (x - m) / torch.sqrt(v + eps)
def _scatter_add(tgt, idx, src, axis=0):
    return tgt.clone().index_add_(axis, idx, src)
def _segment_sum(src, seg, n):
    out = torch.zeros((n,) + src.shape[1:], dtype=src.dtype)
    return out.index_add_(0, seg, src)
def _pad(x, pw):
    flat = tuple(v for pair in reversed(pw) for v in pair)
    return torch.nn.functional.pad(x, flat)

kernel_name = 'gated_mix__mha_block__glu_gated_geglu__prompt'

def setup_inputs():

    _w = (lambda a: (lambda t: t.to(torch.bfloat16) if t.is_floating_point() else t)(torch.as_tensor(a)))
    def _A_setup():
        B, S, D, H = 1, 2048, 512, 32
        return {
            "x": _w((lambda *s: torch.randn(*s, dtype=torch.bfloat16) * 0.05)(B, S, D)),
            "wqkv": _w((lambda *s: torch.randn(*s, dtype=torch.bfloat16) * 0.8)(D, 3 * D)),
            "wo": _w((lambda *s: torch.randn(*s, dtype=torch.bfloat16) * 0.05)(D, D)),
        }
    _A_in = _A_setup()

    def _B_setup():
        B, S, Dm, Df = 1, 2048, 512, 1376
        return {
            "x": _w((lambda *s: torch.randn(*s, dtype=torch.bfloat16) * 0.05)(B, S, Dm)),
            "w_gate": _w((lambda *s: torch.randn(*s, dtype=torch.bfloat16) * 3.2)(Dm, Df) * (Dm ** -0.5)),
            "w_up": _w((lambda *s: torch.randn(*s, dtype=torch.bfloat16) * 3.2)(Dm, Df) * (Dm ** -0.5)),
            "w_down": _w((lambda *s: torch.randn(*s, dtype=torch.bfloat16) * 3.2)(Df, Dm) * (Df ** -0.5)),
        }
    _B_in = _B_setup()

    return {
        "A_x": _A_in["x"],
        "A_wqkv": _A_in["wqkv"],
        "A_wo": _A_in["wo"],
        "B_x": _B_in["x"],
        "B_w_gate": _B_in["w_gate"],
        "B_w_up": _B_in["w_up"],
        "B_w_down": _B_in["w_down"],
        "gate_w": _w((lambda *s: torch.randn(*s, dtype=torch.bfloat16) * 0.05)(512) * 16.0),
    }

def reference(A_x, A_wqkv, A_wo, B_x, B_w_gate, B_w_up, B_w_down, gate_w):
    def _A_ref(x, wqkv, wo):
        B, S, D = x.shape
        H = 32
        Dh = D // H
        qkv = (lambda x, *d: x.permute(*d))((x @ wqkv).reshape(B, S, 3, H, Dh), 2, 0, 3, 1, 4)
        q, k, v = qkv[0], qkv[1], qkv[2]
        scores = torch.einsum("bhqd,bhkd->bhqk", q, k) * (Dh ** -0.5)
        p = _softmax(scores, axis=-1)
        o = torch.einsum("bhqk,bhkd->bhqd", p, v)
        return (lambda x, *d: x.permute(*d))(o, 0, 2, 1, 3).reshape(B, S, D) @ wo

    def _B_ref(x, w_gate, w_up, w_down):
        g = torch.einsum("bsd,df->bsf", x, w_gate)
        u = torch.einsum("bsd,df->bsf", x, w_up)
        h = _gelu(g) * u
        return torch.einsum("bsf,fd->bsd", h, w_down)

    x = A_x
    g = _sigmoid((x * gate_w).sum(-1, keepdims=True))
    a = _A_ref(x, A_wqkv, A_wo)
    b = _B_ref(x, B_w_gate, B_w_up, B_w_down)
    return g * a + (1 - g) * b
```

```python
NAME = "gated_mix__mha_block__glu_gated_geglu__prompt"

HEADER = """; Kernarg layout for this problem (88 bytes, ptrs only, base s[0:1]):
"""

def v(i): return "v%d" % i
def a(i): return "a%d" % i
def s(i): return "s%d" % i
def vr(i, n): return "v[%d:%d]" % (i, i + n - 1) if n > 1 else "v%d" % i
def ar(i, n): return "a[%d:%d]" % (i, i + n - 1) if n > 1 else "a%d" % i
def sr(i, n): return "s[%d:%d]" % (i, i + n - 1) if n > 1 else "s%d" % i

class Asm:
    def __init__(self):
        self.lines = []
        self.nlab = 0
    def __call__(self, txt):
        for l in txt.strip("\n").split("\n"):
            l = l.strip()
            if l:
                self.lines.append(("" if l.endswith(":") else "    ") + l)
    def label(self, name):
        self.lines.append(name + ":")
    def newlabel(self, base="L"):
        self.nlab += 1
        return "%s_%d" % (base, self.nlab)
    def comment(self, t):
        self.lines.append("    ; " + t)
    def text(self):
        return "\n".join(self.lines) + "\n"

def kernel_text(label, body, vgpr=256, agpr=0, sgpr=102, first=False):
    accum = (vgpr + 3) // 4 * 4
    nfv = accum + agpr if agpr else vgpr
    t = ""
    t += ".text\n.globl %s\n.p2align 8\n.type %s,@function\n%s:\n" % (label, label, label)
    t += body
    t += "    s_endpgm\n"
    d = ".section .rodata,\"a\"\n.p2align 6\n.amdhsa_kernel %s\n" % label
    d += "  .amdhsa_next_free_vgpr %d\n  .amdhsa_next_free_sgpr %d\n  .amdhsa_accum_offset %d\n" % (nfv, sgpr, accum)
    d += "  .amdhsa_group_segment_fixed_size 0\n  .amdhsa_kernarg_size 88\n  .amdhsa_user_sgpr_count 2\n"
    d += "  .amdhsa_user_sgpr_kernarg_segment_ptr 1\n  .amdhsa_system_sgpr_workgroup_id_x 1\n"
    d += "  .amdhsa_float_denorm_mode_32 3\n  .amdhsa_float_denorm_mode_16_64 3\n"
    d += ".end_amdhsa_kernel\n"
    return t, d

def file_text(launches, kernels):
    t = HEADER
    if len(launches) == 1 and launches[0][0] is None:
        _, g, b, lds = launches[0]
        t += "; @launch grid=(%d,1,1) block=(%d,1,1) lds=%d\n" % (g, b, lds)
    else:
        for lab, g, b, lds in launches:
            t += "; @launch kernel=%s grid=(%d,1,1) block=(%d,1,1) lds=%d\n" % (lab, g, b, lds)
    t += ".amdgcn_target \"amdgcn-amd-amdhsa--gfx950\"\n"
    for txt, _ in kernels:
        t += txt
    for _, d in kernels:
        t += d
    return t
```

```python
import re, sys

REG_RE = re.compile(r'\b([vas])(\d+)\b|\b([vas])\[(\d+):(\d+)\]')

def regs(tok):
    out = set()
    tok = tok.strip()
    m = re.fullmatch(r'-?\|?([vas])(\d+)\|?', tok)
    if m: out.add((m.group(1), int(m.group(2)))); return out
    m = re.fullmatch(r'-?\|?([vas])\[(\d+):(\d+)\]\|?', tok)
    if m:
        for i in range(int(m.group(2)), int(m.group(3)) + 1): out.add((m.group(1), i))
        return out
    if tok == 'vcc': return {('s', 106), ('s', 107)}
    if tok == 'vcc_lo': return {('s', 106)}
    if tok == 'vcc_hi': return {('s', 107)}
    if tok == 'exec': return {('s', 126), ('s', 127)}
    if tok == 'm0': return {('s', 124)}
    return out

TRANS = ('v_exp_f32', 'v_log_f32', 'v_rcp_f32', 'v_rsq_f32', 'v_sqrt_f32', 'v_sin_f32', 'v_cos_f32', 'v_exp_f16', 'v_rcp_iflag_f32')

class Ins:
    def __init__(self, line, no):
        self.line = line; self.no = no
        t = line.split(';')[0].strip()
        parts = t.split(None, 1)
        self.op = parts[0]
        ops = []
        if len(parts) > 1:
            ops = [x.strip() for x in re.split(r',(?![^\[]*\])', parts[1])]
            if ops:
                last = ops[-1].split()
                if last:
                    mods = last[1:]
                    ops[-1] = last[0]
                    self.mods = mods
        self.mods = getattr(self, 'mods', [])
        self.ops = ops
        op = self.op
        self.kind = 'other'
        self.dst = set(); self.src = set(); self.srcC = set(); self.srcAB = set(); self.sdata = set()
        if op.startswith('v_mfma'):
            self.kind = 'mfma'
            self.dst = regs(ops[0]); self.srcAB = regs(ops[1]) | regs(ops[2]); self.srcC = regs(ops[3]); self.src = self.srcAB | self.srcC
            self.passes = 8 if '32x32x16' in op else 4
        elif op.startswith('v_'):
            self.kind = 'valu'
            base = op.replace('_e32', '').replace('_e64', '').replace('_dpp', '').replace('_sdwa', '')
            self.base = base
            if base.startswith('v_cmp'):
                self.dst = regs(ops[0]);
                for o in ops[1:]: self.src |= regs(o)
                if base.startswith('v_cmpx'): self.dst |= regs('exec')
            elif base in ('v_permlane32_swap_b32', 'v_permlane16_swap_b32'):
                self.dst = regs(ops[0]) | regs(ops[1]); self.src = set(self.dst)
            elif base in ('v_add_co_u32', 'v_sub_co_u32', 'v_addc_co_u32', 'v_subrev_co_u32'):
                self.dst = regs(ops[0]) | regs(ops[1])
                for o in ops[2:]: self.src |= regs(o)
            else:
                self.dst = regs(ops[0])
                for o in ops[1:]: self.src |= regs(o)
                if base in ('v_fmac_f32', 'v_dot2c_f32_bf16', 'v_pk_fmac_f16') or 'UNUSED_PRESERVE' in line or base == 'v_writelane_b32': self.src |= self.dst
                if base == 'v_cndmask_b32' and len(ops) == 3: self.src |= regs('vcc')
            self.trans = base in TRANS
            self.dpp = ('_dpp' in op) or any(m.startswith('row_') or m.startswith('quad_perm') for m in self.mods)
            self.dot = base.startswith('v_dot')
        elif op.startswith('buffer_') or op.startswith('global_') or op.startswith('ds_'):
            self.kind = 'mem'
            isload = ('load' in op) or ('read' in op)
            lds_dma = 'lds' in self.mods or 'lds' in op and op.startswith('global_load_lds')
            self.lds_dma = lds_dma
            if op in ('buffer_inv', 'buffer_wbl2'):
                pass
            elif op.startswith('buffer_'):
                if lds_dma:
                    for o in ops: self.src |= regs(o)
                    self.src |= regs('m0')
                elif isload:
                    self.dst = regs(ops[0])
                    for o in ops[1:]: self.src |= regs(o)
                else:
                    self.sdata = regs(ops[0])
                    for o in ops: self.src |= regs(o)
                    if 'atomic' in op and 'sc0' in self.mods: self.dst = regs(ops[0])
            elif op.startswith('global_'):
                if isload:
                    self.dst = regs(ops[0])
                    for o in ops[1:]: self.src |= regs(o)
                elif 'atomic' in op and 'sc0' in self.mods:
                    self.dst = regs(ops[0])
                    for o in ops[1:]: self.src |= regs(o)
                else:
                    self.sdata = regs(ops[1])
                    for o in ops: self.src |= regs(o)
            else:
                if isload or 'bpermute' in op or 'swizzle' in op:
                    self.dst = regs(ops[0])
                    for o in ops[1:]: self.src |= regs(o)
                else:
                    for o in ops: self.src |= regs(o)
                    for o in ops[1:]: self.sdata |= regs(o)
            self.wide = ('x4' in op or 'x3' in op or 'b128' in op or 'b96' in op) and not isload
        elif op.startswith('s_'):
            self.kind = 'salu'
            if op.startswith('s_cmp') or op.startswith('s_cbranch') or op in ('s_branch', 's_barrier', 's_endpgm', 's_waitcnt', 's_nop', 's_sleep', 's_setprio', 's_bitcmp1_b32', 's_bitcmp0_b32'):
                for o in ops: self.src |= regs(o)
            else:
                if ops: self.dst = regs(ops[0])
                for o in ops[1:]: self.src |= regs(o)
                if 'saveexec' in op: self.dst |= regs('exec')
    def states(self):
        if self.op == 's_nop': return int(self.ops[0], 0) + 1
        return 1

def parse(text):
    ins = []; labels = {}
    for no, l in enumerate(text.split('\n'), 1):
        t = l.split(';')[0].strip()
        if not t or t.startswith('.'):
            continue
        if t.endswith(':'):
            labels[t[:-1]] = len(ins); continue
        ins.append(Ins(t, no))
    return ins, labels

def required(p, c):
    need = 0; why = ''
    def chk(n, w):
        nonlocal need, why
        if n > need: need = n; why = w
    if p.kind == 'valu':
        vd = {r for r in p.dst if r[0] in 'va'}
        sd = {r for r in p.dst if r[0] == 's'}
        if c.kind == 'mfma' and vd & c.src: chk(2, 'valu->mfma')
        if c.kind == 'mfma' and regs('exec') & p.dst: chk(4, 'valu exec->mfma')
        if c.kind == 'valu':
            if p.trans and not c.trans and vd & c.src: chk(1, 'trans->valu')
            if c.dpp and vd & c.src: chk(2, 'valu->dpp')
            if c.base.startswith('v_permlane') and vd & c.src: chk(2, 'valu->permlane')
            if c.base in ('v_readlane_b32', 'v_readfirstlane_b32') and vd & c.src: chk(1, 'valu->readlane')
            if sd & c.src:
                if c.base in ('v_readlane_b32', 'v_writelane_b32'): chk(4, 'valu sgpr->lanesel')
                else: chk(2, 'valu sgpr->valu')
            if p.dot and vd & (c.src | c.dst):
                if not (c.base == p.base and len(c.ops) == 4 and vd & regs(c.ops[3]) and not (vd & (regs(c.ops[1]) | regs(c.ops[2])))) and not (c.base == p.base == 'v_dot2c_f32_bf16'):
                    chk(3, 'dot->valu')
            if 'sdwa' in p.op and vd & c.src: chk(1, 'sdwa->valu')
            if regs('exec') & p.dst and c.dpp: chk(5, 'exec->dpp')
        if c.kind == 'mem' and sd & c.src: chk(5, 'valu sgpr->vmem')
        if c.kind == 'mem' and p.dot and vd & c.src: chk(3, 'dot->mem')
        if c.kind == 'salu' and sd & c.src and c.op not in ('s_waitcnt',): chk(2, 'valu sgpr->salu(pad)')
    if p.kind == 'mfma':
        n = p.passes
        big = {8: 12, 4: 8}[n]; cov = {8: 10, 4: 6}[n]
        if c.kind == 'mfma':
            if p.dst & c.srcAB: chk(big, 'mfma D->mfma AB')
            if p.dst & c.srcC and p.dst != c.srcC: chk(cov, 'mfma D->mfma C overlap')
            if p.dst & c.srcC and p.dst == c.srcC and p.passes != c.passes: chk(cov, 'mfma D->C diff passes')
            if p.dst & c.dst and p.dst != c.dst: chk(cov, 'mfma D->D overlap')
        elif c.kind == 'valu':
            if p.dst & (c.src | c.dst): chk(big, 'mfma D->valu')
            if p.srcC & c.dst and not (p.dst & c.dst): chk({8: 7, 4: 3}[n], 'mfma C WAR valu')
        elif c.kind == 'mem':
            if p.dst & (c.src | c.dst): chk(big, 'mfma D->mem')
    if p.kind == 'mem':
        if p.sdata and getattr(p, 'wide', False) and not p.op.startswith('ds_'):
            if c.kind == 'valu' and p.sdata & c.dst: chk(2, 'wide store WAR')
            if c.kind in ('mem', 'mfma') and p.sdata & c.dst: chk(1, 'wide store WAR2')
    if p.kind == 'salu':
        if regs('m0') & p.dst and c.kind == 'mem' and getattr(c, 'lds_dma', False): chk(1, 'm0->dma')
    return need, why

def check_seq(seq, errs, tag):
    W = 20
    for i, c in enumerate(seq):
        dist = 0
        for k in range(i - 1, max(-1, i - W - 1), -1):
            p = seq[k]
            need, why = required(p, c)
            if need > dist:
                errs.add((p.no, c.no, why, need, dist, p.line, c.line))
            dist += p.states()
            if dist >= 13: break

def check(text, verbose=True):
    ins, labels = parse(text)
    errs = set()
    check_seq(ins, errs, 'linear')
    for i, x in enumerate(ins):
        if x.op.startswith('s_cbranch') or x.op == 's_branch':
            tgt = x.ops[0]
            if tgt in labels:
                t = labels[tgt]
                seq = ins[max(0, i - 20):i + 1] + ins[t:t + 20]
                check_seq(seq, errs, 'branch')
    errs = sorted(errs)
    if verbose:
        for e in errs:
            print("HAZARD line %d -> %d: %s need %d have %d\n     %s\n     %s" % e)
        print("hazard check: %d instrs, %d problems" % (len(ins), len(errs)))
    return errs

if __name__ == '__main__':
    check(open(sys.argv[1]).read())
```

```python
from gen import *
import struct

WS_QF = 0x0000000
WS_KF = 0x0200000
WS_VF = 0x0400000
WS_OF = 0x0600000
WS_HF = 0x0800000
WS_NQ = 0x0E00000
WS_NK = 0x0E02000
WS_G  = 0x0E04000
WS_BB = 0x1000000
WS_ST = 0x1700000
WS_SIZE = 0x1800000

QSCALE = 0.25 * 1.4426950408889634

def f32bits(x):
    return struct.unpack("<I", struct.pack("<f", x))[0]

def srd(A, d, lo, hi, nbytes):
    A("s_mov_b32 s%d, s%d" % (d, lo))
    A("s_mov_b32 s%d, s%d" % (d + 1, hi))
    A("s_mov_b32 s%d, 0x%x" % (d + 2, nbytes))
    A("s_mov_b32 s%d, 0x00020000" % (d + 3))

class Cfg:
    stamps = False
    no_compute = False
    no_dma = False
S_ST = 80
def stamp(A, idx):
    if not Cfg.stamps: return
    A("s_memtime s[%d:%d]" % (S_ST, S_ST + 1))
    A("s_waitcnt lgkmcnt(0)")
    A("s_mov_b32 s%d, s%d" % (S_ST + 2 + idx, S_ST))

def stamp_flush(A, n, s_wave, s_ws, base=0):
    if not Cfg.stamps: return
    A("s_lshl_b32 s%d, s2, 2" % (S_ST + 1))
    A("s_add_u32 s%d, s%d, s%d" % (S_ST + 1, S_ST + 1, s_wave))
    A("s_lshl_b32 s%d, s%d, 7" % (S_ST + 1, S_ST + 1))
    A("s_add_u32 s%d, s%d, 0x%x" % (S_ST + 1, S_ST + 1, WS_ST + base))
    A("v_mov_b32 v11, 0")
    A("s_mov_b64 exec, 1")
    for i in range(n):
        A("v_mov_b32 v10, s%d" % (S_ST + 2 + i))
        A("buffer_store_dword v10, v11, s[%d:%d], s%d offen offset:%d" % (s_ws, s_ws + 3, S_ST + 1, 4 * i))
    A("s_mov_b64 exec, -1")

S_AX, S_WQ, S_BX, S_WG, S_WU, S_WS, S_GW = 4, 8, 12, 16, 20, 24, 28
S_WAVE = 32
S_WAVE8 = 76
S_RB1, S_CG1, S_KC1, S_XB1, S_WB1, S_WX1 = 33, 34, 35, 36, 37, 38
S_RB2, S_CG2, S_KC2, S_XB2, S_WB2, S_WX2, S_WW2 = 39, 40, 41, 42, 43, 44, 45
S_I, S_SLI, S_SLR = 46, 47, 48
S_GX, S_GW0, S_GW1, S_GM, S_GM2 = 49, 50, 51, 52, 53
S_T0, S_T1, S_T2, S_T3 = 54, 55, 56, 57
S_C = 58
S_PTR = 62
V_LANE, V_L16 = 1, 2
V_T = 3
V_XO1, V_WO1 = 14, 16
V_XO2, V_WO2 = 17, 21
V_XA, V_WA = 24, 28
V_XR, V_WR = 192, 196
V_F = 32
V_ACC1 = 96
V_ACC2 = 96
SLOT = 40960
NSLOT = 4

def x_dma_offsets(A, dst, n_instr, rowbase_wave):
    t0, t1, t2 = V_T, V_T + 1, V_T + 2
    for n in range(n_instr):
        A("v_lshrrev_b32 v%d, 3, v%d" % (t0, V_LANE))
        A("s_mul_i32 s%d, s%d, %d" % (S_T0, S_WAVE, rowbase_wave))
        A("s_add_u32 s%d, s%d, %d" % (S_T0, S_T0, 8 * n))
        A("v_add_u32 v%d, s%d, v%d" % (t0, S_T0, t0))
        A("v_lshrrev_b32 v%d, 1, v%d" % (t1, t0))
        A("v_and_b32 v%d, 7, v%d" % (t1, t1))
        A("v_and_b32 v%d, 7, v%d" % (t2, V_LANE))
        A("v_xor_b32 v%d, v%d, v%d" % (t1, t1, t2))
        A("v_lshlrev_b32 v%d, 4, v%d" % (t1, t1))
        A("v_lshlrev_b32 v%d, 10, v%d" % (t0, t0))
        A("v_add_u32 v%d, v%d, v%d" % (dst + n, t0, t1))

def x_read_addrs(A, s_rowtile):
    t0, t1, t2 = V_T, V_T + 1, V_T + 2
    A("v_and_b32 v%d, 31, v%d" % (t0, V_LANE))
    A("s_lshl_b32 s%d, s%d, 5" % (S_T0, s_rowtile))
    A("v_add_u32 v%d, s%d, v%d" % (t0, S_T0, t0))
    A("v_lshrrev_b32 v%d, 1, v%d" % (t1, t0))
    A("v_and_b32 v%d, 7, v%d" % (t1, t1))
    A("v_lshrrev_b32 v%d, 5, v%d" % (t2, V_LANE))
    A("v_xor_b32 v%d, v%d, v%d" % (t1, t1, t2))
    A("v_lshlrev_b32 v%d, 7, v%d" % (t0, t0))
    for s_ in range(4):
        A("v_xor_b32 v%d, %d, v%d" % (t2, 2 * s_, t1))
        A("v_lshlrev_b32 v%d, 4, v%d" % (t2, t2))
        A("v_add_u32 v%d, v%d, v%d" % (V_XA + s_, t0, t2))

def adv_slot(A, sreg):
    A("s_add_u32 s%d, s%d, %d" % (sreg, sreg, SLOT))
    A("s_cmp_eq_u32 s%d, %d" % (sreg, NSLOT * SLOT))
    A("s_cselect_b32 s%d, 0, s%d" % (sreg, sreg))

def dma_lines(m0base, m0add, voff, srdn, soff, imm=0):
    return ["s_add_u32 m0, s%d, %d" % (m0base, m0add), "s_nop 0",
            "buffer_load_dwordx4 v%d, s[%d:%d], s%d offen%s lds" % (voff, srdn, srdn + 3, soff, (" offset:%d" % imm) if imm else "")]

def group_setup(typ):
    L = []
    if typ == 1:
        L += ["s_lshl_b32 s%d, s%d, 7" % (S_GX, S_KC1), "s_add_u32 s%d, s%d, s%d" % (S_GX, S_GX, S_XB1),
              "s_mul_i32 s%d, s%d, %d" % (S_GW0, S_KC1, 64 * 3072), "s_add_u32 s%d, s%d, s%d" % (S_GW0, S_GW0, S_WB1),
              "s_add_u32 s%d, s%d, %d" % (S_GW1, S_GW0, 8 * 3072),
              "s_add_u32 s%d, s%d, s%d" % (S_GM, S_SLI, S_WX1),
              "s_add_u32 s%d, s%d, 1" % (S_KC1, S_KC1), "s_and_b32 s%d, s%d, 7" % (S_KC1, S_KC1)]
    else:
        L += ["s_lshl_b32 s%d, s%d, 7" % (S_GX, S_KC2), "s_add_u32 s%d, s%d, s%d" % (S_GX, S_GX, S_XB2),
              "s_mul_i32 s%d, s%d, %d" % (S_GW0, S_KC2, 64 * 2752), "s_add_u32 s%d, s%d, s%d" % (S_GW0, S_GW0, S_WB2),
              "s_add_u32 s%d, s%d, s%d" % (S_GM, S_SLI, S_WX2),
              "s_add_u32 s%d, s%d, s%d" % (S_GM2, S_SLI, S_WW2),
              "s_add_u32 s%d, s%d, 1" % (S_KC2, S_KC2), "s_and_b32 s%d, s%d, 7" % (S_KC2, S_KC2)]
    L += ["s_add_u32 s%d, s%d, %d" % (S_SLI, S_SLI, SLOT), "s_cmp_eq_u32 s%d, %d" % (S_SLI, NSLOT * SLOT),
          "s_cselect_b32 s%d, 0, s%d" % (S_SLI, S_SLI)]
    return L

def group_dmas(typ):
    D = []
    if typ == 1:
        for n in range(2): D.append(dma_lines(S_GM, n * 1024, V_XO1 + n, S_AX, S_GX))
        for t in range(3):
            for n in range(2):
                D.append(dma_lines(S_GM, 8192 + t * 8192 + n * 1024 - t * 1024, V_WO1, S_WQ, S_GW0 if n == 0 else S_GW1, t * 1024))
    else:
        for n in range(4): D.append(dma_lines(S_GM, n * 1024, V_XO2 + n, S_BX, S_GX))
        for mat in range(2):
            for e in range(3):
                D.append(dma_lines(S_GM2, mat * 12288 + e * 1024, V_WO2 + e, S_WG if mat == 0 else S_WU, S_GW0))
    return D

def half(typ, which):
    if typ == 0: return [[] for _ in range(4)]
    D = group_dmas(typ); n = len(D) // 2
    part = D[:n] if which == 1 else D[n:]
    sites = [[] for _ in range(4)]
    if which == 1: sites[0] += group_setup(typ)
    for i, d in enumerate(part):
        sites[(i * 4) // len(part)] += d
    return sites

def emit(A, lines):
    for l in lines: A(l)

def set_read_addrs(A):
    for s_ in range(4):
        A("v_add_u32 v%d, s%d, v%d" % (V_XR + s_, S_SLR, V_XA + s_))
    A("v_add_u32 v%d, s%d, v%d" % (V_WR, S_SLR, V_WA))

def p1_read_list(s_, F):
    L = ["ds_read_b128 %s, v%d" % (vr(F, 4), V_XR + s_)]
    for t in range(3):
        for q in range(2):
            L.append("ds_read_b64_tr_b16 %s, v%d offset:%d" % (vr(F + 4 + 4 * t + 2 * q, 2), V_WR, t * 8192 + s_ * 2048 + q * 512))
    return L

def p1_reads(A, s_, F):
    emit(A, p1_read_list(s_, F))

def p1_mfma_list(F):
    return ["v_mfma_f32_32x32x16_bf16 %s, %s, %s, %s" % (vr(V_ACC1, 16), vr(F + 4, 4), vr(F, 4), vr(V_ACC1, 16)),
            "v_mfma_f32_32x32x16_bf16 %s, %s, %s, %s" % (vr(V_ACC1 + 16, 16), vr(F + 8, 4), vr(F, 4), vr(V_ACC1 + 16, 16)),
            "v_mfma_f32_32x32x16_bf16 %s, %s, %s, %s" % (vr(V_ACC1 + 32, 16), vr(F, 4), vr(F + 12, 4), vr(V_ACC1 + 32, 16))]

def interleave(A, ms, rs):
    n = len(ms); k = 0
    for i, m in enumerate(ms):
        A(m)
        cnt = (len(rs) * (i + 1)) // n - (len(rs) * i) // n
        for _ in range(cnt):
            A(rs[k]); k += 1

def p1_chunk(A):
    for s_ in range(4):
        if s_ == 2:
            A("s_barrier")
            adv_slot(A, S_SLR)
            set_read_addrs(A)
        if Cfg.no_compute: continue
        A("s_waitcnt lgkmcnt(7)")
        interleave(A, p1_mfma_list(V_F + 16 * s_), p1_read_list((s_ + 2) & 3, V_F + 16 * ((s_ + 2) & 3)))

def loop(A, name, count, body):
    A("s_mov_b32 s%d, 0" % S_I)
    A(name + ":")
    body()
    A("s_add_u32 s%d, s%d, 1" % (S_I, S_I))
    A("s_cmp_lt_u32 s%d, %d" % (S_I, count))
    A("s_cbranch_scc1 " + name)

def setup_ids(A):
    A("s_and_b32 s%d, s2, 7" % S_T0)
    A("s_lshr_b32 s%d, s2, 3" % S_T1)
    A("s_lshr_b32 s%d, s%d, 1" % (S_RB1, S_T0))
    A("s_lshl_b32 s%d, s%d, 3" % (S_RB1, S_RB1))
    A("s_and_b32 s%d, s%d, 7" % (S_T2, S_T1))
    A("s_add_u32 s%d, s%d, s%d" % (S_RB1, S_RB1, S_T2))
    A("s_and_b32 s%d, s%d, 1" % (S_CG1, S_T0))
    A("s_lshl_b32 s%d, s%d, 2" % (S_CG1, S_CG1))
    A("s_lshr_b32 s%d, s%d, 3" % (S_T2, S_T1))
    A("s_add_u32 s%d, s%d, s%d" % (S_CG1, S_CG1, S_T2))
    A("s_lshl_b32 s%d, s%d, 1" % (S_T2, S_T2))
    A("s_add_u32 s%d, s%d, s%d" % (S_KC1, S_T1, S_T2))
    A("s_and_b32 s%d, s%d, 7" % (S_KC1, S_KC1))
    A("s_lshl_b32 s%d, s%d, 16" % (S_XB1, S_RB1))
    A("s_lshl_b32 s%d, s%d, 7" % (S_WB1, S_CG1))
    A("s_lshl_b32 s%d, s%d, 11" % (S_WX1, S_WAVE))
    A("s_lshr_b32 s%d, s%d, 1" % (S_RB2, S_T0))
    A("s_lshl_b32 s%d, s%d, 2" % (S_RB2, S_RB2))
    A("s_and_b32 s%d, s%d, 3" % (S_T2, S_T1))
    A("s_add_u32 s%d, s%d, s%d" % (S_RB2, S_RB2, S_T2))
    A("s_and_b32 s%d, s%d, 1" % (S_CG2, S_T0))
    A("s_lshl_b32 s%d, s%d, 3" % (S_CG2, S_CG2))
    A("s_lshr_b32 s%d, s%d, 2" % (S_T3, S_T1))
    A("s_add_u32 s%d, s%d, s%d" % (S_CG2, S_CG2, S_T3))
    A("s_lshl_b32 s%d, s%d, 1" % (S_T2, S_T2))
    A("s_add_u32 s%d, s%d, s%d" % (S_KC2, S_T3, S_T2))
    A("s_and_b32 s%d, s%d, 7" % (S_KC2, S_KC2))
    A("s_lshl_b32 s%d, s%d, 17" % (S_XB2, S_RB2))
    A("s_mul_i32 s%d, s%d, 192" % (S_WB2, S_CG2))
    A("s_lshl_b32 s%d, s%d, 12" % (S_WX2, S_WAVE))
    A("s_mul_i32 s%d, s%d, 3072" % (S_WW2, S_WAVE))
    A("s_add_u32 s%d, s%d, 16384" % (S_WW2, S_WW2))

def w_read_base(A, rowbytes, swz):
    t0, t1 = V_T, V_T + 1
    A("v_and_b32 v%d, 15, v%d" % (t0, V_LANE))
    A("v_lshrrev_b32 v%d, 2, v%d" % (t0, t0))
    A("v_lshrrev_b32 v%d, 5, v%d" % (t1, V_LANE))
    A("v_lshlrev_b32 v%d, 3, v%d" % (t1, t1))
    A("v_add_u32 v%d, v%d, v%d" % (t1, t1, t0))
    A("v_mul_u32_u24 v%d, %d, v%d" % (t1, rowbytes, t1))
    if swz:
        A("v_lshrrev_b32 v%d, 1, v%d" % (t0, t0))
        A("s_and_b32 s%d, s%d, 1" % (S_T2, S_WAVE))
        A("v_xor_b32 v%d, s%d, v%d" % (t0, S_T2, t0))
        A("v_lshlrev_b32 v%d, 6, v%d" % (t0, t0))
        A("v_add_u32 v%d, v%d, v%d" % (t1, t1, t0))
    A("v_lshrrev_b32 v%d, 4, v%d" % (t0, V_LANE))
    A("v_and_b32 v%d, 1, v%d" % (t0, t0))
    A("v_lshlrev_b32 v%d, 5, v%d" % (t0, t0))
    A("v_add_u32 v%d, v%d, v%d" % (t1, t1, t0))
    A("v_and_b32 v%d, 3, v%d" % (t0, V_LANE))
    A("v_lshlrev_b32 v%d, 3, v%d" % (t0, t0))
    A("v_add_u32 v%d, v%d, v%d" % (t1, t1, t0))
    if swz: A("v_add_u32 v%d, 8192, v%d" % (V_WA, t1))
    else: A("v_mov_b32 v%d, v%d" % (V_WA, t1))

def k1_prologue(A):
    A("s_cmp_ge_u32 s2, 256")
    A("s_cbranch_scc1 K1_END")
    for i, off in enumerate([0, 8, 0, 32, 40, 56, 80]):
        A("s_load_dwordx2 s[%d:%d], s[0:1], %d" % (S_PTR + 2 * i, S_PTR + 2 * i + 1, off))
    A("v_lshrrev_b32 v%d, 6, v0" % V_T)
    A("v_and_b32 v%d, 63, v0" % V_LANE)
    A("v_readfirstlane_b32 s%d, v%d" % (S_WAVE8, V_T))
    A("v_lshlrev_b32 v%d, 4, v%d" % (V_L16, V_LANE))
    A("s_nop 0")
    A("s_and_b32 s%d, s%d, 3" % (S_WAVE, S_WAVE8))
    setup_ids(A)
    A("s_waitcnt lgkmcnt(0)")
    srd(A, S_AX, S_PTR + 0, S_PTR + 1, 2048 * 1024)
    srd(A, S_WQ, S_PTR + 2, S_PTR + 3, 512 * 3072)
    srd(A, S_BX, S_PTR + 4, S_PTR + 5, 2048 * 1024)
    srd(A, S_WG, S_PTR + 6, S_PTR + 7, 512 * 2752)
    srd(A, S_WU, S_PTR + 8, S_PTR + 9, 512 * 2752)
    srd(A, S_GW, S_PTR + 10, S_PTR + 11, 1024)
    srd(A, S_WS, S_PTR + 12, S_PTR + 13, WS_SIZE)

def issue_group(A, typ):
    emit(A, group_setup(typ))
    if Cfg.no_dma: return
    for d in group_dmas(typ): emit(A, d)

def loader(A):
    A.comment("==== loader waves ====")
    t0, t1, t2 = V_T, V_T + 1, V_T + 2
    x_dma_offsets(A, V_XO1, 2, 16)
    A("v_lshrrev_b32 v%d, 3, v%d" % (t0, V_LANE))
    A("s_lshl_b32 s%d, s%d, 4" % (S_T0, S_WAVE))
    A("v_add_u32 v%d, s%d, v%d" % (t0, S_T0, t0))
    A("v_mul_u32_u24 v%d, 3072, v%d" % (t0, t0))
    A("v_lshrrev_b32 v%d, 4, v%d" % (t1, V_LANE))
    A("v_and_b32 v%d, 1, v%d" % (t1, t1))
    A("v_lshlrev_b32 v%d, 2, v%d" % (t1, t1))
    A("v_and_b32 v%d, 7, v%d" % (t2, V_LANE))
    A("v_xor_b32 v%d, v%d, v%d" % (t1, t1, t2))
    A("v_lshlrev_b32 v%d, 4, v%d" % (t1, t1))
    A("v_add_u32 v%d, v%d, v%d" % (V_WO1, t0, t1))
    A("s_mov_b32 s%d, 0" % S_SLI)
    loop(A, "LD_PRO", 4, lambda: issue_group(A, 1))
    x_dma_offsets(A, V_XO2, 4, 32)
    for e in range(3):
        A("v_add_u32 v%d, %d, v%d" % (t0, 64 * e, V_LANE))
        A("v_mul_u32_u24 v%d, 171, v%d" % (t1, t0))
        A("v_lshrrev_b32 v%d, 11, v%d" % (t1, t1))
        A("v_mul_u32_u24 v%d, 12, v%d" % (t2, t1))
        A("v_sub_u32 v%d, v%d, v%d" % (t2, t0, t2))
        A("s_lshl_b32 s%d, s%d, 4" % (S_T0, S_WAVE))
        A("v_add_u32 v%d, s%d, v%d" % (t1, S_T0, t1))
        A("v_mul_u32_u24 v%d, 2752, v%d" % (t1, t1))
        A("v_lshlrev_b32 v%d, 4, v%d" % (t2, t2))
        A("v_add_u32 v%d, v%d, v%d" % (V_WO2 + e, t1, t2))
    if Cfg.stamps:
        stamp(A, 0)
        seq = [(24, 0), (16, 0)] + [(8, 1)] * 4 + [(8, 2)] + [(10, 2)] * 7 + [(10, 0), (0, 0), (None, 0)]
        A("s_cmp_eq_u32 s%d, 15" % S_CG2)
        A("s_cbranch_scc1 LD_GATE")
        for i, (vm, typ) in enumerate(seq):
            if vm is not None: A("s_waitcnt vmcnt(%d)" % vm)
            stamp(A, i + 1)
            A("s_barrier")
            if typ: issue_group(A, typ)
        stamp_flush(A, 18, S_WAVE, S_WS, 0x20000)
        A("s_branch K1_FIN2")
        A("LD_GATE:")
        A("s_waitcnt vmcnt(24)"); A("s_barrier"); A("s_waitcnt vmcnt(16)"); A("s_barrier")
        for i in range(4):
            A("s_waitcnt vmcnt(8)"); A("s_barrier"); issue_group(A, 1)
        A("s_waitcnt vmcnt(8)"); A("s_barrier")
        A("s_waitcnt vmcnt(0)"); A("s_barrier")
        A("s_barrier")
        A("s_branch K1_FIN2")
        return
    A("s_waitcnt vmcnt(24)")
    A("s_barrier")
    A("s_waitcnt vmcnt(16)")
    A("s_barrier")
    def la():
        A("s_waitcnt vmcnt(8)"); A("s_barrier"); issue_group(A, 1)
    loop(A, "LD_A", 4, la)
    A("s_cmp_eq_u32 s%d, 15" % S_CG2)
    A("s_cbranch_scc1 LD_GATE")
    A("s_waitcnt vmcnt(8)"); A("s_barrier"); issue_group(A, 2)
    def lb():
        A("s_waitcnt vmcnt(10)"); A("s_barrier"); issue_group(A, 2)
    loop(A, "LD_B", 7, lb)
    A("s_waitcnt vmcnt(10)"); A("s_barrier")
    A("s_waitcnt vmcnt(0)"); A("s_barrier")
    A("s_barrier")
    A("s_branch K1_FIN2")
    A("LD_GATE:")
    A("s_waitcnt vmcnt(8)"); A("s_barrier")
    A("s_waitcnt vmcnt(0)"); A("s_barrier")
    A("s_barrier")
    A("s_branch K1_FIN2")

def p1(A):
    A.comment("==== P1: QKV (compute waves) ====")
    A("s_lshr_b32 s%d, s%d, 1" % (S_T1, S_WAVE))
    x_read_addrs(A, S_T1)
    w_read_base(A, 128, True)
    for r in range(48):
        A("v_mov_b32 v%d, 0" % (V_ACC1 + r))
    A("s_mov_b32 s%d, 0" % S_SLR)
    set_read_addrs(A)
    stamp(A, 1)
    A("s_barrier")
    stamp(A, 2)
    p1_reads(A, 0, V_F)
    p1_reads(A, 1, V_F + 16)
    loop(A, "P1_L", 8, lambda: p1_chunk(A))
    A("s_waitcnt lgkmcnt(0)")

def lane_reduce(A, rs, ts, op32, op):
    n = len(rs)
    def pad(k):
        if k > 0: A("s_nop %d" % (k - 1))
    for r, t in zip(rs, ts): A("v_mov_b32 v%d, v%d" % (t, r))
    pad(max(0, 2 - (n - 1)))
    for r, t in zip(rs, ts): A("v_permlane32_swap_b32 v%d, v%d" % (r, t))
    pad(1)
    for r, t in zip(rs, ts): A("%s v%d, v%d, v%d" % (op32, r, r, t))
    for r, t in zip(rs, ts): A("v_mov_b32 v%d, v%d" % (t, r))
    pad(max(0, 2 - (n - 1)))
    for r, t in zip(rs, ts): A("v_permlane16_swap_b32 v%d, v%d" % (r, t))
    pad(1)
    for r, t in zip(rs, ts): A("%s v%d, v%d, v%d" % (op, r, r, t))
    for sh in (8, 4, 2, 1):
        pad(max(0, 2 - (n - 1)))
        for r in rs: A("%s_dpp v%d, v%d, v%d row_ror:%d row_mask:0xf bank_mask:0xf" % (op, r, r, r, sh))

def p1_epilogue(A):
    A.comment("P1 epilogue")
    A("s_nop 15")
    PQ, PK, PV = 144, 152, 160
    A("s_mov_b32 s%d, 0x%x" % (S_C, f32bits(QSCALE)))
    A("s_mov_b32 s%d, 0x%x" % (S_C + 1, f32bits(QSCALE)))
    A("s_and_b32 s%d, s%d, 1" % (S_T0, S_WAVE))
    A("s_lshl_b32 s%d, s%d, 1" % (S_T0, S_T0))
    A("s_lshl_b32 s%d, s%d, 2" % (S_T1, S_CG1))
    A("s_add_u32 s%d, s%d, s%d" % (S_T0, S_T0, S_T1))
    A("s_lshr_b32 s%d, s%d, 1" % (S_T1, S_WAVE))
    A("s_lshl_b32 s%d, s%d, 1" % (S_T2, S_RB1))
    A("s_add_u32 s%d, s%d, s%d" % (S_T1, S_T1, S_T2))
    A("s_lshl_b32 s%d, s%d, 16" % (S_T2, S_T0))
    A("s_lshl_b32 s%d, s%d, 10" % (S_T3, S_T1))
    A("s_add_u32 s%d, s%d, s%d" % (S_T2, S_T2, S_T3))
    t0, t1 = V_T, V_T + 1
    for p in range(8):
        A("v_cvt_pk_bf16_f32 v%d, v%d, v%d" % (PK + p, V_ACC1 + 16 + 2 * p, V_ACC1 + 17 + 2 * p))
    A("s_add_u32 s%d, s%d, 0x%x" % (S_C + 2, S_T2, WS_KF))
    A("s_add_u32 s%d, s%d, 0x%x" % (S_C + 3, S_T2, WS_KF + 65536))
    A("buffer_store_dwordx4 %s, v%d, s[%d:%d], s%d offen" % (vr(PK, 4), V_L16, S_WS, S_WS + 3, S_C + 2))
    A("buffer_store_dwordx4 %s, v%d, s[%d:%d], s%d offen" % (vr(PK + 4, 4), V_L16, S_WS, S_WS + 3, S_C + 3))
    for p in range(8):
        A("v_cvt_pk_bf16_f32 v%d, v%d, v%d" % (PV + p, V_ACC1 + 32 + 2 * p, V_ACC1 + 33 + 2 * p))
    A("v_lshrrev_b32 v%d, 4, v%d" % (t0, V_LANE))
    A("v_and_b32 v%d, 1, v%d" % (t0, t0))
    A("v_lshlrev_b32 v%d, 16, v%d" % (t0, t0))
    A("v_lshrrev_b32 v%d, 5, v%d" % (t1, V_LANE))
    A("v_lshlrev_b32 v%d, 8, v%d" % (t1, t1))
    A("v_add_u32 v%d, v%d, v%d" % (t0, t0, t1))
    A("v_and_b32 v%d, 15, v%d" % (t1, V_LANE))
    A("v_lshlrev_b32 v%d, 4, v%d" % (t1, t1))
    A("v_add_u32 v%d, v%d, v%d" % (t0, t0, t1))
    A("s_add_u32 s%d, s%d, 0x%x" % (S_C + 2, S_T2, WS_VF))
    A("buffer_store_dwordx4 %s, v%d, s[%d:%d], s%d offen" % (vr(PV, 4), t0, S_WS, S_WS + 3, S_C + 2))
    A("buffer_store_dwordx4 %s, v%d, s[%d:%d], s%d offen offset:512" % (vr(PV + 4, 4), t0, S_WS, S_WS + 3, S_C + 2))
    for p in range(8):
        A("v_pk_mul_f32 %s, %s, %s" % (vr(V_ACC1 + 2 * p, 2), vr(V_ACC1 + 2 * p, 2), sr(S_C, 2)))
    for p in range(8):
        A("v_cvt_pk_bf16_f32 v%d, v%d, v%d" % (PQ + p, V_ACC1 + 2 * p, V_ACC1 + 2 * p + 1))
    A("s_add_u32 s%d, s%d, 0x%x" % (S_C + 2, S_T2, WS_QF))
    A("s_add_u32 s%d, s%d, 0x%x" % (S_C + 3, S_T2, WS_QF + 65536))
    A("buffer_store_dwordx4 %s, v%d, s[%d:%d], s%d offen" % (vr(PQ, 4), V_L16, S_WS, S_WS + 3, S_C + 2))
    A("buffer_store_dwordx4 %s, v%d, s[%d:%d], s%d offen" % (vr(PQ + 4, 4), V_L16, S_WS, S_WS + 3, S_C + 3))
    N = [168, 169, 170, 171]; T = [172, 173, 174, 175]
    src = [PQ, PQ + 4, PK, PK + 4]
    for p in range(4):
        for x in range(4):
            A("v_dot2_f32_bf16 v%d, v%d, v%d, %s" % (N[x], src[x] + p, src[x] + p, "0" if p == 0 else "v%d" % N[x]))
    A("s_nop 2")
    lane_reduce(A, N, T, "v_add_f32", "v_max_f32")
    A("s_lshl_b32 s%d, s%d, 8" % (S_T2, S_T0))
    A("s_lshl_b32 s%d, s%d, 2" % (S_T3, S_T1))
    A("s_add_u32 s%d, s%d, s%d" % (S_T2, S_T2, S_T3))
    A("s_add_u32 s%d, s%d, 0x%x" % (S_T2, S_T2, WS_NQ))
    A("v_mov_b32 v%d, 0" % t0)
    A("s_mov_b64 exec, 1")
    A("buffer_store_dword v%d, v%d, s[%d:%d], s%d offen" % (N[0], t0, S_WS, S_WS + 3, S_T2))
    A("buffer_store_dword v%d, v%d, s[%d:%d], s%d offen offset:256" % (N[1], t0, S_WS, S_WS + 3, S_T2))
    A("s_add_u32 s%d, s%d, 0x%x" % (S_T2, S_T2, WS_NK - WS_NQ))
    A("buffer_store_dword v%d, v%d, s[%d:%d], s%d offen" % (N[2], t0, S_WS, S_WS + 3, S_T2))
    A("buffer_store_dword v%d, v%d, s[%d:%d], s%d offen offset:256" % (N[3], t0, S_WS, S_WS + 3, S_T2))
    A("s_mov_b64 exec, -1")

def gate(A):
    A.comment("gate")
    G = 32
    GW = 64; N = list(range(68, 76)); T = list(range(76, 84))
    A("buffer_load_dwordx4 %s, v%d, s[%d:%d], 0 offen" % (vr(GW, 4), V_L16, S_GW, S_GW + 3))
    A("s_lshl_b32 s%d, s%d, 7" % (S_T0, S_RB2))
    A("s_lshl_b32 s%d, s%d, 5" % (S_T1, S_WAVE))
    A("s_add_u32 s%d, s%d, s%d" % (S_T0, S_T0, S_T1))
    A("s_mov_b32 s%d, 0x%x" % (S_C, f32bits(-1.4426950408889634)))
    A("s_mov_b32 s%d, 0" % S_I)
    A("GATE_L:")
    A("s_lshl_b32 s%d, s%d, 10" % (S_T1, S_T0))
    for r in range(8):
        A("buffer_load_dwordx4 %s, v%d, s[%d:%d], s%d offen" % (vr(G + 4 * r, 4), V_L16, S_AX, S_AX + 3, S_T1))
        A("s_add_u32 s%d, s%d, 1024" % (S_T1, S_T1))
    A("s_waitcnt vmcnt(0)")
    for p in range(4):
        for x in range(8):
            A("v_dot2_f32_bf16 v%d, v%d, v%d, %s" % (N[x], G + 4 * x + p, GW + p, "0" if p == 0 else "v%d" % N[x]))
    A("s_nop 2")
    lane_reduce(A, N, T, "v_add_f32", "v_add_f32")
    for x in range(8): A("v_mul_f32 v%d, s%d, v%d" % (N[x], S_C, N[x]))
    for x in range(8): A("v_exp_f32 v%d, v%d" % (N[x], N[x]))
    for x in range(8): A("v_add_f32 v%d, 1.0, v%d" % (N[x], N[x]))
    for x in range(8): A("v_rcp_f32 v%d, v%d" % (N[x], N[x]))
    A("s_lshl_b32 s%d, s%d, 2" % (S_T1, S_T0))
    A("s_add_u32 s%d, s%d, 0x%x" % (S_T1, S_T1, WS_G))
    A("v_mov_b32 v%d, 0" % V_T)
    A("s_mov_b64 exec, 1")
    for x in range(8):
        A("buffer_store_dword v%d, v%d, s[%d:%d], s%d offen offset:%d" % (N[x], V_T, S_WS, S_WS + 3, S_T1, 4 * x))
    A("s_mov_b64 exec, -1")
    A("s_add_u32 s%d, s%d, 8" % (S_T0, S_T0))
    A("s_add_u32 s%d, s%d, 1" % (S_I, S_I))
    A("s_cmp_lt_u32 s%d, 4" % S_I)
    A("s_cbranch_scc1 GATE_L")

P2_X0, P2_X1, P2_W = 32, 36, 40
def p2_read_list(hs):
    s_, mat = hs >> 1, hs & 1
    L = []
    if mat == 0:
        L.append("ds_read_b128 %s, v%d" % (vr(P2_X0 if (s_ & 1) == 0 else P2_X1, 4), V_XR + s_))
    F = P2_W + 12 * (hs & 3)
    for u in range(3):
        for q in range(2):
            L.append("ds_read_b64_tr_b16 %s, v%d offset:%d" % (vr(F + 4 * u + 2 * q, 2), V_WR, 16384 + mat * 12288 + s_ * 3072 + q * 768 + u * 64))
    return L

def p2_reads(A, hs):
    emit(A, p2_read_list(hs))

def p2_mfma_list(hs):
    s_, mat = hs >> 1, hs & 1
    X = P2_X0 if (s_ & 1) == 0 else P2_X1
    F = P2_W + 12 * (hs & 3)
    L = []
    for u in range(3):
        acc = V_ACC2 + 48 * mat + 16 * u
        L.append("v_mfma_f32_32x32x16_bf16 %s, %s, %s, %s" % (vr(acc, 16), vr(F + 4 * u, 4), vr(X, 4), vr(acc, 16)))
    return L

def p2_chunk(A):
    for hs in range(8):
        if hs == 4:
            A("s_barrier")
        if hs == 6:
            adv_slot(A, S_SLR)
            set_read_addrs(A)
        if Cfg.no_compute: continue
        A("s_waitcnt lgkmcnt(%d)" % (7 if ((hs + 1) & 1) == 0 else 6))
        interleave(A, p2_mfma_list(hs), p2_read_list((hs + 2) & 7))

def p2(A):
    A.comment("==== P2: FFN up ====")
    x_read_addrs(A, S_WAVE)
    w_read_base(A, 192, False)
    for r in range(96):
        A("v_mov_b32 v%d, 0" % (V_ACC2 + r))
    set_read_addrs(A)
    stamp(A, 5)
    p2_reads(A, 0)
    p2_reads(A, 1)
    loop(A, "P2_L", 8, lambda: p2_chunk(A))
    A("s_waitcnt lgkmcnt(0)")
    stamp(A, 6)
    p2_epilogue(A)

def p2_epilogue(A):
    A.comment("P2 epilogue: GEGLU")
    c1 = -2.0 * 0.7978845608028654 * 1.4426950408889634
    c2 = c1 * 0.044715
    A("s_mov_b32 s%d, 0x%x" % (S_C, f32bits(c2)))
    A("s_mov_b32 s%d, 0x%x" % (S_C + 1, f32bits(c2)))
    A("s_mov_b32 s%d, 1.0" % (S_C + 2))
    A("s_mov_b32 s%d, 1.0" % (S_C + 3))
    C1 = 12
    A("v_mov_b32 v%d, 0x%x" % (C1, f32bits(c1)))
    A("v_mov_b32 v%d, 0x%x" % (C1 + 1, f32bits(c1)))
    A("s_lshl_b32 s%d, s%d, 2" % (S_T0, S_RB2))
    A("s_add_u32 s%d, s%d, s%d" % (S_T0, S_T0, S_WAVE))
    A("s_mul_i32 s%d, s%d, 86" % (S_T0, S_T0))
    A("s_mul_i32 s%d, s%d, 6" % (S_T1, S_CG2))
    A("s_add_u32 s%d, s%d, s%d" % (S_T0, S_T0, S_T1))
    A("s_lshl_b32 s%d, s%d, 10" % (S_T0, S_T0))
    A("s_add_u32 s%d, s%d, 0x%x" % (S_T0, S_T0, WS_HF))
    A("s_nop 7")
    T = 32
    for u in range(3):
        if u == 1:
            A("s_cmp_eq_u32 s%d, 14" % S_CG2)
            A("s_cbranch_scc1 P2_EPI_DONE")
        G = V_ACC2 + 16 * u; U = V_ACC2 + 48 + 16 * u
        for grp in range(2):
            prs = [G + 8 * grp + 2 * i for i in range(4)]
            tm = [T + 2 * i for i in range(4)]
            for g, t in zip(prs, tm): A("v_pk_mul_f32 %s, %s, %s" % (vr(t, 2), vr(g, 2), vr(g, 2)))
            for g, t in zip(prs, tm): A("v_pk_fma_f32 %s, %s, %s, %s" % (vr(t, 2), vr(t, 2), sr(S_C, 2), vr(C1, 2)))
            for g, t in zip(prs, tm): A("v_pk_mul_f32 %s, %s, %s" % (vr(t, 2), vr(t, 2), vr(g, 2)))
            for g, t in zip(prs, tm):
                A("v_exp_f32 v%d, v%d" % (t, t)); A("v_exp_f32 v%d, v%d" % (t + 1, t + 1))
            for g, t in zip(prs, tm): A("v_pk_add_f32 %s, %s, %s" % (vr(t, 2), vr(t, 2), sr(S_C + 2, 2)))
            for g, t in zip(prs, tm):
                A("v_rcp_f32 v%d, v%d" % (t, t)); A("v_rcp_f32 v%d, v%d" % (t + 1, t + 1))
            for g, t in zip(prs, tm): A("v_pk_mul_f32 %s, %s, %s" % (vr(g, 2), vr(g, 2), vr(U + (g - G), 2)))
            for g, t in zip(prs, tm): A("v_pk_mul_f32 %s, %s, %s" % (vr(t, 2), vr(t, 2), vr(g, 2)))
            P = 48 + 4 * grp + 8 * (u & 1)
            for i, t in enumerate(tm): A("v_cvt_pk_bf16_f32 v%d, v%d, v%d" % (P + i, t, t + 1))
            A("buffer_store_dwordx4 %s, v%d, s[%d:%d], s%d offen offset:%d" % (vr(P, 4), V_L16, S_WS, S_WS + 3, S_T0, grp * 1024))
        A("s_add_u32 s%d, s%d, 2048" % (S_T0, S_T0))
    A("P2_EPI_DONE:")

def build_k1():
    A = Asm()
    k1_prologue(A)
    stamp(A, 0)
    A("s_cmp_ge_u32 s%d, 4" % S_WAVE8)
    A("s_cbranch_scc1 K1_LOADER")
    p1(A)
    stamp(A, 3)
    p1_epilogue(A)
    stamp(A, 4)
    A("s_cmp_eq_u32 s%d, 15" % S_CG2)
    A("s_cbranch_scc1 K1_GATE")
    p2(A)
    A("s_branch K1_FIN")
    A("K1_GATE:")
    stamp(A, 5)
    gate(A)
    stamp(A, 6)
    A("K1_FIN:")
    stamp(A, 7)
    A("s_waitcnt vmcnt(0)")
    stamp(A, 8)
    stamp_flush(A, 9, S_WAVE, S_WS)
    A("s_branch K1_END")
    A("K1_LOADER:")
    loader(A)
    A("K1_FIN2:")
    A("K1_END:")
    return A.text()

if __name__ == "__main__":
    import sys, hazard
    for st in (False, True):
        Cfg.stamps = st
        txt = build_k1()
        k = kernel_text(NAME + "_kernel", txt, vgpr=200, agpr=0)
        fn = "k1_st.s" if st else "k1.s"
        open(fn, "w").write(file_text([(None, 256, 512, 163840)], [k]))
        hazard.check(open(fn).read())
    for nm in ("no_compute", "no_dma"):
        setattr(Cfg, nm, True)
        txt = build_k1()
        k = kernel_text(NAME + "_kernel", txt, vgpr=200, agpr=0)
        open("k1_%s.s" % nm, "w").write(file_text([(None, 256, 512, 163840)], [k]))
        setattr(Cfg, nm, False)
```

```python
from gen import *
from k1 import (WS_QF, WS_KF, WS_VF, WS_OF, WS_HF, WS_NQ, WS_NK, WS_G, WS_BB, WS_SIZE, WS_ST, srd, f32bits, Cfg, stamp, stamp_flush, lane_reduce, emit)

S_WS = 4
S_WAVE, S_HEAD, S_QB, S_I = 8, 9, 10, 11
S_T0, S_T1, S_T2, S_T3 = 12, 13, 14, 15
S_QOFF = 16
S_SLOW = 17
S_EXM = 18
S_PTR = 20
V_LANE, V_L16 = 1, 2
V_T = 3
V_FL = 12
V_VOFF = 13
V_S = [16, 32]
V_C = 48
V_P = 64
V_Q, V_QN = 72, 76
V_M = 80
A_K, A_V, A_O = 0, 64, 192
OSLOT = 2304
def oslot_base(w_expr=None): pass

def mfma(d, a_, b_, c):
    return "v_mfma_f32_32x32x16_bf16 %s, %s, %s, %s" % (d, a_, b_, c)

def tile(A, t, extra=None):
    S = V_S[t & 1]; Sp = V_S[(t + 1) & 1]
    e = lambda i: "v_exp_f32 v%d, v%d" % (S + i, S + i)
    c = lambda j: "v_cvt_pk_bf16_f32 v%d, v%d, v%d" % (V_P + j, S + 2 * j, S + 2 * j + 1)
    c7p = "v_cvt_pk_bf16_f32 v%d, v%d, v%d" % (V_P + 7, Sp + 14, Sp + 15)
    tp = (t - 1) & 15
    pvb = mfma(ar(A_O, 16), ar(A_V + 4 * (2 * tp + 1), 4), vr(V_P + 4, 4), ar(A_O, 16))
    pva = mfma(ar(A_O, 16), ar(A_V + 4 * (2 * t), 4), vr(V_P, 4), "0" if t == 0 else ar(A_O, 16))
    tn = (t + 1) & 15
    qk = mfma(vr(Sp, 16), ar(A_K + 4 * tn, 4), vr(V_Q, 4), vr(V_C, 16))
    seq = [e(0), c7p, e(1), e(2), pvb, c(0), e(3), e(4), c(1), qk, e(5), e(6), c(2), e(7), e(8), c(3), e(9), e(10), pva,
           c(4), e(11), e(12), c(5), "X", e(13), e(14), c(6), e(15)]
    extra = extra or {}
    for i, ins in enumerate(seq):
        for l in extra.get(("b", i), []): A(l)
        if ins == "X":
            for l in extra.get("x", []): A(l)
        else:
            A(ins)

def flush_lines():
    return ["ds_write_b128 v%d, %s" % (V_FL, ar(A_O, 4)),
            "ds_write_b128 v%d, %s offset:1024" % (V_FL, ar(A_O + 4, 4)),
            "ds_write_b32 v%d, %s offset:2048" % (V_FL + 2, ar(A_O + 8, 1))]

def k2_prologue(A):
    A("s_cmp_ge_u32 s2, 256")
    A("s_cbranch_scc1 K2_END")
    A("s_load_dwordx2 s[%d:%d], s[0:1], 80" % (S_PTR, S_PTR + 1))
    A("v_lshrrev_b32 v%d, 6, v0" % V_T)
    A("v_and_b32 v%d, 63, v0" % V_LANE)
    A("v_readfirstlane_b32 s%d, v%d" % (S_WAVE, V_T))
    A("v_lshlrev_b32 v%d, 4, v%d" % (V_L16, V_LANE))
    A("s_and_b32 s%d, s2, 7" % S_T0)
    A("s_lshr_b32 s%d, s2, 3" % S_T1)
    A("s_lshl_b32 s%d, s%d, 2" % (S_HEAD, S_T0))
    A("s_and_b32 s%d, s%d, 3" % (S_T2, S_T1))
    A("s_add_u32 s%d, s%d, s%d" % (S_HEAD, S_HEAD, S_T2))
    A("s_lshr_b32 s%d, s%d, 2" % (S_QB, S_T1))
    A("s_waitcnt lgkmcnt(0)")
    srd(A, S_WS, S_PTR, S_PTR + 1, WS_SIZE)

def attn_loads(A):
    t0, t1 = V_T, V_T + 1
    A("v_lshlrev_b32 v%d, 2, v%d" % (t0, V_LANE))
    A("s_lshl_b32 s%d, s%d, 8" % (S_T0, S_HEAD))
    A("s_add_u32 s%d, s%d, 0x%x" % (S_T1, S_T0, WS_NK))
    A("buffer_load_dword v%d, v%d, s[%d:%d], s%d offen" % (V_M, t0, S_WS, S_WS + 3, S_T1))
    A("v_and_b32 v%d, 7, v%d" % (t1, V_LANE))
    A("v_lshlrev_b32 v%d, 2, v%d" % (t1, t1))
    A("s_lshl_b32 s%d, s%d, 5" % (S_T2, S_QB))
    A("s_add_u32 s%d, s%d, s%d" % (S_T1, S_T0, S_T2))
    A("s_add_u32 s%d, s%d, 0x%x" % (S_T1, S_T1, WS_NQ))
    A("buffer_load_dword v%d, v%d, s[%d:%d], s%d offen" % (V_M + 1, t1, S_WS, S_WS + 3, S_T1))
    A("s_lshl_b32 s%d, s%d, 16" % (S_T0, S_HEAD))
    A("s_lshl_b32 s%d, s%d, 13" % (S_T1, S_QB))
    A("s_add_u32 s%d, s%d, s%d" % (S_QOFF, S_T0, S_T1))
    A("s_add_u32 s%d, s%d, 0x%x" % (S_QOFF, S_QOFF, WS_QF))
    A("buffer_load_dwordx4 %s, v%d, s[%d:%d], s%d offen" % (vr(V_Q, 4), V_L16, S_WS, S_WS + 3, S_QOFF))
    A("s_add_u32 s%d, s%d, 1024" % (S_QOFF, S_QOFF))
    Z = V_M + 4
    for r in range(4): A("v_mov_b32 v%d, 0" % (Z + r))
    A("v_mov_b32 v%d, 0x3f803f80" % (t0))
    A("s_nop 0")
    for r in range(16): A("v_accvgpr_write_b32 a%d, v%d" % (A_V + r, t0))
    A("s_nop 1")
    for g in range(1, 8):
        A(mfma(ar(A_V + 16 * g, 16), vr(Z, 4), vr(Z, 4), ar(A_V, 16)))
    A("s_lshl_b32 s%d, s%d, 14" % (S_T1, S_WAVE))
    A("s_add_u32 s%d, s%d, s%d" % (S_T1, S_T1, S_T0))
    A("s_add_u32 s%d, s%d, 0x%x" % (S_T2, S_T1, WS_KF))
    for i in range(16):
        A("buffer_load_dwordx4 %s, v%d, s[%d:%d], s%d offen offset:%d" % (ar(A_K + 4 * i, 4), V_L16, S_WS, S_WS + 3, S_T2, (i & 3) * 1024))
        if (i & 3) == 3 and i < 15: A("s_add_u32 s%d, s%d, 4096" % (S_T2, S_T2))
    A("v_lshrrev_b32 v%d, 5, v%d" % (t0, V_LANE))
    A("v_lshlrev_b32 v%d, 8, v%d" % (t0, t0))
    A("v_and_b32 v%d, 15, v%d" % (t1, V_LANE))
    A("v_lshlrev_b32 v%d, 4, v%d" % (t1, t1))
    A("v_add_u32 v%d, v%d, v%d" % (V_VOFF, t0, t1))
    A("s_add_u32 s%d, s%d, 0x%x" % (S_T2, S_T1, WS_VF))
    A("s_mov_b32 s%d, 0x0000ffff" % S_EXM)
    A("s_mov_b32 s%d, 0x0000ffff" % (S_EXM + 1))
    A("s_nop 7")
    A("s_mov_b64 exec, s[%d:%d]" % (S_EXM, S_EXM + 1))
    for g in range(32):
        A("buffer_load_dwordx4 %s, v%d, s[%d:%d], s%d offen offset:%d" % (ar(A_V + 4 * g, 4), V_VOFF, S_WS, S_WS + 3, S_T2, (g & 7) * 512))
        if (g & 7) == 7 and g < 31: A("s_add_u32 s%d, s%d, 4096" % (S_T2, S_T2))
    A("s_mov_b64 exec, -1")

def bound(A):
    A("s_waitcnt vmcnt(49)")
    lane_reduce(A, [V_M, V_M + 1], [V_M + 2, V_M + 3], "v_max_f32", "v_max_f32")
    A("v_mul_f32 v%d, v%d, v%d" % (V_M, V_M, V_M + 1))
    A("v_sqrt_f32 v%d, v%d" % (V_M, V_M))
    A("s_nop 0")
    A("v_mov_b32 v%d, 0x42400000" % (V_M + 1))
    A("v_cmp_nle_f32 vcc, v%d, v%d" % (V_M, V_M + 1))
    A("v_sub_f32 v%d, 0, v%d" % (V_M, V_M))
    A("s_nop 1")
    A("s_cmp_lg_u64 vcc, 0")
    A("s_cselect_b32 s%d, 1, 0" % S_SLOW)
    for r in range(16): A("v_mov_b32 v%d, v%d" % (V_C + r, V_M))

def k2_body(A):
    attn_loads(A)
    bound(A)
    A("s_mul_i32 s%d, s%d, %d" % (S_T0, S_WAVE, 9 * OSLOT))
    A("v_add_u32 v%d, s%d, v%d" % (V_FL, S_T0, V_L16))
    A("v_lshlrev_b32 v%d, 2, v%d" % (V_FL + 2, V_LANE))
    A("v_add_u32 v%d, s%d, v%d" % (V_FL + 2, S_T0, V_FL + 2))
    stamp(A, 1)
    A("s_waitcnt vmcnt(0)")
    stamp(A, 2)
    for r in range(16): A("v_mov_b32 v%d, 0" % (V_S[1] + r))
    for r in range(8): A("v_mov_b32 v%d, 0" % (V_P + r))
    A(mfma(vr(V_S[0], 16), ar(A_K, 4), vr(V_Q, 4), vr(V_C, 16)))
    A("s_nop 15")
    A("s_mov_b32 s%d, 0" % S_I)
    A("K2_LOOP:")
    for t in range(16):
        ex = {}
        if t == 0:
            ex[("b", 17)] = flush_lines() + ["v_add_u32 v%d, %d, v%d" % (V_FL, OSLOT, V_FL), "v_add_u32 v%d, %d, v%d" % (V_FL + 2, OSLOT, V_FL + 2)]
        if t == 1:
            ex[("b", 2)] = ["buffer_load_dwordx4 %s, v%d, s[%d:%d], s%d offen" % (vr(V_QN, 4), V_L16, S_WS, S_WS + 3, S_QOFF),
                            "s_add_u32 s%d, s%d, 1024" % (S_QOFF, S_QOFF)]
        if t == 15:
            ex[("b", 2)] = ["s_waitcnt vmcnt(0)"] + ["v_mov_b32 v%d, v%d" % (V_Q + r, V_QN + r) for r in range(4)]
        tile(A, t, ex)
    A("s_add_u32 s%d, s%d, 1" % (S_I, S_I))
    A("s_cmp_lt_u32 s%d, 8" % S_I)
    A("s_cbranch_scc1 K2_LOOP")
    A("s_nop 0")
    A("v_cvt_pk_bf16_f32 v%d, v%d, v%d" % (V_P + 7, V_S[1] + 14, V_S[1] + 15))
    A("s_nop 1")
    A(mfma(ar(A_O, 16), ar(A_V + 4 * 31, 4), vr(V_P + 4, 4), ar(A_O, 16)))
    A("s_nop 15")
    emit(A, flush_lines())
    A("s_waitcnt lgkmcnt(0)")
    stamp(A, 3)
    A("s_barrier")
    attn_epilogue(A)

def attn_epilogue(A):
    t0 = V_T
    R = 16
    for k in range(2):
        A("s_lshl_b32 s%d, s%d, 1" % (S_T0, S_WAVE))
        A("s_add_u32 s%d, s%d, %d" % (S_T0, S_T0, k + 1))
        A("s_mul_i32 s%d, s%d, %d" % (S_T0, S_T0, OSLOT))
        A("v_add_u32 v%d, s%d, v%d" % (t0, S_T0, V_L16))
        A("v_lshlrev_b32 v%d, 2, v%d" % (t0 + 1, V_LANE))
        A("v_add_u32 v%d, s%d, v%d" % (t0 + 1, S_T0, t0 + 1))
        for w in range(4):
            b = R + 12 * w
            A("ds_read_b128 %s, v%d offset:%d" % (vr(b, 4), t0, w * 9 * OSLOT))
            A("ds_read_b128 %s, v%d offset:%d" % (vr(b + 4, 4), t0, w * 9 * OSLOT + 1024))
            A("ds_read_b32 v%d, v%d offset:%d" % (b + 8, t0 + 1, w * 9 * OSLOT + 2048))
        A("s_waitcnt lgkmcnt(0)")
        for r in range(9):
            A("v_add_f32 v%d, v%d, v%d" % (R + r, R + r, R + 12 + r))
            A("v_add_f32 v%d, v%d, v%d" % (R + 24 + r, R + 24 + r, R + 36 + r))
        for r in range(9):
            A("v_add_f32 v%d, v%d, v%d" % (R + r, R + r, R + 24 + r))
        A("v_rcp_f32 v%d, v%d" % (R + 8, R + 8))
        A("s_nop 0")
        for r in range(8):
            A("v_mul_f32 v%d, v%d, v%d" % (R + r, R + r, R + 8))
        P = 66 + 4 * k - 2 + 2 * k
        P = 64 + 4 * k
        for p in range(4):
            A("v_cvt_pk_bf16_f32 v%d, v%d, v%d" % (P + p, R + 2 * p, R + 2 * p + 1))
        A("s_lshl_b32 s%d, s%d, 3" % (S_T0, S_QB))
        A("s_lshl_b32 s%d, s%d, 1" % (S_T1, S_WAVE))
        A("s_add_u32 s%d, s%d, s%d" % (S_T0, S_T0, S_T1))
        A("s_add_u32 s%d, s%d, %d" % (S_T0, S_T0, k))
        A("s_lshl_b32 s%d, s%d, 5" % (S_T0, S_T0))
        A("s_add_u32 s%d, s%d, s%d" % (S_T0, S_T0, S_HEAD))
        A("s_lshl_b32 s%d, s%d, 10" % (S_T0, S_T0))
        A("s_add_u32 s%d, s%d, 0x%x" % (S_T0, S_T0, WS_OF))
        A("buffer_store_dwordx4 %s, v%d, s[%d:%d], s%d offen" % (vr(P, 4), V_L16, S_WS, S_WS + 3, S_T0))

def build_k2():
    A = Asm()
    k2_prologue(A)
    stamp(A, 0)
    k2_body(A)
    stamp(A, 4)
    A("s_waitcnt vmcnt(0)")
    stamp(A, 5)
    stamp_flush(A, 6, S_WAVE, S_WS, 0x40000)
    A("K2_END:")
    return A.text()

K2_LDS = 4 * 9 * OSLOT
```

```python
from gen import *
from k1 import (WS_QF, WS_KF, WS_VF, WS_OF, WS_HF, WS_NQ, WS_NK, WS_G, WS_BB, WS_SIZE, WS_ST, srd, f32bits, Cfg, stamp, stamp_flush, lane_reduce, emit)

S_WS, S_WD, S_WO, S_OUT = 4, 8, 12, 16
S_WAVE, S_RB, S_CB, S_I = 20, 21, 22, 23
S_T0, S_T1, S_T2, S_T3 = 24, 25, 26, 27
S_STEP, S_END, S_LB = 28, 29, 30
S_A0, S_A1, S_WOFF = 31, 32, 33
S_PTR = 40
V_LANE, V_L16 = 1, 2
V_T = 3
V_DO = 12
V_RA = 13
V_G = 15
V_ACT = 32
V_WF = 96
V_ACCB = 112
V_ACCA = 176
K3_LDS = 65536

def mfma(d, a_, b_, c):
    return "v_mfma_f32_32x32x16_bf16 %s, %s, %s, %s" % (d, a_, b_, c)

def batch8(A, s_w, act_base, act_stride, nact, acc, name):
    for i in range(8):
        A("s_add_u32 s%d, s%d, %d" % (S_T0, S_STEP, i))
        A("s_min_u32 s%d, s%d, %d" % (S_T1, S_T0, nact - 1))
        A("s_lshl_b32 s%d, s%d, 10" % (S_T1, S_T1))
        A("s_add_u32 s%d, s%d, s%d" % (S_T2, S_T1, S_A0))
        A("s_add_u32 s%d, s%d, s%d" % (S_T3, S_T1, S_A1))
        A("buffer_load_dwordx4 %s, v%d, s[%d:%d], s%d offen" % (vr(V_ACT + 8 * i, 4), V_L16, S_WS, S_WS + 3, S_T2))
        A("buffer_load_dwordx4 %s, v%d, s[%d:%d], s%d offen" % (vr(V_ACT + 8 * i + 4, 4), V_L16, S_WS, S_WS + 3, S_T3))
        A("s_lshl_b32 s%d, s%d, 14" % (S_T1, S_T0))
        A("s_add_u32 s%d, s%d, s%d" % (S_T1, S_T1, S_WOFF))
        A("s_cmp_lt_u32 s%d, s%d" % (S_T0, S_END))
        A("s_cselect_b32 s%d, s%d, 0x40000000" % (S_T1, S_T1))
        A("s_add_u32 s%d, s%d, 8192" % (S_T2, S_T1))
        A("s_add_u32 m0, s%d, %d" % (S_LB, i * 2048))
        A("s_nop 0")
        A("buffer_load_dwordx4 v%d, s[%d:%d], s%d offen lds" % (V_DO, s_w, s_w + 3, S_T1))
        A("s_add_u32 m0, s%d, %d" % (S_LB, i * 2048 + 1024))
        A("s_nop 0")
        A("buffer_load_dwordx4 v%d, s[%d:%d], s%d offen lds" % (V_DO, s_w, s_w + 3, S_T2))
    def reads(i):
        F = V_WF + 8 * (i & 1)
        for u in range(2):
            for q in range(2):
                A("ds_read_b64_tr_b16 %s, v%d offset:%d" % (vr(F + 4 * u + 2 * q, 2), V_RA + u, i * 2048 + q * 1024))
    A("s_waitcnt vmcnt(28)")
    reads(0)
    for i in range(8):
        if i < 7:
            A("s_waitcnt vmcnt(%d)" % (4 * (6 - i)))
            reads(i + 1)
            A("s_waitcnt lgkmcnt(4)")
        else:
            A("s_waitcnt lgkmcnt(0)")
        F = V_WF + 8 * (i & 1)
        for u in range(2):
            for mt in range(2):
                d = vr(acc + 16 * (2 * u + mt), 16)
                A(mfma(d, vr(F + 4 * u, 4), vr(V_ACT + 8 * i + 4 * mt, 4), d))
    A("s_add_u32 s%d, s%d, 8" % (S_STEP, S_STEP))

def build_k3():
    A = Asm()
    A("s_cmp_ge_u32 s2, 256")
    A("s_cbranch_scc1 K3_END")
    for i, off in enumerate([80, 48, 16, 64]):
        A("s_load_dwordx2 s[%d:%d], s[0:1], %d" % (S_PTR + 2 * i, S_PTR + 2 * i + 1, off))
    A("v_lshrrev_b32 v%d, 6, v0" % V_T)
    A("v_and_b32 v%d, 63, v0" % V_LANE)
    A("v_readfirstlane_b32 s%d, v%d" % (S_WAVE, V_T))
    A("v_lshlrev_b32 v%d, 4, v%d" % (V_L16, V_LANE))
    A("s_and_b32 s%d, s2, 7" % S_T0)
    A("s_lshr_b32 s%d, s2, 3" % S_T1)
    A("s_lshl_b32 s%d, s%d, 2" % (S_RB, S_T0))
    A("s_and_b32 s%d, s%d, 3" % (S_T2, S_T1))
    A("s_add_u32 s%d, s%d, s%d" % (S_RB, S_RB, S_T2))
    A("s_lshr_b32 s%d, s%d, 2" % (S_CB, S_T1))
    A("s_waitcnt lgkmcnt(0)")
    srd(A, S_WS, S_PTR, S_PTR + 1, WS_SIZE)
    srd(A, S_WD, S_PTR + 2, S_PTR + 3, 1376 * 1024)
    srd(A, S_WO, S_PTR + 4, S_PTR + 5, 512 * 1024)
    srd(A, S_OUT, S_PTR + 6, S_PTR + 7, 2048 * 1024)
    stamp(A, 0)
    t0, t1, t2 = V_T, V_T + 1, V_T + 2
    A("v_and_b32 v%d, 31, v%d" % (t0, V_LANE))
    A("v_lshlrev_b32 v%d, 2, v%d" % (t0, t0))
    A("s_lshl_b32 s%d, s%d, 8" % (S_T0, S_RB))
    A("s_add_u32 s%d, s%d, 0x%x" % (S_T0, S_T0, WS_G))
    A("buffer_load_dword v%d, v%d, s[%d:%d], s%d offen" % (V_G, t0, S_WS, S_WS + 3, S_T0))
    A("buffer_load_dword v%d, v%d, s[%d:%d], s%d offen offset:128" % (V_G + 1, t0, S_WS, S_WS + 3, S_T0))
    A("v_lshrrev_b32 v%d, 3, v%d" % (t0, V_LANE))
    A("v_lshlrev_b32 v%d, 10, v%d" % (t0, t0))
    A("v_lshrrev_b32 v%d, 4, v%d" % (t1, V_LANE))
    A("v_and_b32 v%d, 1, v%d" % (t1, t1))
    A("v_lshlrev_b32 v%d, 2, v%d" % (t1, t1))
    A("v_and_b32 v%d, 7, v%d" % (t2, V_LANE))
    A("v_xor_b32 v%d, v%d, v%d" % (t1, t1, t2))
    A("v_lshlrev_b32 v%d, 4, v%d" % (t1, t1))
    A("v_add_u32 v%d, v%d, v%d" % (V_DO, t0, t1))
    A("s_lshl_b32 s%d, s%d, 14" % (S_LB, S_WAVE))
    A("v_and_b32 v%d, 15, v%d" % (t0, V_LANE))
    A("v_lshrrev_b32 v%d, 2, v%d" % (t0, t0))
    A("v_lshrrev_b32 v%d, 5, v%d" % (t1, V_LANE))
    A("v_lshlrev_b32 v%d, 2, v%d" % (t1, t1))
    A("v_add_u32 v%d, v%d, v%d" % (t1, t1, t0))
    A("v_lshlrev_b32 v%d, 7, v%d" % (t1, t1))
    A("v_lshrrev_b32 v%d, 1, v%d" % (t0, t0))
    A("v_lshlrev_b32 v%d, 6, v%d" % (t0, t0))
    A("v_add_u32 v%d, v%d, v%d" % (t1, t1, t0))
    A("v_lshrrev_b32 v%d, 4, v%d" % (t0, V_LANE))
    A("v_and_b32 v%d, 1, v%d" % (t0, t0))
    A("v_lshlrev_b32 v%d, 5, v%d" % (t0, t0))
    A("v_add_u32 v%d, v%d, v%d" % (t1, t1, t0))
    A("v_and_b32 v%d, 3, v%d" % (t0, V_LANE))
    A("v_lshlrev_b32 v%d, 3, v%d" % (t0, t0))
    A("v_add_u32 v%d, v%d, v%d" % (t1, t1, t0))
    A("v_add_u32 v%d, s%d, v%d" % (V_RA, S_LB, t1))
    A("v_xor_b32 v%d, 64, v%d" % (V_RA + 1, V_RA))
    for r in range(128): A("v_mov_b32 v%d, 0" % (V_ACCB + r))
    A("s_lshl_b32 s%d, s%d, 7" % (S_WOFF, S_CB))
    A("s_lshl_b32 s%d, s%d, 1" % (S_T0, S_RB))
    A("s_mul_i32 s%d, s%d, %d" % (S_A0, S_T0, 86 * 1024))
    A("s_add_u32 s%d, s%d, 0x%x" % (S_A0, S_A0, WS_HF))
    A("s_add_u32 s%d, s%d, %d" % (S_A1, S_A0, 86 * 1024))
    A("s_mul_i32 s%d, s%d, 22" % (S_STEP, S_WAVE))
    A("s_add_u32 s%d, s%d, 22" % (S_END, S_STEP))
    A("s_min_u32 s%d, s%d, 86" % (S_END, S_END))
    A("s_mov_b32 s%d, 0" % S_I)
    A("K3_LB:")
    batch8(A, S_WD, 0, 0, 86, V_ACCB, "b")
    A("s_add_u32 s%d, s%d, 1" % (S_I, S_I))
    A("s_cmp_lt_u32 s%d, 3" % S_I)
    A("s_cbranch_scc1 K3_LB")
    stamp(A, 1)
    A("s_lshl_b32 s%d, s%d, 1" % (S_T0, S_RB))
    A("s_lshl_b32 s%d, s%d, 15" % (S_A0, S_T0))
    A("s_add_u32 s%d, s%d, 0x%x" % (S_A0, S_A0, WS_OF))
    A("s_add_u32 s%d, s%d, 32768" % (S_A1, S_A0))
    A("s_lshl_b32 s%d, s%d, 3" % (S_STEP, S_WAVE))
    A("s_add_u32 s%d, s%d, 8" % (S_END, S_STEP))
    batch8(A, S_WO, 0, 0, 32, V_ACCA, "a")
    stamp(A, 2)
    A("v_sub_f32 v%d, 1.0, v%d" % (V_G + 2, V_G))
    A("v_sub_f32 v%d, 1.0, v%d" % (V_G + 3, V_G + 1))
    A("s_nop 7")
    for u in range(2):
        for mt in range(2):
            o = 16 * (2 * u + mt)
            for r in range(16):
                A("v_mul_f32 v%d, v%d, v%d" % (V_ACCB + o + r, V_G + 2 + mt, V_ACCB + o + r))
            for r in range(16):
                A("v_fmac_f32 v%d, v%d, v%d" % (V_ACCB + o + r, V_G + mt, V_ACCA + o + r))
    A("s_barrier")
    A("v_add_u32 v%d, s%d, v%d" % (t0, S_LB, V_L16))
    for tl in range(4):
        for q in range(4):
            A("ds_write_b128 v%d, %s offset:%d" % (t0, vr(V_ACCB + 16 * tl + 4 * q, 4), tl * 4096 + q * 1024))
    A("s_waitcnt lgkmcnt(0)")
    A("s_barrier")
    A("s_lshl_b32 s%d, s%d, 12" % (S_T0, S_WAVE))
    A("v_add_u32 v%d, s%d, v%d" % (t0, S_T0, V_L16))
    R = 32
    for w in range(4):
        for q in range(4):
            A("ds_read_b128 %s, v%d offset:%d" % (vr(R + 16 * w + 4 * q, 4), t0, w * 16384 + q * 1024))
        if w == 1 or w == 3: A("s_waitcnt lgkmcnt(0)")
    for r in range(16):
        A("v_add_f32 v%d, v%d, v%d" % (R + r, R + r, R + 16 + r))
        A("v_add_f32 v%d, v%d, v%d" % (R + 32 + r, R + 32 + r, R + 48 + r))
    for r in range(16):
        A("v_add_f32 v%d, v%d, v%d" % (R + r, R + r, R + 32 + r))
    P = 96
    for p in range(8):
        A("v_cvt_pk_bf16_f32 v%d, v%d, v%d" % (P + p, R + 2 * p, R + 2 * p + 1))
    A("s_nop 1")
    for pr in range(2):
        A("v_permlane32_swap_b32 v%d, v%d" % (P + 4 * pr, P + 4 * pr + 2))
        A("v_permlane32_swap_b32 v%d, v%d" % (P + 4 * pr + 1, P + 4 * pr + 3))
    A("v_and_b32 v%d, 31, v%d" % (t0, V_LANE))
    A("v_lshlrev_b32 v%d, 10, v%d" % (t0, t0))
    A("v_lshrrev_b32 v%d, 5, v%d" % (t1, V_LANE))
    A("v_lshlrev_b32 v%d, 4, v%d" % (t1, t1))
    A("v_add_u32 v%d, v%d, v%d" % (t0, t0, t1))
    A("s_lshl_b32 s%d, s%d, 16" % (S_T0, S_RB))
    A("s_and_b32 s%d, s%d, 1" % (S_T1, S_WAVE))
    A("s_lshl_b32 s%d, s%d, 15" % (S_T1, S_T1))
    A("s_add_u32 s%d, s%d, s%d" % (S_T0, S_T0, S_T1))
    A("s_lshl_b32 s%d, s%d, 7" % (S_T1, S_CB))
    A("s_add_u32 s%d, s%d, s%d" % (S_T0, S_T0, S_T1))
    A("s_lshr_b32 s%d, s%d, 1" % (S_T1, S_WAVE))
    A("s_lshl_b32 s%d, s%d, 6" % (S_T1, S_T1))
    A("s_add_u32 s%d, s%d, s%d" % (S_T0, S_T0, S_T1))
    A("buffer_store_dwordx4 %s, v%d, s[%d:%d], s%d offen" % (vr(P, 4), t0, S_OUT, S_OUT + 3, S_T0))
    A("buffer_store_dwordx4 %s, v%d, s[%d:%d], s%d offen offset:32" % (vr(P + 4, 4), t0, S_OUT, S_OUT + 3, S_T0))
    stamp(A, 3)
    A("s_waitcnt vmcnt(0)")
    stamp(A, 4)
    stamp_flush(A, 5, S_WAVE, S_WS, 0x60000)
    A("K3_END:")
    return A.text()
```

```python
import sys
from gen import *
import k1, k2, hazard
from k1 import Cfg
def build(stamps=False, which=("k1", "k2")):
    Cfg.stamps = stamps
    ks = []; ls = []
    if "k1" in which:
        ks.append(kernel_text("k1_kernel", k1.build_k1(), vgpr=200)); ls.append(("k1_kernel", 256, 512, 163840))
    if "k2" in which:
        ks.append(kernel_text("k2_kernel", k2.build_k2(), vgpr=256, agpr=256)); ls.append(("k2_kernel", 256, 256, k2.K2_LDS))
    if "k3" in which:
        import k3
        ks.append(kernel_text("k3_kernel", k3.build_k3(), vgpr=256, agpr=0)); ls.append(("k3_kernel", 256, 256, k3.K3_LDS))
    return file_text(ls, ks)
if __name__ == "__main__":
    which = sys.argv[1].split(",")
    for st in (False, True):
        t = build(st, which)
        fn = "all_st.s" if st else "all.s"
        open(fn, "w").write(t)
        hazard.check(t)
```

```python
from gen import *
import struct

WS_QF = 0x0000000
WS_KF = 0x0200000
WS_VF = 0x0400000
WS_OF = 0x0600000
WS_HF = 0x0800000
WS_NQ = 0x0E00000
WS_NK = 0x0E02000
WS_G  = 0x0E04000
WS_F1 = 0x0E10000
WS_F2 = 0x0E11000
WS_F3 = 0x0E12000
WS_ST = 0x1700000
WS_SIZE = 0x1800000
QSCALE = 0.25 * 1.4426950408889634

def f32bits(x): return struct.unpack("<I", struct.pack("<f", x))[0]

class Cfg:
    stamps = False
    sc1 = True
    shadow = False

def SC(): return " sc1" if Cfg.sc1 else ""

S_AX, S_B1, S_B2, S_B3, S_WS = 4, 8, 12, 16, 20
S_WAVE = 24
S_RB1, S_CG1, S_KC1, S_XB1, S_WB1, S_WX1 = 25, 26, 27, 28, 29, 30
S_RB2, S_CG2, S_KC2, S_XB2, S_WB2, S_WX2, S_WW2 = 31, 32, 33, 34, 35, 36, 37
S_I, S_SLI, S_SLR = 38, 39, 40
S_GX, S_GW0, S_GW1, S_GM, S_GM2 = 41, 42, 43, 44, 45
S_T0, S_T1, S_T2, S_T3 = 46, 47, 48, 49
S_C = 50
S_NONCE = 54
S_HEAD, S_QB, S_QOFF, S_SLOW = 55, 56, 57, 58
S_EXM = 60
S_RB3, S_CB3, S_STEP, S_END, S_LB, S_A0, S_A1, S_WOFF = 25, 26, 27, 28, 29, 30, 31, 32
S_SPIN = 62
S_PTR = 64
P_AX, P_WQKV, P_WO, P_BX, P_WG, P_WU, P_WD, P_GW, P_OUT, P_DBG, P_WS = [S_PTR + 2 * i for i in range(11)]
S_ST = 86

def srd(A, d, p, nbytes):
    A("s_mov_b32 s%d, s%d" % (d, p))
    A("s_mov_b32 s%d, s%d" % (d + 1, p + 1))
    A("s_mov_b32 s%d, 0x%x" % (d + 2, nbytes))
    A("s_mov_b32 s%d, 0x00020000" % (d + 3))

def stamp(A, idx):
    if not Cfg.stamps: return
    A("s_memtime s[%d:%d]" % (S_ST, S_ST + 1))
    A("s_waitcnt lgkmcnt(0)")
    A("s_mov_b32 s%d, s%d" % (S_ST + 2 + idx, S_ST))

def stamp_flush(A, n):
    if not Cfg.stamps: return
    A("s_lshl_b32 s%d, s2, 2" % (S_ST + 1))
    A("s_add_u32 s%d, s%d, s%d" % (S_ST + 1, S_ST + 1, S_WAVE))
    A("s_lshl_b32 s%d, s%d, 7" % (S_ST + 1, S_ST + 1))
    A("s_add_u32 s%d, s%d, 0x%x" % (S_ST + 1, S_ST + 1, WS_ST))
    A("v_mov_b32 v11, 0")
    A("s_mov_b64 exec, 1")
    for i in range(n):
        A("v_mov_b32 v10, s%d" % (S_ST + 2 + i))
        A("buffer_store_dword v10, v11, s[%d:%d], s%d offen offset:%d" % (S_WS, S_WS + 3, S_ST + 1, 4 * i))
    A("s_mov_b64 exec, -1")

def emit(A, lines):
    for l in lines: A(l)

def mfma(d, a_, b_, c):
    return "v_mfma_f32_32x32x16_bf16 %s, %s, %s, %s" % (d, a_, b_, c)

def loop(A, name, count, body):
    A("s_mov_b32 s%d, 0" % S_I)
    A(name + ":")
    body()
    A("s_add_u32 s%d, s%d, 1" % (S_I, S_I))
    A("s_cmp_lt_u32 s%d, %d" % (S_I, count))
    A("s_cbranch_scc1 " + name)

V_LANE, V_L16 = 1, 2
V_T = 3
V_XO1, V_WO1 = 14, 16
V_XO2, V_WO2 = 17, 21
V_XA, V_WA = 24, 28
V_F = 32
V_ACC1 = 96
V_ACC2 = 96
V_XR, V_WR = 192, 196
V_TCH = 197
V_NONCE = 201
SLOT = 40960
NSLOT = 4
NTOUCH = 3

def x_dma_offsets(A, dst, n_instr, rowbase_wave):
    t0, t1, t2 = V_T, V_T + 1, V_T + 2
    for n in range(n_instr):
        A("v_lshrrev_b32 v%d, 3, v%d" % (t0, V_LANE))
        A("s_mul_i32 s%d, s%d, %d" % (S_T0, S_WAVE, rowbase_wave))
        A("s_add_u32 s%d, s%d, %d" % (S_T0, S_T0, 8 * n))
        A("v_add_u32 v%d, s%d, v%d" % (t0, S_T0, t0))
        A("v_lshrrev_b32 v%d, 1, v%d" % (t1, t0))
        A("v_and_b32 v%d, 7, v%d" % (t1, t1))
        A("v_and_b32 v%d, 7, v%d" % (t2, V_LANE))
        A("v_xor_b32 v%d, v%d, v%d" % (t1, t1, t2))
        A("v_lshlrev_b32 v%d, 4, v%d" % (t1, t1))
        A("v_lshlrev_b32 v%d, 10, v%d" % (t0, t0))
        A("v_add_u32 v%d, v%d, v%d" % (dst + n, t0, t1))

def x_read_addrs(A, s_rowtile):
    t0, t1, t2 = V_T, V_T + 1, V_T + 2
    A("v_and_b32 v%d, 31, v%d" % (t0, V_LANE))
    A("s_lshl_b32 s%d, s%d, 5" % (S_T0, s_rowtile))
    A("v_add_u32 v%d, s%d, v%d" % (t0, S_T0, t0))
    A("v_lshrrev_b32 v%d, 1, v%d" % (t1, t0))
    A("v_and_b32 v%d, 7, v%d" % (t1, t1))
    A("v_lshrrev_b32 v%d, 5, v%d" % (t2, V_LANE))
    A("v_xor_b32 v%d, v%d, v%d" % (t1, t1, t2))
    A("v_lshlrev_b32 v%d, 7, v%d" % (t0, t0))
    for s_ in range(4):
        A("v_xor_b32 v%d, %d, v%d" % (t2, 2 * s_, t1))
        A("v_lshlrev_b32 v%d, 4, v%d" % (t2, t2))
        A("v_add_u32 v%d, v%d, v%d" % (V_XA + s_, t0, t2))

def adv_slot(A, sreg):
    A("s_add_u32 s%d, s%d, %d" % (sreg, sreg, SLOT))
    A("s_cmp_eq_u32 s%d, %d" % (sreg, NSLOT * SLOT))
    A("s_cselect_b32 s%d, 0, s%d" % (sreg, sreg))

def dma_lines(m0base, m0add, voff, srdn, soff, imm=0):
    return ["s_add_u32 m0, s%d, %d" % (m0base, m0add), "s_nop 0",
            "buffer_load_dwordx4 v%d, s[%d:%d], s%d offen%s lds" % (voff, srdn, srdn + 3, soff, (" offset:%d" % imm) if imm else "")]

def group_setup(typ):
    L = []
    if typ == 1:
        L += ["s_lshl_b32 s%d, s%d, 7" % (S_GX, S_KC1), "s_add_u32 s%d, s%d, s%d" % (S_GX, S_GX, S_XB1),
              "s_mul_i32 s%d, s%d, %d" % (S_GW0, S_KC1, 64 * 3072), "s_add_u32 s%d, s%d, s%d" % (S_GW0, S_GW0, S_WB1),
              "s_add_u32 s%d, s%d, %d" % (S_GW1, S_GW0, 8 * 3072),
              "s_add_u32 s%d, s%d, s%d" % (S_GM, S_SLI, S_WX1),
              "s_add_u32 s%d, s%d, 1" % (S_KC1, S_KC1), "s_and_b32 s%d, s%d, 7" % (S_KC1, S_KC1)]
    else:
        L += ["s_lshl_b32 s%d, s%d, 7" % (S_GX, S_KC2), "s_add_u32 s%d, s%d, s%d" % (S_GX, S_GX, S_XB2),
              "s_mul_i32 s%d, s%d, %d" % (S_GW0, S_KC2, 64 * 2752), "s_add_u32 s%d, s%d, s%d" % (S_GW0, S_GW0, S_WB2),
              "s_add_u32 s%d, s%d, s%d" % (S_GM, S_SLI, S_WX2),
              "s_add_u32 s%d, s%d, s%d" % (S_GM2, S_SLI, S_WW2),
              "s_add_u32 s%d, s%d, 1" % (S_KC2, S_KC2), "s_and_b32 s%d, s%d, 7" % (S_KC2, S_KC2)]
    L += ["s_add_u32 s%d, s%d, %d" % (S_SLI, S_SLI, SLOT), "s_cmp_eq_u32 s%d, %d" % (S_SLI, NSLOT * SLOT),
          "s_cselect_b32 s%d, 0, s%d" % (S_SLI, S_SLI)]
    return L

def group_dmas(typ):
    D = []
    if typ == 1:
        for n in range(2): D.append(dma_lines(S_GM, n * 1024, V_XO1 + n, S_AX, S_GX))
        for t in range(3):
            for n in range(2):
                D.append(dma_lines(S_GM, 8192 + t * 8192 + n * 1024 - t * 1024, V_WO1, S_B1, S_GW0 if n == 0 else S_GW1, t * 1024))
    else:
        for n in range(4): D.append(dma_lines(S_GM, n * 1024, V_XO2 + n, S_AX, S_GX))
        for mat in range(2):
            for e in range(3):
                D.append(dma_lines(S_GM2, mat * 12288 + e * 1024, V_WO2 + e, S_B2 if mat == 0 else S_B3, S_GW0))
    return D

def half(typ, which, nsites):
    if typ == 0: return [[] for _ in range(nsites)]
    D = group_dmas(typ); n = len(D) // 2
    part = D[:n] if which == 1 else D[n:]
    sites = [[] for _ in range(nsites)]
    if which == 1: sites[0] += group_setup(typ)
    for i, d in enumerate(part):
        sites[(i * nsites) // len(part)] += d
    return sites

def set_read_addrs(A):
    for s_ in range(4):
        A("v_add_u32 v%d, s%d, v%d" % (V_XR + s_, S_SLR, V_XA + s_))
    A("v_add_u32 v%d, s%d, v%d" % (V_WR, S_SLR, V_WA))

def interleave(A, ms, rs, site):
    n = len(ms); k = 0
    for i, m in enumerate(ms):
        A(m)
        cnt = (len(rs) * (i + 1)) // n - (len(rs) * i) // n
        for _ in range(cnt):
            A(rs[k]); k += 1
        if i == 1: emit(A, site)

def p1_read_list(s_, F):
    L = ["ds_read_b128 %s, v%d" % (vr(F, 4), V_XR + s_)]
    for t in range(3):
        for q in range(2):
            L.append("ds_read_b64_tr_b16 %s, v%d offset:%d" % (vr(F + 4 + 4 * t + 2 * q, 2), V_WR, t * 8192 + s_ * 2048 + q * 512))
    return L

def p1_mfma_list(F):
    return [mfma(vr(V_ACC1, 16), vr(F + 4, 4), vr(F, 4), vr(V_ACC1, 16)),
            mfma(vr(V_ACC1 + 16, 16), vr(F + 8, 4), vr(F, 4), vr(V_ACC1 + 16, 16)),
            mfma(vr(V_ACC1 + 32, 16), vr(F, 4), vr(F + 12, 4), vr(V_ACC1 + 32, 16))]

def p1_chunk(A, h0, h1, vm):
    H = half(h0, 2, 2) + half(h1, 1, 2)
    for s_ in range(4):
        if s_ == 2:
            A("s_waitcnt vmcnt(%d)" % vm)
            A("s_barrier")
            adv_slot(A, S_SLR)
            set_read_addrs(A)
        A("s_waitcnt lgkmcnt(7)")
        interleave(A, p1_mfma_list(V_F + 16 * s_), p1_read_list((s_ + 2) & 3, V_F + 16 * ((s_ + 2) & 3)), H[s_])

def setup_ids(A):
    A("s_and_b32 s%d, s2, 7" % S_T0)
    A("s_lshr_b32 s%d, s2, 3" % S_T1)
    A("s_lshr_b32 s%d, s%d, 1" % (S_RB1, S_T0))
    A("s_lshl_b32 s%d, s%d, 3" % (S_RB1, S_RB1))
    A("s_and_b32 s%d, s%d, 7" % (S_T2, S_T1))
    A("s_add_u32 s%d, s%d, s%d" % (S_RB1, S_RB1, S_T2))
    A("s_and_b32 s%d, s%d, 1" % (S_CG1, S_T0))
    A("s_lshl_b32 s%d, s%d, 2" % (S_CG1, S_CG1))
    A("s_lshr_b32 s%d, s%d, 3" % (S_T2, S_T1))
    A("s_add_u32 s%d, s%d, s%d" % (S_CG1, S_CG1, S_T2))
    A("s_lshl_b32 s%d, s%d, 1" % (S_T2, S_T2))
    A("s_add_u32 s%d, s%d, s%d" % (S_KC1, S_T1, S_T2))
    A("s_and_b32 s%d, s%d, 7" % (S_KC1, S_KC1))
    A("s_lshl_b32 s%d, s%d, 16" % (S_XB1, S_RB1))
    A("s_lshl_b32 s%d, s%d, 7" % (S_WB1, S_CG1))
    A("s_lshl_b32 s%d, s%d, 11" % (S_WX1, S_WAVE))
    A("s_lshr_b32 s%d, s%d, 1" % (S_RB2, S_T0))
    A("s_lshl_b32 s%d, s%d, 2" % (S_RB2, S_RB2))
    A("s_and_b32 s%d, s%d, 3" % (S_T2, S_T1))
    A("s_add_u32 s%d, s%d, s%d" % (S_RB2, S_RB2, S_T2))
    A("s_and_b32 s%d, s%d, 1" % (S_CG2, S_T0))
    A("s_lshl_b32 s%d, s%d, 3" % (S_CG2, S_CG2))
    A("s_lshr_b32 s%d, s%d, 2" % (S_T3, S_T1))
    A("s_add_u32 s%d, s%d, s%d" % (S_CG2, S_CG2, S_T3))
    A("s_lshl_b32 s%d, s%d, 1" % (S_T2, S_T2))
    A("s_add_u32 s%d, s%d, s%d" % (S_KC2, S_T3, S_T2))
    A("s_and_b32 s%d, s%d, 7" % (S_KC2, S_KC2))
    A("s_lshl_b32 s%d, s%d, 17" % (S_XB2, S_RB2))
    A("s_mul_i32 s%d, s%d, 192" % (S_WB2, S_CG2))
    A("s_lshl_b32 s%d, s%d, 12" % (S_WX2, S_WAVE))
    A("s_mul_i32 s%d, s%d, 3072" % (S_WW2, S_WAVE))
    A("s_add_u32 s%d, s%d, 16384" % (S_WW2, S_WW2))
    A("s_lshl_b32 s%d, s%d, 2" % (S_HEAD, S_T0))
    A("s_and_b32 s%d, s%d, 3" % (S_T2, S_T1))
    A("s_add_u32 s%d, s%d, s%d" % (S_HEAD, S_HEAD, S_T2))
    A("s_lshr_b32 s%d, s%d, 2" % (S_QB, S_T1))

def w_read_base(A, rowbytes, swz):
    t0, t1 = V_T, V_T + 1
    A("v_and_b32 v%d, 15, v%d" % (t0, V_LANE))
    A("v_lshrrev_b32 v%d, 2, v%d" % (t0, t0))
    A("v_lshrrev_b32 v%d, 5, v%d" % (t1, V_LANE))
    A("v_lshlrev_b32 v%d, 3, v%d" % (t1, t1))
    A("v_add_u32 v%d, v%d, v%d" % (t1, t1, t0))
    A("v_mul_u32_u24 v%d, %d, v%d" % (t1, rowbytes, t1))
    if swz:
        A("v_lshrrev_b32 v%d, 1, v%d" % (t0, t0))
        A("s_and_b32 s%d, s%d, 1" % (S_T2, S_WAVE))
        A("v_xor_b32 v%d, s%d, v%d" % (t0, S_T2, t0))
        A("v_lshlrev_b32 v%d, 6, v%d" % (t0, t0))
        A("v_add_u32 v%d, v%d, v%d" % (t1, t1, t0))
    A("v_lshrrev_b32 v%d, 4, v%d" % (t0, V_LANE))
    A("v_and_b32 v%d, 1, v%d" % (t0, t0))
    A("v_lshlrev_b32 v%d, 5, v%d" % (t0, t0))
    A("v_add_u32 v%d, v%d, v%d" % (t1, t1, t0))
    A("v_and_b32 v%d, 3, v%d" % (t0, V_LANE))
    A("v_lshlrev_b32 v%d, 3, v%d" % (t0, t0))
    A("v_add_u32 v%d, v%d, v%d" % (t1, t1, t0))
    if swz: A("v_add_u32 v%d, 8192, v%d" % (V_WA, t1))
    else: A("v_mov_b32 v%d, v%d" % (V_WA, t1))

def prologue(A):
    A("s_cmp_ge_u32 s2, 256")
    A("s_cbranch_scc1 K_END")
    A("s_load_dwordx16 s[%d:%d], s[0:1], 0" % (S_PTR, S_PTR + 15))
    A("s_load_dwordx4 s[%d:%d], s[0:1], 64" % (S_PTR + 16, S_PTR + 19))
    A("s_load_dwordx2 s[%d:%d], s[0:1], 80" % (S_PTR + 20, S_PTR + 21))
    A("v_lshrrev_b32 v%d, 6, v0" % V_T)
    A("v_and_b32 v%d, 63, v0" % V_LANE)
    A("v_readfirstlane_b32 s%d, v%d" % (S_WAVE, V_T))
    A("v_lshlrev_b32 v%d, 4, v%d" % (V_L16, V_LANE))
    setup_ids(A)
    t0, t1, t2 = V_T, V_T + 1, V_T + 2
    x_dma_offsets(A, V_XO1, 2, 16)
    A("v_lshrrev_b32 v%d, 3, v%d" % (t0, V_LANE))
    A("s_lshl_b32 s%d, s%d, 4" % (S_T0, S_WAVE))
    A("v_add_u32 v%d, s%d, v%d" % (t0, S_T0, t0))
    A("v_mul_u32_u24 v%d, 3072, v%d" % (t0, t0))
    A("v_lshrrev_b32 v%d, 4, v%d" % (t1, V_LANE))
    A("v_and_b32 v%d, 1, v%d" % (t1, t1))
    A("v_lshlrev_b32 v%d, 2, v%d" % (t1, t1))
    A("v_and_b32 v%d, 7, v%d" % (t2, V_LANE))
    A("v_xor_b32 v%d, v%d, v%d" % (t1, t1, t2))
    A("v_lshlrev_b32 v%d, 4, v%d" % (t1, t1))
    A("v_add_u32 v%d, v%d, v%d" % (V_WO1, t0, t1))
    A("s_waitcnt lgkmcnt(0)")
    srd(A, S_AX, P_AX, 2048 * 1024)
    srd(A, S_B1, P_WQKV, 512 * 3072)
    A("s_mov_b32 s%d, 0" % S_SLI)

def publish_nonce(A):
    A("s_cmp_lg_u32 s2, 0")
    A("s_cbranch_scc1 NONCE_SKIP")
    A("s_cmp_lg_u32 s%d, 0" % S_WAVE)
    A("s_cbranch_scc1 NONCE_SKIP")
    A("s_memrealtime s[%d:%d]" % (S_T0, S_T1))
    A("s_waitcnt lgkmcnt(0)")
    A("s_or_b32 s%d, s%d, 1" % (S_T0, S_T0))
    A("v_mov_b32 v%d, s%d" % (V_T, S_T0))
    A("v_mov_b32 v%d, 0" % (V_T + 1))
    A("s_mov_b64 exec, 1")
    A("global_store_dword v%d, v%d, s[%d:%d] sc0 sc1" % (V_T + 1, V_T, P_DBG, P_DBG + 1))
    A("s_mov_b64 exec, -1")
    A("NONCE_SKIP:")

def get_nonce(A, tag):
    A("s_mov_b32 s%d, 0" % S_SPIN)
    A("v_mov_b32 v%d, 0" % (V_T + 1))
    A("NONCE_L%s:" % tag)
    A("global_load_dword v%d, v%d, s[%d:%d] sc0 sc1" % (V_T, V_T + 1, P_DBG, P_DBG + 1))
    A("s_waitcnt vmcnt(0)")
    A("v_readfirstlane_b32 s%d, v%d" % (S_NONCE, V_T))
    A("s_add_u32 s%d, s%d, 1" % (S_SPIN, S_SPIN))
    A("s_cmp_gt_u32 s%d, 400000" % S_SPIN)
    A("s_cbranch_scc1 NONCE_D%s" % tag)
    A("s_cmp_eq_u32 s%d, 0" % S_NONCE)
    A("s_cbranch_scc1 NONCE_L%s" % tag)
    A("NONCE_D%s:" % tag)

def set_flag(A, tag, base, s_line, s_idx):
    A("s_cmp_lg_u32 s%d, 0" % S_WAVE)
    A("s_cbranch_scc1 FLAG_SKIP%s" % tag)
    A("s_lshl_b32 s%d, s%d, 7" % (S_T0, s_line))
    A("s_lshl_b32 s%d, s%d, 2" % (S_T1, s_idx))
    A("s_add_u32 s%d, s%d, s%d" % (S_T0, S_T0, S_T1))
    A("s_add_u32 s%d, s%d, 0x%x" % (S_T0, S_T0, base))
    A("v_mov_b32 v%d, s%d" % (V_T, S_NONCE))
    A("v_mov_b32 v%d, 0" % (V_T + 1))
    A("s_mov_b64 exec, 1")
    A("buffer_store_dword v%d, v%d, s[%d:%d], s%d offen sc0 sc1" % (V_T, V_T + 1, S_WS, S_WS + 3, S_T0))
    A("s_mov_b64 exec, -1")
    A("FLAG_SKIP%s:" % tag)

def poll_flags(A, tag, base, s_line, n, shift=0):
    t0, t1 = V_T, V_T + 1
    A("s_lshr_b32 s%d, s%d, %d" % (S_T0, s_line, shift))
    A("s_lshl_b32 s%d, s%d, 7" % (S_T0, S_T0))
    A("s_add_u32 s%d, s%d, 0x%x" % (S_T0, S_T0, base))
    A("v_and_b32 v%d, %d, v%d" % (t1, n - 1, V_LANE))
    A("v_lshlrev_b32 v%d, 2, v%d" % (t1, t1))
    A("s_mov_b32 s%d, 0" % S_SPIN)
    A("POLL_L%s:" % tag)
    A("buffer_load_dword v%d, v%d, s[%d:%d], s%d offen sc0 sc1" % (t0, t1, S_WS, S_WS + 3, S_T0))
    A("s_waitcnt vmcnt(0)")
    A("v_cmp_ne_u32 vcc, s%d, v%d" % (S_NONCE, t0))
    A("s_add_u32 s%d, s%d, 1" % (S_SPIN, S_SPIN))
    A("s_cmp_gt_u32 s%d, 400000" % S_SPIN)
    A("s_cbranch_scc1 POLL_D%s" % tag)
    A("s_cmp_eq_u64 vcc, 0")
    A("s_cbranch_scc1 POLL_D%s" % tag)
    A("s_sleep 2")
    A("s_branch POLL_L%s" % tag)
    A("POLL_D%s:" % tag)

def touches(A):
    t0, t1, t2 = V_T, V_T + 1, V_T + 2
    A("s_lshr_b32 s%d, s2, 3" % S_T0)
    A("s_lshl_b32 s%d, s%d, 2" % (S_T0, S_T0))
    A("s_add_u32 s%d, s%d, s%d" % (S_T0, S_T0, S_WAVE))
    A("s_lshl_b32 s%d, s%d, 6" % (S_T0, S_T0))
    A("v_add_u32 v%d, s%d, v%d" % (t0, S_T0, V_LANE))
    A("v_mul_u32_u24 v%d, 20165, v%d" % (t1, t0))
    A("v_lshrrev_b32 v%d, 18, v%d" % (t1, t1))
    A("v_mul_u32_u24 v%d, 13, v%d" % (t2, t1))
    A("v_sub_u32 v%d, v%d, v%d" % (t2, t0, t2))
    A("v_mul_u32_u24 v%d, 2752, v%d" % (t1, t1))
    A("v_lshlrev_b32 v%d, 7, v%d" % (t2, t2))
    A("v_add_u32 v%d, v%d, v%d" % (t1, t1, t2))
    A("s_and_b32 s%d, s2, 1" % S_T0)
    A("s_mul_i32 s%d, s%d, 1536" % (S_T0, S_T0))
    A("buffer_load_dword v%d, v%d, s[%d:%d], s%d offen" % (V_TCH, t1, S_B2, S_B2 + 3, S_T0))
    A("buffer_load_dword v%d, v%d, s[%d:%d], s%d offen" % (V_TCH + 1, t1, S_B3, S_B3 + 3, S_T0))
    A("s_getpc_b64 s[%d:%d]" % (S_T2, S_T3))
    A("CODE_REF:")
    A("s_sub_u32 s%d, s%d, CODE_REF - %s_kernel" % (S_T2, S_T2, NAME))
    A("s_subb_u32 s%d, s%d, 0" % (S_T3, S_T3))
    A("s_lshl_b32 s%d, s%d, 13" % (S_T0, S_WAVE))
    A("v_lshlrev_b32 v%d, 7, v%d" % (t0, V_LANE))
    A("v_add_u32 v%d, s%d, v%d" % (t0, S_T0, t0))
    A("v_min_u32 v%d, CODE_BYTES - 4, v%d" % (t0, t0))
    A("global_load_dword v%d, v%d, s[%d:%d]" % (V_TCH + 2, t0, S_T2, S_T3))

def p1(A):
    A.comment("==== P1: QKV ====")
    t0, t1, t2 = V_T, V_T + 1, V_T + 2
    for g in range(2):
        emit(A, group_setup(1))
        for d in group_dmas(1): emit(A, d)
    for s_ in half(1, 1, 2): emit(A, s_)
    srd(A, S_B2, P_WG, 512 * 2752)
    srd(A, S_B3, P_WU, 512 * 2752)
    srd(A, S_WS, P_WS, WS_SIZE)
    touches(A)
    publish_nonce(A)
    x_dma_offsets(A, V_XO2, 4, 32)
    for e in range(3):
        A("v_add_u32 v%d, %d, v%d" % (t0, 64 * e, V_LANE))
        A("v_mul_u32_u24 v%d, 171, v%d" % (t1, t0))
        A("v_lshrrev_b32 v%d, 11, v%d" % (t1, t1))
        A("v_mul_u32_u24 v%d, 12, v%d" % (t2, t1))
        A("v_sub_u32 v%d, v%d, v%d" % (t2, t0, t2))
        A("s_lshl_b32 s%d, s%d, 4" % (S_T0, S_WAVE))
        A("v_add_u32 v%d, s%d, v%d" % (t1, S_T0, t1))
        A("v_mul_u32_u24 v%d, 2752, v%d" % (t1, t1))
        A("v_lshlrev_b32 v%d, 4, v%d" % (t2, t2))
        A("v_add_u32 v%d, v%d, v%d" % (V_WO2 + e, t1, t2))
    A("s_lshr_b32 s%d, s%d, 1" % (S_T1, S_WAVE))
    x_read_addrs(A, S_T1)
    w_read_base(A, 128, True)
    for r in range(48):
        A("v_mov_b32 v%d, 0" % (V_ACC1 + r))
    A("s_mov_b32 s%d, 0" % S_SLR)
    set_read_addrs(A)
    stamp(A, 1)
    A("s_waitcnt vmcnt(%d)" % (12 + NTOUCH))
    A("s_barrier")
    stamp(A, 2)
    emit(A, p1_read_list(0, V_F)); emit(A, p1_read_list(1, V_F + 16))
    p1_chunk(A, 1, 1, 8 + NTOUCH)
    loop(A, "P1_LA", 4, lambda: p1_chunk(A, 1, 1, 8))
    A("s_cmp_eq_u32 s%d, 15" % S_CG2)
    A("s_cbranch_scc1 P1_NOP2")
    p1_chunk(A, 1, 2, 8)
    loop(A, "P1_LB", 2, lambda: p1_chunk(A, 2, 2, 10))
    A("s_branch P1_DONE")
    A("P1_NOP2:")
    p1_chunk(A, 1, 0, 8)
    loop(A, "P1_LC", 2, lambda: p1_chunk(A, 0, 0, 0))
    A("P1_DONE:")
    A("s_waitcnt lgkmcnt(0)")

def lane_reduce(A, rs, ts, op32, op):
    n = len(rs)
    def pad(k):
        if k > 0: A("s_nop %d" % (k - 1))
    for r, t in zip(rs, ts): A("v_mov_b32 v%d, v%d" % (t, r))
    pad(max(0, 2 - (n - 1)))
    for r, t in zip(rs, ts): A("v_permlane32_swap_b32 v%d, v%d" % (r, t))
    pad(1)
    for r, t in zip(rs, ts): A("%s v%d, v%d, v%d" % (op32, r, r, t))
    for r, t in zip(rs, ts): A("v_mov_b32 v%d, v%d" % (t, r))
    pad(max(0, 2 - (n - 1)))
    for r, t in zip(rs, ts): A("v_permlane16_swap_b32 v%d, v%d" % (r, t))
    pad(1)
    for r, t in zip(rs, ts): A("%s v%d, v%d, v%d" % (op, r, r, t))
    for sh in (8, 4, 2, 1):
        pad(max(0, 2 - (n - 1)))
        for r in rs: A("%s_dpp v%d, v%d, v%d row_ror:%d row_mask:0xf bank_mask:0xf" % (op, r, r, r, sh))

def p1_epilogue(A):
    A.comment("P1 epilogue")
    PQ, PK, PV = 144, 152, 160
    A("s_mov_b32 s%d, 0x%x" % (S_C, f32bits(QSCALE)))
    A("s_mov_b32 s%d, 0x%x" % (S_C + 1, f32bits(QSCALE)))
    A("s_and_b32 s%d, s%d, 1" % (S_T0, S_WAVE))
    A("s_lshl_b32 s%d, s%d, 1" % (S_T0, S_T0))
    A("s_lshl_b32 s%d, s%d, 2" % (S_T1, S_CG1))
    A("s_add_u32 s%d, s%d, s%d" % (S_T0, S_T0, S_T1))
    A("s_lshr_b32 s%d, s%d, 1" % (S_T1, S_WAVE))
    A("s_lshl_b32 s%d, s%d, 1" % (S_T2, S_RB1))
    A("s_add_u32 s%d, s%d, s%d" % (S_T1, S_T1, S_T2))
    A("s_lshl_b32 s%d, s%d, 16" % (S_T2, S_T0))
    A("s_lshl_b32 s%d, s%d, 10" % (S_T3, S_T1))
    A("s_add_u32 s%d, s%d, s%d" % (S_T2, S_T2, S_T3))
    t0, t1 = V_T, V_T + 1
    A("v_lshrrev_b32 v%d, 4, v%d" % (t0, V_LANE))
    A("v_and_b32 v%d, 1, v%d" % (t0, t0))
    A("v_lshlrev_b32 v%d, 16, v%d" % (t0, t0))
    A("v_lshrrev_b32 v%d, 5, v%d" % (t1, V_LANE))
    A("v_lshlrev_b32 v%d, 8, v%d" % (t1, t1))
    A("v_add_u32 v%d, v%d, v%d" % (t0, t0, t1))
    A("v_and_b32 v%d, 15, v%d" % (t1, V_LANE))
    A("v_lshlrev_b32 v%d, 4, v%d" % (t1, t1))
    A("v_add_u32 v%d, v%d, v%d" % (t0, t0, t1))
    A("s_nop 3")
    for p in range(8):
        A("v_cvt_pk_bf16_f32 v%d, v%d, v%d" % (PK + p, V_ACC1 + 16 + 2 * p, V_ACC1 + 17 + 2 * p))
    A("s_add_u32 s%d, s%d, 0x%x" % (S_C + 2, S_T2, WS_KF))
    A("s_add_u32 s%d, s%d, 0x%x" % (S_C + 3, S_T2, WS_KF + 65536))
    A("buffer_store_dwordx4 %s, v%d, s[%d:%d], s%d offen%s" % (vr(PK, 4), V_L16, S_WS, S_WS + 3, S_C + 2, SC()))
    A("buffer_store_dwordx4 %s, v%d, s[%d:%d], s%d offen%s" % (vr(PK + 4, 4), V_L16, S_WS, S_WS + 3, S_C + 3, SC()))
    for p in range(8):
        A("v_cvt_pk_bf16_f32 v%d, v%d, v%d" % (PV + p, V_ACC1 + 32 + 2 * p, V_ACC1 + 33 + 2 * p))
    A("s_add_u32 s%d, s%d, 0x%x" % (S_C + 2, S_T2, WS_VF))
    A("buffer_store_dwordx4 %s, v%d, s[%d:%d], s%d offen%s" % (vr(PV, 4), t0, S_WS, S_WS + 3, S_C + 2, SC()))
    A("buffer_store_dwordx4 %s, v%d, s[%d:%d], s%d offen offset:512%s" % (vr(PV + 4, 4), t0, S_WS, S_WS + 3, S_C + 2, SC()))
    for p in range(8):
        A("v_pk_mul_f32 %s, %s, %s" % (vr(V_ACC1 + 2 * p, 2), vr(V_ACC1 + 2 * p, 2), sr(S_C, 2)))
    for p in range(8):
        A("v_cvt_pk_bf16_f32 v%d, v%d, v%d" % (PQ + p, V_ACC1 + 2 * p, V_ACC1 + 2 * p + 1))
    A("s_add_u32 s%d, s%d, 0x%x" % (S_C + 2, S_T2, WS_QF))
    A("s_add_u32 s%d, s%d, 0x%x" % (S_C + 3, S_T2, WS_QF + 65536))
    A("buffer_store_dwordx4 %s, v%d, s[%d:%d], s%d offen%s" % (vr(PQ, 4), V_L16, S_WS, S_WS + 3, S_C + 2, SC()))
    A("buffer_store_dwordx4 %s, v%d, s[%d:%d], s%d offen%s" % (vr(PQ + 4, 4), V_L16, S_WS, S_WS + 3, S_C + 3, SC()))
    N = [168, 169, 170, 171]; T = [172, 173, 174, 175]
    src = [PQ, PQ + 4, PK, PK + 4]
    for p in range(4):
        for x in range(4):
            A("v_dot2_f32_bf16 v%d, v%d, v%d, %s" % (N[x], src[x] + p, src[x] + p, "0" if p == 0 else "v%d" % N[x]))
    A("s_nop 2")
    lane_reduce(A, N, T, "v_add_f32", "v_max_f32")
    A("s_lshl_b32 s%d, s%d, 8" % (S_T2, S_T0))
    A("s_lshl_b32 s%d, s%d, 2" % (S_T3, S_T1))
    A("s_add_u32 s%d, s%d, s%d" % (S_T2, S_T2, S_T3))
    A("s_add_u32 s%d, s%d, 0x%x" % (S_T2, S_T2, WS_NQ))
    A("v_mov_b32 v%d, 0" % t0)
    A("s_mov_b64 exec, 1")
    A("buffer_store_dword v%d, v%d, s[%d:%d], s%d offen%s" % (N[0], t0, S_WS, S_WS + 3, S_T2, SC()))
    A("buffer_store_dword v%d, v%d, s[%d:%d], s%d offen offset:256%s" % (N[1], t0, S_WS, S_WS + 3, S_T2, SC()))
    A("s_add_u32 s%d, s%d, 0x%x" % (S_T2, S_T2, WS_NK - WS_NQ))
    A("buffer_store_dword v%d, v%d, s[%d:%d], s%d offen%s" % (N[2], t0, S_WS, S_WS + 3, S_T2, SC()))
    A("buffer_store_dword v%d, v%d, s[%d:%d], s%d offen offset:256%s" % (N[3], t0, S_WS, S_WS + 3, S_T2, SC()))
    A("s_mov_b64 exec, -1")

def gate(A):
    A.comment("gate")
    srd(A, S_B1, P_GW, 1024)
    G = 32; GW = 64; N = list(range(68, 76)); T = list(range(76, 84))
    A("buffer_load_dwordx4 %s, v%d, s[%d:%d], 0 offen" % (vr(GW, 4), V_L16, S_B1, S_B1 + 3))
    A("s_lshl_b32 s%d, s%d, 7" % (S_T0, S_RB2))
    A("s_lshl_b32 s%d, s%d, 5" % (S_T1, S_WAVE))
    A("s_add_u32 s%d, s%d, s%d" % (S_T0, S_T0, S_T1))
    A("s_mov_b32 s%d, 0x%x" % (S_C, f32bits(-1.4426950408889634)))
    A("s_mov_b32 s%d, 0" % S_I)
    A("GATE_L:")
    A("s_lshl_b32 s%d, s%d, 10" % (S_T1, S_T0))
    for r in range(8):
        A("buffer_load_dwordx4 %s, v%d, s[%d:%d], s%d offen" % (vr(G + 4 * r, 4), V_L16, S_AX, S_AX + 3, S_T1))
        A("s_add_u32 s%d, s%d, 1024" % (S_T1, S_T1))
    A("s_waitcnt vmcnt(0)")
    for p in range(4):
        for x in range(8):
            A("v_dot2_f32_bf16 v%d, v%d, v%d, %s" % (N[x], G + 4 * x + p, GW + p, "0" if p == 0 else "v%d" % N[x]))
    A("s_nop 2")
    lane_reduce(A, N, T, "v_add_f32", "v_add_f32")
    for x in range(8): A("v_mul_f32 v%d, s%d, v%d" % (N[x], S_C, N[x]))
    for x in range(8): A("v_exp_f32 v%d, v%d" % (N[x], N[x]))
    for x in range(8): A("v_add_f32 v%d, 1.0, v%d" % (N[x], N[x]))
    for x in range(8): A("v_rcp_f32 v%d, v%d" % (N[x], N[x]))
    A("s_lshl_b32 s%d, s%d, 2" % (S_T1, S_T0))
    A("s_add_u32 s%d, s%d, 0x%x" % (S_T1, S_T1, WS_G))
    A("v_mov_b32 v%d, 0" % V_T)
    A("s_mov_b64 exec, 1")
    for x in range(8):
        A("buffer_store_dword v%d, v%d, s[%d:%d], s%d offen offset:%d%s" % (N[x], V_T, S_WS, S_WS + 3, S_T1, 4 * x, SC()))
    A("s_mov_b64 exec, -1")
    A("s_add_u32 s%d, s%d, 8" % (S_T0, S_T0))
    A("s_add_u32 s%d, s%d, 1" % (S_I, S_I))
    A("s_cmp_lt_u32 s%d, 4" % S_I)
    A("s_cbranch_scc1 GATE_L")

P2_X0, P2_X1, P2_W = 32, 36, 40
def p2_read_list(hs):
    s_, mat = hs >> 1, hs & 1
    L = []
    if mat == 0:
        L.append("ds_read_b128 %s, v%d" % (vr(P2_X0 if (s_ & 1) == 0 else P2_X1, 4), V_XR + s_))
    F = P2_W + 12 * (hs & 3)
    for u in range(3):
        for q in range(2):
            L.append("ds_read_b64_tr_b16 %s, v%d offset:%d" % (vr(F + 4 * u + 2 * q, 2), V_WR, 16384 + mat * 12288 + s_ * 3072 + q * 768 + u * 64))
    return L

def p2_mfma_list(hs):
    s_, mat = hs >> 1, hs & 1
    X = P2_X0 if (s_ & 1) == 0 else P2_X1
    F = P2_W + 12 * (hs & 3)
    return [mfma(vr(V_ACC2 + 48 * mat + 16 * u, 16), vr(F + 4 * u, 4), vr(X, 4), vr(V_ACC2 + 48 * mat + 16 * u, 16)) for u in range(3)]

def p2_chunk(A, h0, h1, vm, after_bar=None):
    H = half(h0, 2, 4) + half(h1, 1, 4)
    for hs in range(8):
        if hs == 4 and vm is not None:
            A("s_waitcnt vmcnt(%d)" % vm)
            A("s_barrier")
            if after_bar: after_bar()
        if hs == 6:
            adv_slot(A, S_SLR)
            set_read_addrs(A)
        A("s_waitcnt lgkmcnt(%d)" % (7 if ((hs + 1) & 1) == 0 else 6))
        interleave(A, p2_mfma_list(hs), p2_read_list((hs + 2) & 7), H[hs])

def p2(A):
    A.comment("==== P2: FFN up ====")
    x_read_addrs(A, S_WAVE)
    w_read_base(A, 192, False)
    for r in range(96):
        A("v_mov_b32 v%d, 0" % (V_ACC2 + r))
    set_read_addrs(A)
    emit(A, p2_read_list(0)); emit(A, p2_read_list(1))
    p2_chunk(A, 2, 2, 5, after_bar=lambda: set_flag(A, "1a", WS_F1, S_CG1, S_RB1))
    loop(A, "P2_LA", 4, lambda: p2_chunk(A, 2, 2, 10))
    p2_chunk(A, 2, 0, 10)
    p2_chunk(A, 0, 0, 0)
    p2_chunk(A, 0, 0, None)
    A("s_waitcnt lgkmcnt(0)")

def p2_epilogue(A):
    A.comment("P2 epilogue: GEGLU")
    c1 = -2.0 * 0.7978845608028654 * 1.4426950408889634
    c2 = c1 * 0.044715
    A("s_mov_b32 s%d, 0x%x" % (S_C, f32bits(c2)))
    A("s_mov_b32 s%d, 0x%x" % (S_C + 1, f32bits(c2)))
    A("s_mov_b32 s%d, 1.0" % (S_C + 2))
    A("s_mov_b32 s%d, 1.0" % (S_C + 3))
    C1 = 12
    A("v_mov_b32 v%d, 0x%x" % (C1, f32bits(c1)))
    A("v_mov_b32 v%d, 0x%x" % (C1 + 1, f32bits(c1)))
    A("s_lshl_b32 s%d, s%d, 2" % (S_T0, S_RB2))
    A("s_add_u32 s%d, s%d, s%d" % (S_T0, S_T0, S_WAVE))
    A("s_mul_i32 s%d, s%d, 86" % (S_T0, S_T0))
    A("s_mul_i32 s%d, s%d, 6" % (S_T1, S_CG2))
    A("s_add_u32 s%d, s%d, s%d" % (S_T0, S_T0, S_T1))
    A("s_lshl_b32 s%d, s%d, 10" % (S_T0, S_T0))
    A("s_add_u32 s%d, s%d, 0x%x" % (S_T0, S_T0, WS_HF))
    T = 32
    for u in range(3):
        if u == 1:
            A("s_cmp_eq_u32 s%d, 14" % S_CG2)
            A("s_cbranch_scc1 P2_EPI_DONE")
        G = V_ACC2 + 16 * u; U = V_ACC2 + 48 + 16 * u
        for grp in range(2):
            prs = [G + 8 * grp + 2 * i for i in range(4)]
            tm = [T + 2 * i for i in range(4)]
            for g, t in zip(prs, tm): A("v_pk_mul_f32 %s, %s, %s" % (vr(t, 2), vr(g, 2), vr(g, 2)))
            for g, t in zip(prs, tm): A("v_pk_fma_f32 %s, %s, %s, %s" % (vr(t, 2), vr(t, 2), sr(S_C, 2), vr(C1, 2)))
            for g, t in zip(prs, tm): A("v_pk_mul_f32 %s, %s, %s" % (vr(t, 2), vr(t, 2), vr(g, 2)))
            for g, t in zip(prs, tm):
                A("v_exp_f32 v%d, v%d" % (t, t)); A("v_exp_f32 v%d, v%d" % (t + 1, t + 1))
            for g, t in zip(prs, tm): A("v_pk_add_f32 %s, %s, %s" % (vr(t, 2), vr(t, 2), sr(S_C + 2, 2)))
            for g, t in zip(prs, tm):
                A("v_rcp_f32 v%d, v%d" % (t, t)); A("v_rcp_f32 v%d, v%d" % (t + 1, t + 1))
            for g, t in zip(prs, tm): A("v_pk_mul_f32 %s, %s, %s" % (vr(g, 2), vr(g, 2), vr(U + (g - G), 2)))
            for g, t in zip(prs, tm): A("v_pk_mul_f32 %s, %s, %s" % (vr(t, 2), vr(t, 2), vr(g, 2)))
            P = 48 + 4 * grp + 8 * (u & 1)
            for i, t in enumerate(tm): A("v_cvt_pk_bf16_f32 v%d, v%d, v%d" % (P + i, t, t + 1))
            A("buffer_store_dwordx4 %s, v%d, s[%d:%d], s%d offen offset:%d%s" % (vr(P, 4), V_L16, S_WS, S_WS + 3, S_T0, grp * 1024, SC()))
        A("s_add_u32 s%d, s%d, 2048" % (S_T0, S_T0))
    A("P2_EPI_DONE:")


V_FL = 12
V_VOFF = 15
V_S = [16, 32]
V_C = 48
V_P = 64
V_Q, V_QN = 72, 76
V_M = 80
A_K, A_V, A_O = 0, 64, 192
OSLOT = 2304
L_MX = 4 * 9 * OSLOT
L_W = L_MX + 8192

def tile(A, t, extra=None):
    S = V_S[t & 1]; Sp = V_S[(t + 1) & 1]
    e = lambda i: "v_exp_f32 v%d, v%d" % (S + i, S + i)
    c = lambda j: "v_cvt_pk_bf16_f32 v%d, v%d, v%d" % (V_P + j, S + 2 * j, S + 2 * j + 1)
    c7p = "v_cvt_pk_bf16_f32 v%d, v%d, v%d" % (V_P + 7, Sp + 14, Sp + 15)
    tp = (t - 1) & 15
    pvb = mfma(ar(A_O, 16), ar(A_V + 4 * (2 * tp + 1), 4), vr(V_P + 4, 4), ar(A_O, 16))
    pva = mfma(ar(A_O, 16), ar(A_V + 4 * (2 * t), 4), vr(V_P, 4), "0" if t == 0 else ar(A_O, 16))
    tn = (t + 1) & 15
    qk = mfma(vr(Sp, 16), ar(A_K + 4 * tn, 4), vr(V_Q, 4), vr(V_C, 16))
    seq = [e(0), c7p, e(1), e(2), pvb, c(0), e(3), e(4), c(1), qk, e(5), e(6), c(2), e(7), e(8), c(3), e(9), e(10), pva,
           c(4), e(11), e(12), c(5), "X", e(13), e(14), c(6), e(15)]
    extra = extra or {}
    for i, ins in enumerate(seq):
        for l in extra.get(i, []): A(l)
        if ins == "X":
            for l in extra.get("x", []): A(l)
        else:
            A(ins)

def flush_lines():
    return ["ds_write_b128 v%d, %s" % (V_FL, ar(A_O, 4)),
            "ds_write_b128 v%d, %s offset:1024" % (V_FL, ar(A_O + 4, 4)),
            "ds_write_b32 v%d, %s offset:2048" % (V_FL + 2, ar(A_O + 8, 1))]

def attn_loads(A):
    t0, t1 = V_T, V_T + 1
    sc = SC()
    A("v_lshlrev_b32 v%d, 2, v%d" % (t0, V_LANE))
    A("s_lshl_b32 s%d, s%d, 8" % (S_T0, S_HEAD))
    A("s_add_u32 s%d, s%d, 0x%x" % (S_T1, S_T0, WS_NK))
    A("buffer_load_dword v%d, v%d, s[%d:%d], s%d offen%s" % (V_M, t0, S_WS, S_WS + 3, S_T1, sc))
    A("v_and_b32 v%d, 7, v%d" % (t1, V_LANE))
    A("v_lshlrev_b32 v%d, 2, v%d" % (t1, t1))
    A("s_lshl_b32 s%d, s%d, 5" % (S_T2, S_QB))
    A("s_add_u32 s%d, s%d, s%d" % (S_T1, S_T0, S_T2))
    A("s_add_u32 s%d, s%d, 0x%x" % (S_T1, S_T1, WS_NQ))
    A("buffer_load_dword v%d, v%d, s[%d:%d], s%d offen%s" % (V_M + 1, t1, S_WS, S_WS + 3, S_T1, sc))
    A("s_lshl_b32 s%d, s%d, 16" % (S_T0, S_HEAD))
    A("s_lshl_b32 s%d, s%d, 13" % (S_T1, S_QB))
    A("s_add_u32 s%d, s%d, s%d" % (S_QOFF, S_T0, S_T1))
    A("s_add_u32 s%d, s%d, 0x%x" % (S_QOFF, S_QOFF, WS_QF))
    A("buffer_load_dwordx4 %s, v%d, s[%d:%d], s%d offen%s" % (vr(V_Q, 4), V_L16, S_WS, S_WS + 3, S_QOFF, sc))
    A("s_add_u32 s%d, s%d, 1024" % (S_QOFF, S_QOFF))
    A("s_lshl_b32 s%d, s%d, 14" % (S_T1, S_WAVE))
    A("s_add_u32 s%d, s%d, s%d" % (S_T1, S_T1, S_T0))
    A("s_add_u32 s%d, s%d, 0x%x" % (S_T2, S_T1, WS_KF))
    for i in range(16):
        A("buffer_load_dwordx4 %s, v%d, s[%d:%d], s%d offen offset:%d%s" % (ar(A_K + 4 * i, 4), V_L16, S_WS, S_WS + 3, S_T2, (i & 3) * 1024, sc))
        if (i & 3) == 3 and i < 15: A("s_add_u32 s%d, s%d, 4096" % (S_T2, S_T2))
    Z = V_M + 4
    for r in range(4): A("v_mov_b32 v%d, 0" % (Z + r))
    A("v_mov_b32 v%d, 0x3f803f80" % (t0))
    A("s_nop 0")
    for r in range(16): A("v_accvgpr_write_b32 a%d, v%d" % (A_V + r, t0))
    A("s_nop 1")
    for g in range(1, 8):
        A(mfma(ar(A_V + 16 * g, 16), vr(Z, 4), vr(Z, 4), ar(A_V, 16)))
    A("v_lshrrev_b32 v%d, 5, v%d" % (t0, V_LANE))
    A("v_lshlrev_b32 v%d, 8, v%d" % (t0, t0))
    A("v_and_b32 v%d, 15, v%d" % (t1, V_LANE))
    A("v_lshlrev_b32 v%d, 4, v%d" % (t1, t1))
    A("v_add_u32 v%d, v%d, v%d" % (V_VOFF, t0, t1))
    A("s_add_u32 s%d, s%d, 0x%x" % (S_T2, S_T1, WS_VF))
    A("s_mov_b32 s%d, 0x0000ffff" % S_EXM)
    A("s_mov_b32 s%d, 0x0000ffff" % (S_EXM + 1))
    A("s_nop 7")
    A("s_mov_b64 exec, s[%d:%d]" % (S_EXM, S_EXM + 1))
    for g in range(32):
        A("buffer_load_dwordx4 %s, v%d, s[%d:%d], s%d offen offset:%d%s" % (ar(A_V + 4 * g, 4), V_VOFF, S_WS, S_WS + 3, S_T2, (g & 7) * 512, sc))
        if (g & 7) == 7 and g < 31: A("s_add_u32 s%d, s%d, 4096" % (S_T2, S_T2))
    A("s_mov_b64 exec, -1")

def bound(A):
    lane_reduce(A, [V_M, V_M + 1], [V_M + 2, V_M + 3], "v_max_f32", "v_max_f32")
    A("v_mul_f32 v%d, v%d, v%d" % (V_M, V_M, V_M + 1))
    A("v_sqrt_f32 v%d, v%d" % (V_M, V_M))
    A("v_mov_b32 v%d, 0x42400000" % (V_M + 1))
    A("v_cmp_nle_f32 vcc, v%d, v%d" % (V_M, V_M + 1))
    A("v_sub_f32 v%d, 0, v%d" % (V_M, V_M))
    A("s_nop 1")
    A("s_cmp_lg_u64 vcc, 0")
    A("s_cselect_b32 s%d, 1, 0" % S_SLOW)
    for r in range(16): A("v_mov_b32 v%d, v%d" % (V_C + r, V_M))

def slow_set_c(A, tag):
    A("s_cmp_eq_u32 s%d, 0" % S_SLOW)
    A("s_cbranch_scc1 SLOWC_%s" % tag)
    for w in range(4):
        A("ds_read_b32 v%d, v%d offset:%d" % (V_M + 8 + w, V_M + 4, w * 2048))
    A("s_waitcnt lgkmcnt(0)")
    A("v_max_f32 v%d, v%d, v%d" % (V_M + 8, V_M + 8, V_M + 9))
    A("v_max_f32 v%d, v%d, v%d" % (V_M + 10, V_M + 10, V_M + 11))
    A("v_max_f32 v%d, v%d, v%d" % (V_M + 8, V_M + 8, V_M + 10))
    A("v_sub_f32 v%d, 0, v%d" % (V_M + 8, V_M + 8))
    A("v_add_u32 v%d, 256, v%d" % (V_M + 4, V_M + 4))
    A("s_nop 7")
    for r in range(16): A("v_mov_b32 v%d, v%d" % (V_C + r, V_M + 8))
    A("s_nop 1")
    A("SLOWC_%s:" % tag)

def slow_prepass(A):
    A("s_cmp_eq_u32 s%d, 0" % S_SLOW)
    A("s_cbranch_scc1 SLOWP_END")
    S0, S1 = V_S
    A("s_sub_u32 s%d, s%d, 1024" % (S_T3, S_QOFF))
    A("s_lshl_b32 s%d, s%d, 11" % (S_T0, S_WAVE))
    A("v_lshlrev_b32 v%d, 2, v%d" % (V_M + 5, V_LANE))
    A("v_add_u32 v%d, s%d, v%d" % (V_M + 5, S_T0, V_M + 5))
    A("v_add_u32 v%d, %d, v%d" % (V_M + 5, L_MX, V_M + 5))
    A("s_mov_b32 s%d, 0" % S_I)
    A("SLOWP_L:")
    A("buffer_load_dwordx4 %s, v%d, s[%d:%d], s%d offen%s" % (vr(V_QN, 4), V_L16, S_WS, S_WS + 3, S_T3, SC()))
    A("s_add_u32 s%d, s%d, 1024" % (S_T3, S_T3))
    A("v_mov_b32 v%d, 0xff800000" % (V_M + 6))
    A("s_waitcnt vmcnt(0)")
    for t in range(16):
        A(mfma(vr(S0, 16), ar(A_K + 4 * t, 4), vr(V_QN, 4), "0"))
        A("s_nop 15")
        for r in range(0, 16, 2):
            A("v_max3_f32 v%d, v%d, v%d, v%d" % (V_M + 6, V_M + 6, S0 + r, S0 + r + 1))
        A("s_nop 1")
    A("v_mov_b32 v%d, v%d" % (V_M + 7, V_M + 6))
    A("s_nop 1")
    A("v_permlane32_swap_b32 v%d, v%d" % (V_M + 6, V_M + 7))
    A("s_nop 1")
    A("v_max_f32 v%d, v%d, v%d" % (V_M + 6, V_M + 6, V_M + 7))
    A("ds_write_b32 v%d, v%d" % (V_M + 5, V_M + 6))
    A("v_add_u32 v%d, 256, v%d" % (V_M + 5, V_M + 5))
    A("s_add_u32 s%d, s%d, 1" % (S_I, S_I))
    A("s_cmp_lt_u32 s%d, 8" % S_I)
    A("s_cbranch_scc1 SLOWP_L")
    A("s_waitcnt lgkmcnt(0)")
    A("s_barrier")
    A("v_lshlrev_b32 v%d, 2, v%d" % (V_M + 4, V_LANE))
    A("v_add_u32 v%d, %d, v%d" % (V_M + 4, L_MX, V_M + 4))
    slow_set_c(A, "P")
    A("SLOWP_END:")

def attn_iter(A, shadow=None):
    for t in range(16):
        ex = {}
        def add(k, lines): ex.setdefault(k, []).extend(lines)
        if t == 0:
            add(17, flush_lines() + ["v_add_u32 v%d, %d, v%d" % (V_FL, OSLOT, V_FL), "v_add_u32 v%d, %d, v%d" % (V_FL + 2, OSLOT, V_FL + 2)])
        if shadow:
            for k, lines in shadow(t).items(): add(k, lines)
        if t == 15:
            pass
        if t == 15:
            A.pending = True
        if t == 15:
            tile15(A, ex)
        else:
            tile(A, t, ex)

def tile15(A, ex):
    ex.setdefault(5, []).extend(["v_mov_b32 v%d, v%d" % (V_Q + r, V_QN + r) for r in range(4)])
    tile(A, 15, ex)

def attn_main(A, qwait_plain):
    pass

def attn_epilogue(A):
    t0 = V_T
    R = 16
    for k in range(2):
        A("s_lshl_b32 s%d, s%d, 1" % (S_T0, S_WAVE))
        A("s_add_u32 s%d, s%d, %d" % (S_T0, S_T0, k + 1))
        A("s_mul_i32 s%d, s%d, %d" % (S_T0, S_T0, OSLOT))
        A("v_add_u32 v%d, s%d, v%d" % (t0, S_T0, V_L16))
        A("v_lshlrev_b32 v%d, 2, v%d" % (t0 + 1, V_LANE))
        A("v_add_u32 v%d, s%d, v%d" % (t0 + 1, S_T0, t0 + 1))
        for w in range(4):
            b = R + 12 * w
            A("ds_read_b128 %s, v%d offset:%d" % (vr(b, 4), t0, w * 9 * OSLOT))
            A("ds_read_b128 %s, v%d offset:%d" % (vr(b + 4, 4), t0, w * 9 * OSLOT + 1024))
            A("ds_read_b32 v%d, v%d offset:%d" % (b + 8, t0 + 1, w * 9 * OSLOT + 2048))
        A("s_waitcnt lgkmcnt(0)")
        for r in range(9):
            A("v_add_f32 v%d, v%d, v%d" % (R + r, R + r, R + 12 + r))
            A("v_add_f32 v%d, v%d, v%d" % (R + 24 + r, R + 24 + r, R + 36 + r))
        for r in range(9):
            A("v_add_f32 v%d, v%d, v%d" % (R + r, R + r, R + 24 + r))
        A("v_rcp_f32 v%d, v%d" % (R + 8, R + 8))
        A("s_nop 0")
        for r in range(8):
            A("v_mul_f32 v%d, v%d, v%d" % (R + r, R + r, R + 8))
        P = 64 + 4 * k
        for p in range(4):
            A("v_cvt_pk_bf16_f32 v%d, v%d, v%d" % (P + p, R + 2 * p, R + 2 * p + 1))
        A("s_lshl_b32 s%d, s%d, 3" % (S_T0, S_QB))
        A("s_lshl_b32 s%d, s%d, 1" % (S_T1, S_WAVE))
        A("s_add_u32 s%d, s%d, s%d" % (S_T0, S_T0, S_T1))
        A("s_add_u32 s%d, s%d, %d" % (S_T0, S_T0, k))
        A("s_lshl_b32 s%d, s%d, 5" % (S_T0, S_T0))
        A("s_add_u32 s%d, s%d, s%d" % (S_T0, S_T0, S_HEAD))
        A("s_lshl_b32 s%d, s%d, 10" % (S_T0, S_T0))
        A("s_add_u32 s%d, s%d, 0x%x" % (S_T0, S_T0, WS_OF))
        A("buffer_store_dwordx4 %s, v%d, s[%d:%d], s%d offen%s" % (vr(P, 4), V_L16, S_WS, S_WS + 3, S_T0, SC()))

V_DO = 8
V_RA = 9
V_G = 84
V_ACT = 96
V_WF = 128
V_ACCB = 144
V_ACT8 = 16

def tail_setup(A):
    t0, t1, t2 = V_T, V_T + 1, V_T + 2
    A("s_and_b32 s%d, s2, 7" % S_T0)
    A("s_lshr_b32 s%d, s2, 3" % S_T1)
    A("s_lshl_b32 s%d, s%d, 2" % (S_RB3, S_T0))
    A("s_and_b32 s%d, s%d, 3" % (S_T2, S_T1))
    A("s_add_u32 s%d, s%d, s%d" % (S_RB3, S_RB3, S_T2))
    A("s_lshr_b32 s%d, s%d, 2" % (S_CB3, S_T1))
    srd(A, S_B1, P_WD, 1376 * 1024)
    srd(A, S_B2, P_WO, 512 * 1024)
    srd(A, S_B3, P_OUT, 2048 * 1024)
    A("v_lshrrev_b32 v%d, 3, v%d" % (t0, V_LANE))
    A("v_lshlrev_b32 v%d, 10, v%d" % (t0, t0))
    A("v_lshrrev_b32 v%d, 4, v%d" % (t1, V_LANE))
    A("v_and_b32 v%d, 1, v%d" % (t1, t1))
    A("v_lshlrev_b32 v%d, 2, v%d" % (t1, t1))
    A("v_and_b32 v%d, 7, v%d" % (t2, V_LANE))
    A("v_xor_b32 v%d, v%d, v%d" % (t1, t1, t2))
    A("v_lshlrev_b32 v%d, 4, v%d" % (t1, t1))
    A("v_add_u32 v%d, v%d, v%d" % (V_DO, t0, t1))
    A("s_lshl_b32 s%d, s%d, 14" % (S_LB, S_WAVE))
    A("s_add_u32 s%d, s%d, %d" % (S_LB, S_LB, L_W))
    A("v_and_b32 v%d, 15, v%d" % (t0, V_LANE))
    A("v_lshrrev_b32 v%d, 2, v%d" % (t0, t0))
    A("v_lshrrev_b32 v%d, 5, v%d" % (t1, V_LANE))
    A("v_lshlrev_b32 v%d, 2, v%d" % (t1, t1))
    A("v_add_u32 v%d, v%d, v%d" % (t1, t1, t0))
    A("v_lshlrev_b32 v%d, 7, v%d" % (t1, t1))
    A("v_lshrrev_b32 v%d, 1, v%d" % (t0, t0))
    A("v_lshlrev_b32 v%d, 6, v%d" % (t0, t0))
    A("v_add_u32 v%d, v%d, v%d" % (t1, t1, t0))
    A("v_lshrrev_b32 v%d, 4, v%d" % (t0, V_LANE))
    A("v_and_b32 v%d, 1, v%d" % (t0, t0))
    A("v_lshlrev_b32 v%d, 5, v%d" % (t0, t0))
    A("v_add_u32 v%d, v%d, v%d" % (t1, t1, t0))
    A("v_and_b32 v%d, 3, v%d" % (t0, V_LANE))
    A("v_lshlrev_b32 v%d, 3, v%d" % (t0, t0))
    A("v_add_u32 v%d, v%d, v%d" % (t1, t1, t0))
    A("v_add_u32 v%d, s%d, v%d" % (V_RA, S_LB, t1))
    A("v_xor_b32 v%d, 64, v%d" % (V_RA + 1, V_RA))
    A("s_lshl_b32 s%d, s%d, 7" % (S_WOFF, S_CB3))
    for r in range(64): A("v_mov_b32 v%d, 0" % (V_ACCB + r))

def down_params(A):
    A("s_lshl_b32 s%d, s%d, 1" % (S_T0, S_RB3))
    A("s_mul_i32 s%d, s%d, %d" % (S_A0, S_T0, 86 * 1024))
    A("s_add_u32 s%d, s%d, 0x%x" % (S_A0, S_A0, WS_HF))
    A("s_add_u32 s%d, s%d, %d" % (S_A1, S_A0, 86 * 1024))
    A("s_mul_i32 s%d, s%d, 22" % (S_STEP, S_WAVE))
    A("s_add_u32 s%d, s%d, 22" % (S_END, S_STEP))
    A("s_min_u32 s%d, s%d, 86" % (S_END, S_END))

def step_w_dma(s_w, stepreg, slot_off):
    return ["s_lshl_b32 s%d, s%d, 14" % (S_T1, stepreg), "s_add_u32 s%d, s%d, s%d" % (S_T1, S_T1, S_WOFF),
            "s_cmp_lt_u32 s%d, s%d" % (stepreg, S_END), "s_cselect_b32 s%d, s%d, 0x40000000" % (S_T1, S_T1),
            "s_add_u32 s%d, s%d, 8192" % (S_T2, S_T1),
            "s_add_u32 m0, s%d, %d" % (S_LB, slot_off), "s_nop 0",
            "buffer_load_dwordx4 v%d, s[%d:%d], s%d offen lds" % (V_DO, s_w, s_w + 3, S_T1),
            "s_add_u32 m0, s%d, %d" % (S_LB, slot_off + 1024), "s_nop 0",
            "buffer_load_dwordx4 v%d, s[%d:%d], s%d offen lds" % (V_DO, s_w, s_w + 3, S_T2)]

def step_act(stepreg, nact, dst, agpr=False):
    R = ar if agpr else vr
    return ["s_min_u32 s%d, s%d, %d" % (S_T1, stepreg, nact - 1), "s_lshl_b32 s%d, s%d, 10" % (S_T1, S_T1),
            "s_add_u32 s%d, s%d, s%d" % (S_T2, S_T1, S_A0), "s_add_u32 s%d, s%d, s%d" % (S_T3, S_T1, S_A1),
            "buffer_load_dwordx4 %s, v%d, s[%d:%d], s%d offen%s" % (R(dst, 4), V_L16, S_WS, S_WS + 3, S_T2, SC()),
            "buffer_load_dwordx4 %s, v%d, s[%d:%d], s%d offen%s" % (R(dst + 4, 4), V_L16, S_WS, S_WS + 3, S_T3, SC())]

def w_reads(i_slot, F):
    return ["ds_read_b64_tr_b16 %s, v%d offset:%d" % (vr(F + 4 * u + 2 * q, 2), V_RA + u, i_slot * 2048 + q * 1024) for u in range(2) for q in range(2)]

def batch8(A, s_w, nact, acc, accR):
    for i in range(8):
        A("s_add_u32 s%d, s%d, %d" % (S_T0, S_STEP, i))
        emit(A, step_act(S_T0, nact, V_ACT8 + 8 * i))
        emit(A, step_w_dma(s_w, S_T0, i * 2048))
    A("s_waitcnt vmcnt(28)")
    emit(A, w_reads(0, V_WF))
    for i in range(8):
        if i < 7:
            A("s_waitcnt vmcnt(%d)" % (4 * (6 - i)))
            emit(A, w_reads(i + 1, V_WF + 8 * ((i + 1) & 1)))
            A("s_waitcnt lgkmcnt(4)")
        else:
            A("s_waitcnt lgkmcnt(0)")
        F = V_WF + 8 * (i & 1)
        for u in range(2):
            for mt in range(2):
                d = accR(acc + 16 * (2 * u + mt), 16)
                A(mfma(d, vr(F + 4 * u, 4), vr(V_ACT8 + 8 * i + 4 * mt, 4), d))
    A("s_add_u32 s%d, s%d, 8" % (S_STEP, S_STEP))

A_ACCA = 0
def final(A):
    t0, t1 = V_T, V_T + 1
    A("v_sub_f32 v%d, 1.0, v%d" % (V_G + 2, V_G))
    A("v_sub_f32 v%d, 1.0, v%d" % (V_G + 3, V_G + 1))
    A("s_nop 7")
    T = 16
    for tl in range(4):
        mt = tl & 1; o = 16 * tl
        for r in range(16):
            A("v_accvgpr_read_b32 v%d, a%d" % (T + r, A_ACCA + o + r))
        for r in range(16):
            A("v_mul_f32 v%d, v%d, v%d" % (V_ACCB + o + r, V_G + 2 + mt, V_ACCB + o + r))
        for r in range(16):
            A("v_fmac_f32 v%d, v%d, v%d" % (V_ACCB + o + r, V_G + mt, T + r))
    A("s_lshl_b32 s%d, s%d, 14" % (S_T0, S_WAVE))
    A("v_add_u32 v%d, s%d, v%d" % (t0, S_T0, V_L16))
    for tl in range(4):
        for q in range(4):
            A("ds_write_b128 v%d, %s offset:%d" % (t0, vr(V_ACCB + 16 * tl + 4 * q, 4), tl * 4096 + q * 1024))
    A("s_waitcnt lgkmcnt(0)")
    A("s_barrier")
    A("s_lshl_b32 s%d, s%d, 12" % (S_T0, S_WAVE))
    A("v_add_u32 v%d, s%d, v%d" % (t0, S_T0, V_L16))
    R = 16
    for w in range(4):
        for q in range(4):
            A("ds_read_b128 %s, v%d offset:%d" % (vr(R + 16 * w + 4 * q, 4), t0, w * 16384 + q * 1024))
        if w == 1 or w == 3: A("s_waitcnt lgkmcnt(0)")
    for r in range(16):
        A("v_add_f32 v%d, v%d, v%d" % (R + r, R + r, R + 16 + r))
        A("v_add_f32 v%d, v%d, v%d" % (R + 32 + r, R + 32 + r, R + 48 + r))
    for r in range(16):
        A("v_add_f32 v%d, v%d, v%d" % (R + r, R + r, R + 32 + r))
    P = 96
    for p in range(8):
        A("v_cvt_pk_bf16_f32 v%d, v%d, v%d" % (P + p, R + 2 * p, R + 2 * p + 1))
    A("v_and_b32 v%d, 31, v%d" % (t0, V_LANE))
    A("v_lshlrev_b32 v%d, 10, v%d" % (t0, t0))
    for pr in range(2):
        A("v_permlane32_swap_b32 v%d, v%d" % (P + 4 * pr, P + 4 * pr + 2))
        A("v_permlane32_swap_b32 v%d, v%d" % (P + 4 * pr + 1, P + 4 * pr + 3))
    A("v_lshrrev_b32 v%d, 5, v%d" % (t1, V_LANE))
    A("v_lshlrev_b32 v%d, 4, v%d" % (t1, t1))
    A("v_add_u32 v%d, v%d, v%d" % (t0, t0, t1))
    A("s_lshl_b32 s%d, s%d, 16" % (S_T0, S_RB3))
    A("s_and_b32 s%d, s%d, 1" % (S_T1, S_WAVE))
    A("s_lshl_b32 s%d, s%d, 15" % (S_T1, S_T1))
    A("s_add_u32 s%d, s%d, s%d" % (S_T0, S_T0, S_T1))
    A("s_lshl_b32 s%d, s%d, 7" % (S_T1, S_CB3))
    A("s_add_u32 s%d, s%d, s%d" % (S_T0, S_T0, S_T1))
    A("s_lshr_b32 s%d, s%d, 1" % (S_T1, S_WAVE))
    A("s_lshl_b32 s%d, s%d, 6" % (S_T1, S_T1))
    A("s_add_u32 s%d, s%d, s%d" % (S_T0, S_T0, S_T1))
    A("buffer_store_dwordx4 %s, v%d, s[%d:%d], s%d offen" % (vr(P, 4), t0, S_B3, S_B3 + 3, S_T0))
    A("buffer_store_dwordx4 %s, v%d, s[%d:%d], s%d offen offset:32" % (vr(P + 4, 4), t0, S_B3, S_B3 + 3, S_T0))

def nonce_check(A, tag):
    A("v_readfirstlane_b32 s%d, v%d" % (S_NONCE, V_NONCE))
    A("s_nop 3")
    A("s_cmp_lg_u32 s%d, 0" % S_NONCE)
    A("s_cbranch_scc1 NONCE_OK%s" % tag)
    get_nonce(A, tag)
    A("NONCE_OK%s:" % tag)

def build():
    A = Asm()
    prologue(A)
    stamp(A, 0)
    p1(A)
    stamp(A, 3)
    A("v_mov_b32 v%d, 0" % (V_T + 6))
    A("global_load_dword v%d, v%d, s[%d:%d] sc0 sc1" % (V_NONCE, V_T + 6, P_DBG, P_DBG + 1))
    p1_epilogue(A)
    stamp(A, 4)
    A("s_cmp_eq_u32 s%d, 15" % S_CG2)
    A("s_cbranch_scc1 K_GATE")
    global _flag1
    def sig1():
        nonce_check(A, "a")
        set_flag(A, "1a", WS_F1, S_CG1, S_RB1)
    p2_with(A, sig1)
    A("s_branch K_COMMON1")
    A("K_GATE:")
    A("s_waitcnt vmcnt(0)")
    A("s_barrier")
    nonce_check(A, "b")
    set_flag(A, "1b", WS_F1, S_CG1, S_RB1)
    gate(A)
    A("K_COMMON1:")
    stamp(A, 5)
    poll_flags(A, "1", WS_F1, S_HEAD, 32, 2)
    stamp(A, 6)
    attn_loads(A)
    A("s_cmp_eq_u32 s%d, 15" % S_CG2)
    A("s_cbranch_scc1 K_NOEPI")
    p2_epilogue(A)
    A("K_NOEPI:")
    A("s_waitcnt vmcnt(0)")
    A("s_barrier")
    set_flag(A, "2", WS_F2, S_RB2, S_CG2)
    stamp(A, 7)
    bound(A)
    tail_setup(A)
    A("s_mul_i32 s%d, s%d, %d" % (S_T0, S_WAVE, 9 * OSLOT))
    A("v_add_u32 v%d, s%d, v%d" % (V_FL, S_T0, V_L16))
    A("v_lshlrev_b32 v%d, 2, v%d" % (V_FL + 2, V_LANE))
    A("v_add_u32 v%d, s%d, v%d" % (V_FL + 2, S_T0, V_FL + 2))
    slow_prepass(A)
    for r in range(16): A("v_mov_b32 v%d, 0" % (V_S[1] + r))
    for r in range(8): A("v_mov_b32 v%d, 0" % (V_P + r))
    A(mfma(vr(V_S[0], 16), ar(A_K, 4), vr(V_Q, 4), vr(V_C, 16)))
    A("s_nop 15")
    stamp(A, 8)
    A("s_mov_b32 s%d, 0" % S_I)
    A("ATT_LOOP:")
    for t in range(16):
        ex = {}
        if t == 0:
            ex[17] = flush_lines() + ["v_add_u32 v%d, %d, v%d" % (V_FL, OSLOT, V_FL), "v_add_u32 v%d, %d, v%d" % (V_FL + 2, OSLOT, V_FL + 2)]
        if t == 1:
            ex[2] = ["buffer_load_dwordx4 %s, v%d, s[%d:%d], s%d offen%s" % (vr(V_QN, 4), V_L16, S_WS, S_WS + 3, S_QOFF, SC()),
                     "s_add_u32 s%d, s%d, 1024" % (S_QOFF, S_QOFF)]
        if t == 15:
            A("s_waitcnt vmcnt(0)")
            slow_set_c(A, "L")
            ex[2] = ["v_mov_b32 v%d, v%d" % (V_Q + r, V_QN + r) for r in range(4)]
        tile(A, t, ex)
    A("s_add_u32 s%d, s%d, 1" % (S_I, S_I))
    A("s_cmp_lt_u32 s%d, 8" % S_I)
    A("s_cbranch_scc1 ATT_LOOP")
    A("s_nop 0")
    A("v_cvt_pk_bf16_f32 v%d, v%d, v%d" % (V_P + 7, V_S[1] + 14, V_S[1] + 15))
    A("s_nop 1")
    A(mfma(ar(A_O, 16), ar(A_V + 4 * 31, 4), vr(V_P + 4, 4), ar(A_O, 16)))
    A("s_nop 15")
    emit(A, flush_lines())
    A("s_waitcnt lgkmcnt(0)")
    stamp(A, 9)
    A("s_barrier")
    attn_epilogue(A)
    A("s_waitcnt vmcnt(0)")
    A("s_barrier")
    set_flag(A, "3", WS_F3, S_QB, S_HEAD)
    stamp(A, 10)
    poll_flags(A, "2", WS_F2, S_RB3, 16, 1)
    t0 = V_T
    A("v_and_b32 v%d, 31, v%d" % (t0, V_LANE))
    A("v_lshlrev_b32 v%d, 2, v%d" % (t0, t0))
    A("s_lshl_b32 s%d, s%d, 8" % (S_T0, S_RB3))
    A("s_add_u32 s%d, s%d, 0x%x" % (S_T0, S_T0, WS_G))
    A("buffer_load_dword v%d, v%d, s[%d:%d], s%d offen%s" % (V_G, t0, S_WS, S_WS + 3, S_T0, SC()))
    A("buffer_load_dword v%d, v%d, s[%d:%d], s%d offen offset:128%s" % (V_G + 1, t0, S_WS, S_WS + 3, S_T0, SC()))
    down_params(A)
    loop(A, "DOWN_L", 3, lambda: batch8(A, S_B1, 86, V_ACCB, vr))
    stamp(A, 11)
    poll_flags(A, "3", WS_F3, S_RB3, 32, 2)
    for r in range(64): A("v_accvgpr_write_b32 a%d, 0" % (A_ACCA + r))
    A("s_lshl_b32 s%d, s%d, 1" % (S_T0, S_RB3))
    A("s_lshl_b32 s%d, s%d, 15" % (S_A0, S_T0))
    A("s_add_u32 s%d, s%d, 0x%x" % (S_A0, S_A0, WS_OF))
    A("s_add_u32 s%d, s%d, 32768" % (S_A1, S_A0))
    A("s_lshl_b32 s%d, s%d, 3" % (S_STEP, S_WAVE))
    A("s_add_u32 s%d, s%d, 8" % (S_END, S_STEP))
    batch8(A, S_B2, 32, A_ACCA, ar)
    final(A)
    stamp(A, 12)
    stamp_flush(A, 13)
    A("s_waitcnt vmcnt(0)")
    A("K_END:")
    body = A.text()
    return body

def p2_with(A, after_bar):
    A.comment("==== P2: FFN up ====")
    x_read_addrs(A, S_WAVE)
    w_read_base(A, 192, False)
    for r in range(96):
        A("v_mov_b32 v%d, 0" % (V_ACC2 + r))
    set_read_addrs(A)
    emit(A, p2_read_list(0)); emit(A, p2_read_list(1))
    p2_chunk(A, 2, 2, 5, after_bar=after_bar)
    loop(A, "P2_LA", 4, lambda: p2_chunk(A, 2, 2, 10))
    p2_chunk(A, 2, 0, 10)
    p2_chunk(A, 0, 0, 0)
    p2_chunk(A, 0, 0, None)
    A("s_waitcnt lgkmcnt(0)")

def write(fn, stamps=False):
    Cfg.stamps = stamps
    body = build()
    t, d = kernel_text(NAME + "_kernel", body, vgpr=256, agpr=256)
    t += "K_CODE_END:\n.set CODE_BYTES, K_CODE_END - %s_kernel\n" % NAME
    txt = file_text([(None, 256, 256, 163840)], [(t, d)])
    open(fn, "w").write(txt)
    return txt

if __name__ == "__main__":
    import hazard
    for st in (False, True):
        txt = write("mk_st.s" if st else "mk.s", st)
        hazard.check(txt)
```

```python
from gen import *
import struct

WS_QF = 0x0000000
WS_KF = 0x0200000
WS_VF = 0x0400000
WS_OF = 0x0600000
WS_HF = 0x0800000
HF_BYTES = 64 * 86 * 1024
WS_NQ = 0x0E00000
WS_NK = 0x0E02000
WS_G  = 0x0E04000
WS_F1 = 0x0E10000
WS_F2 = 0x0E11000
WS_F3 = 0x0E13000
WS_ST = 0x1700000
WS_SIZE = 0x1800000
QSCALE = 0.25 * 1.4426950408889634
def f32bits(x): return struct.unpack("<I", struct.pack("<f", x))[0]

class Cfg:
    stamps = False
    exp = set()
SC = " sc1"

S_AX, S_B1, S_B2, S_B3, S_WS = 4, 8, 12, 16, 20
S_W8, S_WAVE = 24, 25
S_RB1, S_CG1, S_KC1, S_XB1, S_WB1, S_WX1 = 26, 27, 28, 29, 30, 31
S_RB2, S_CG2, S_KC2, S_XB2, S_WB2, S_WX2, S_WW2 = 32, 33, 34, 35, 36, 37, 38
S_I, S_SLI, S_SLR = 39, 40, 41
S_GX, S_GW0, S_GW1, S_GM, S_GM2 = 42, 43, 44, 45, 46
S_T0, S_T1, S_T2, S_T3 = 48, 49, 50, 51
S_C = 52
S_NONCE = 56
S_HEAD, S_QB, S_QOFF, S_SLOW = 57, 58, 59, 60
S_SPIN = 61
S_EXM = 62
S_PTR = 64
P_AX, P_WQKV, P_WO, P_BX, P_WG, P_WU, P_WD, P_GW, P_OUT, P_DBG, P_WS = [S_PTR + 2 * i for i in range(11)]
S_ST = 86
S_R0, S_R1 = 47, 3
S_RB3, S_CB3, S_LB, S_AO, S_WO0, S_WO1, S_FA = 26, 27, 28, 29, 30, 31, 32
S_HF = 8

def srd(A, d, p, nbytes, add=0):
    if add:
        A("s_add_u32 s%d, s%d, 0x%x" % (d, p, add))
        A("s_addc_u32 s%d, s%d, 0" % (d + 1, p + 1))
    else:
        A("s_mov_b32 s%d, s%d" % (d, p))
        A("s_mov_b32 s%d, s%d" % (d + 1, p + 1))
    A("s_mov_b32 s%d, 0x%x" % (d + 2, nbytes))
    A("s_mov_b32 s%d, 0x00020000" % (d + 3))

def stamp(A, idx):
    if not Cfg.stamps: return
    A("s_memtime s[%d:%d]" % (S_ST, S_ST + 1))
    A("s_waitcnt lgkmcnt(0)")
    A("s_mov_b32 s%d, s%d" % (S_ST + 2 + idx, S_ST))
def rstamp(A, sreg):
    if not Cfg.stamps: return
    A("s_memrealtime s[%d:%d]" % (S_ST, S_ST + 1))
    A("s_waitcnt lgkmcnt(0)")
    A("s_mov_b32 s%d, s%d" % (sreg, S_ST))
def stamp_flush(A, n):
    if not Cfg.stamps: return
    A("s_lshl_b32 s%d, s2, 3" % (S_ST + 1))
    A("s_add_u32 s%d, s%d, s%d" % (S_ST + 1, S_ST + 1, S_W8))
    A("s_lshl_b32 s%d, s%d, 7" % (S_ST + 1, S_ST + 1))
    A("s_add_u32 s%d, s%d, 0x%x" % (S_ST + 1, S_ST + 1, WS_ST))
    A("v_mov_b32 v11, 0")
    A("s_mov_b64 exec, 1")
    for i in range(n):
        A("v_mov_b32 v10, s%d" % (S_ST + 2 + i))
        A("buffer_store_dword v10, v11, s[%d:%d], s%d offen offset:%d" % (S_WS, S_WS + 3, S_ST + 1, 4 * i))
    A("v_mov_b32 v10, s%d" % S_R0)
    A("buffer_store_dword v10, v11, s[%d:%d], s%d offen offset:%d" % (S_WS, S_WS + 3, S_ST + 1, 4 * 14))
    A("v_mov_b32 v10, s%d" % S_R1)
    A("buffer_store_dword v10, v11, s[%d:%d], s%d offen offset:%d" % (S_WS, S_WS + 3, S_ST + 1, 4 * 15))
    A("s_mov_b64 exec, -1")

def emit(A, lines):
    for l in lines: A(l)
def mfma(d, a_, b_, c):
    return "v_mfma_f32_32x32x16_bf16 %s, %s, %s, %s" % (d, a_, b_, c)
def loop(A, name, count, body):
    A("s_mov_b32 s%d, 0" % S_I)
    A(name + ":")
    body()
    A("s_add_u32 s%d, s%d, 1" % (S_I, S_I))
    A("s_cmp_lt_u32 s%d, %d" % (S_I, count))
    A("s_cbranch_scc1 " + name)
def split(lines, n):
    return [lines[(len(lines) * i) // n:(len(lines) * (i + 1)) // n] for i in range(n)]
class Buf:
    def __init__(self): self.lines = []
    def __call__(self, t):
        for l in t.split("\n"):
            if l.strip(): self.lines.append(l.strip())
    def comment(self, t): pass

V_LANE, V_L16 = 1, 2
V_T = 3
V_XO1, V_WO1 = 14, 16
V_XO2, V_WO2 = 17, 21
V_XA, V_WA = 24, 28
V_NONCE = 29
V_TCH = 30
V_F = 32
V_ACC1 = 96
V_ACC2 = 96
SLOT = 40960
NSLOT = 4
NTOUCH = 3
class RA:
    XR, WR = 144, 148

def x_dma_offsets(A, dst, n_instr, rowbase_wave):
    t0, t1, t2 = V_T, V_T + 1, V_T + 2
    for n in range(n_instr):
        A("v_lshrrev_b32 v%d, 3, v%d" % (t0, V_LANE))
        A("s_mul_i32 s%d, s%d, %d" % (S_T0, S_WAVE, rowbase_wave))
        A("s_add_u32 s%d, s%d, %d" % (S_T0, S_T0, 8 * n))
        A("v_add_u32 v%d, s%d, v%d" % (t0, S_T0, t0))
        A("v_lshrrev_b32 v%d, 1, v%d" % (t1, t0))
        A("v_and_b32 v%d, 7, v%d" % (t1, t1))
        A("v_and_b32 v%d, 7, v%d" % (t2, V_LANE))
        A("v_xor_b32 v%d, v%d, v%d" % (t1, t1, t2))
        A("v_lshlrev_b32 v%d, 4, v%d" % (t1, t1))
        A("v_lshlrev_b32 v%d, 10, v%d" % (t0, t0))
        A("v_add_u32 v%d, v%d, v%d" % (dst + n, t0, t1))

def x_read_addrs(A, s_rowtile):
    t0, t1, t2 = V_T, V_T + 1, V_T + 2
    A("v_and_b32 v%d, 31, v%d" % (t0, V_LANE))
    A("s_lshl_b32 s%d, s%d, 5" % (S_T0, s_rowtile))
    A("v_add_u32 v%d, s%d, v%d" % (t0, S_T0, t0))
    A("v_lshrrev_b32 v%d, 1, v%d" % (t1, t0))
    A("v_and_b32 v%d, 7, v%d" % (t1, t1))
    A("v_lshrrev_b32 v%d, 5, v%d" % (t2, V_LANE))
    A("v_xor_b32 v%d, v%d, v%d" % (t1, t1, t2))
    A("v_lshlrev_b32 v%d, 7, v%d" % (t0, t0))
    for s_ in range(4):
        A("v_xor_b32 v%d, %d, v%d" % (t2, 2 * s_, t1))
        A("v_lshlrev_b32 v%d, 4, v%d" % (t2, t2))
        A("v_add_u32 v%d, v%d, v%d" % (V_XA + s_, t0, t2))

def adv_slot(A, sreg):
    A("s_add_u32 s%d, s%d, %d" % (sreg, sreg, SLOT))
    A("s_cmp_eq_u32 s%d, %d" % (sreg, NSLOT * SLOT))
    A("s_cselect_b32 s%d, 0, s%d" % (sreg, sreg))

def dma_lines(m0base, m0add, voff, srdn, soff, imm=0):
    return ["s_add_u32 m0, s%d, %d" % (m0base, m0add), "s_nop 0",
            "buffer_load_dwordx4 v%d, s[%d:%d], s%d offen%s lds" % (voff, srdn, srdn + 3, soff, (" offset:%d" % imm) if imm else "")]

def issue_group(A, typ):
    if typ == 1:
        emit(A, ["s_lshl_b32 s%d, s%d, 7" % (S_GX, S_KC1), "s_add_u32 s%d, s%d, s%d" % (S_GX, S_GX, S_XB1),
              "s_mul_i32 s%d, s%d, %d" % (S_GW0, S_KC1, 64 * 3072), "s_add_u32 s%d, s%d, s%d" % (S_GW0, S_GW0, S_WB1),
              "s_add_u32 s%d, s%d, %d" % (S_GW1, S_GW0, 8 * 3072),
              "s_add_u32 s%d, s%d, s%d" % (S_GM, S_SLI, S_WX1),
              "s_add_u32 s%d, s%d, 1" % (S_KC1, S_KC1), "s_and_b32 s%d, s%d, 7" % (S_KC1, S_KC1)])
        for n in range(2): emit(A, dma_lines(S_GM, n * 1024, V_XO1 + n, S_AX, S_GX))
        for t in range(3):
            for n in range(2):
                emit(A, dma_lines(S_GM, 8192 + t * 8192 + n * 1024 - t * 1024, V_WO1, S_B1, S_GW0 if n == 0 else S_GW1, t * 1024))
    else:
        emit(A, ["s_lshl_b32 s%d, s%d, 7" % (S_GX, S_KC2), "s_add_u32 s%d, s%d, s%d" % (S_GX, S_GX, S_XB2),
              "s_mul_i32 s%d, s%d, %d" % (S_GW0, S_KC2, 64 * 2752), "s_add_u32 s%d, s%d, s%d" % (S_GW0, S_GW0, S_WB2),
              "s_add_u32 s%d, s%d, s%d" % (S_GM, S_SLI, S_WX2),
              "s_add_u32 s%d, s%d, s%d" % (S_GM2, S_SLI, S_WW2),
              "s_add_u32 s%d, s%d, 1" % (S_KC2, S_KC2), "s_and_b32 s%d, s%d, 7" % (S_KC2, S_KC2)])
        for n in range(4): emit(A, dma_lines(S_GM, n * 1024, V_XO2 + n, S_AX, S_GX))
        for mat in range(2):
            for e in range(3):
                emit(A, dma_lines(S_GM2, mat * 12288 + e * 1024, V_WO2 + e, S_B2 if mat == 0 else S_B3, S_GW0))
    adv_slot(A, S_SLI)

def set_read_addrs(A):
    for s_ in range(4):
        A("v_add_u32 v%d, s%d, v%d" % (RA.XR + s_, S_SLR, V_XA + s_))
    A("v_add_u32 v%d, s%d, v%d" % (RA.WR, S_SLR, V_WA))

def interleave(A, ms, rs):
    n = len(ms); k = 0
    for i, m in enumerate(ms):
        A(m)
        cnt = (len(rs) * (i + 1)) // n - (len(rs) * i) // n
        for _ in range(cnt):
            A(rs[k]); k += 1

def p1_read_list(s_, F):
    L = ["ds_read_b128 %s, v%d" % (vr(F, 4), RA.XR + s_)]
    for t in range(3):
        for q in range(2):
            L.append("ds_read_b64_tr_b16 %s, v%d offset:%d" % (vr(F + 4 + 4 * t + 2 * q, 2), RA.WR, t * 8192 + s_ * 2048 + q * 512))
    return L
def p1_mfma_list(F):
    return [mfma(vr(V_ACC1, 16), vr(F + 4, 4), vr(F, 4), vr(V_ACC1, 16)),
            mfma(vr(V_ACC1 + 16, 16), vr(F + 8, 4), vr(F, 4), vr(V_ACC1 + 16, 16)),
            mfma(vr(V_ACC1 + 32, 16), vr(F, 4), vr(F + 12, 4), vr(V_ACC1 + 32, 16))]
def p1_chunk(A):
    for s_ in range(4):
        if s_ == 2:
            A("s_barrier")
            adv_slot(A, S_SLR)
            set_read_addrs(A)
        A("s_waitcnt lgkmcnt(7)")
        interleave(A, p1_mfma_list(V_F + 16 * s_), p1_read_list((s_ + 2) & 3, V_F + 16 * ((s_ + 2) & 3)))

def setup_ids(A):
    A("s_and_b32 s%d, s2, 7" % S_T0)
    A("s_lshr_b32 s%d, s2, 3" % S_T1)
    A("s_lshr_b32 s%d, s%d, 1" % (S_RB1, S_T0))
    A("s_lshl_b32 s%d, s%d, 3" % (S_RB1, S_RB1))
    A("s_and_b32 s%d, s%d, 7" % (S_T2, S_T1))
    A("s_add_u32 s%d, s%d, s%d" % (S_RB1, S_RB1, S_T2))
    A("s_and_b32 s%d, s%d, 1" % (S_CG1, S_T0))
    A("s_lshl_b32 s%d, s%d, 2" % (S_CG1, S_CG1))
    A("s_lshr_b32 s%d, s%d, 3" % (S_T2, S_T1))
    A("s_add_u32 s%d, s%d, s%d" % (S_CG1, S_CG1, S_T2))
    A("s_lshl_b32 s%d, s%d, 1" % (S_T2, S_T2))
    A("s_add_u32 s%d, s%d, s%d" % (S_KC1, S_T1, S_T2))
    A("s_and_b32 s%d, s%d, 7" % (S_KC1, S_KC1))
    A("s_lshl_b32 s%d, s%d, 16" % (S_XB1, S_RB1))
    A("s_lshl_b32 s%d, s%d, 7" % (S_WB1, S_CG1))
    A("s_lshl_b32 s%d, s%d, 11" % (S_WX1, S_WAVE))
    A("s_lshr_b32 s%d, s%d, 1" % (S_RB2, S_T0))
    A("s_lshl_b32 s%d, s%d, 2" % (S_RB2, S_RB2))
    A("s_and_b32 s%d, s%d, 3" % (S_T2, S_T1))
    A("s_add_u32 s%d, s%d, s%d" % (S_RB2, S_RB2, S_T2))
    A("s_and_b32 s%d, s%d, 1" % (S_CG2, S_T0))
    A("s_lshl_b32 s%d, s%d, 3" % (S_CG2, S_CG2))
    A("s_lshr_b32 s%d, s%d, 2" % (S_T3, S_T1))
    A("s_add_u32 s%d, s%d, s%d" % (S_CG2, S_CG2, S_T3))
    A("s_lshl_b32 s%d, s%d, 1" % (S_T2, S_T2))
    A("s_add_u32 s%d, s%d, s%d" % (S_KC2, S_T3, S_T2))
    A("s_and_b32 s%d, s%d, 7" % (S_KC2, S_KC2))
    A("s_lshl_b32 s%d, s%d, 17" % (S_XB2, S_RB2))
    A("s_mul_i32 s%d, s%d, 192" % (S_WB2, S_CG2))
    A("s_lshl_b32 s%d, s%d, 12" % (S_WX2, S_WAVE))
    A("s_mul_i32 s%d, s%d, 3072" % (S_WW2, S_WAVE))
    A("s_add_u32 s%d, s%d, 16384" % (S_WW2, S_WW2))
    A("s_lshl_b32 s%d, s%d, 2" % (S_HEAD, S_T0))
    A("s_and_b32 s%d, s%d, 3" % (S_T2, S_T1))
    A("s_add_u32 s%d, s%d, s%d" % (S_HEAD, S_HEAD, S_T2))
    A("s_lshr_b32 s%d, s%d, 2" % (S_QB, S_T1))

def w_read_base(A, rowbytes, swz):
    t0, t1 = V_T, V_T + 1
    A("v_and_b32 v%d, 15, v%d" % (t0, V_LANE))
    A("v_lshrrev_b32 v%d, 2, v%d" % (t0, t0))
    A("v_lshrrev_b32 v%d, 5, v%d" % (t1, V_LANE))
    A("v_lshlrev_b32 v%d, 3, v%d" % (t1, t1))
    A("v_add_u32 v%d, v%d, v%d" % (t1, t1, t0))
    A("v_mul_u32_u24 v%d, %d, v%d" % (t1, rowbytes, t1))
    if swz:
        A("v_lshrrev_b32 v%d, 1, v%d" % (t0, t0))
        A("s_and_b32 s%d, s%d, 1" % (S_T2, S_WAVE))
        A("v_xor_b32 v%d, s%d, v%d" % (t0, S_T2, t0))
        A("v_lshlrev_b32 v%d, 6, v%d" % (t0, t0))
        A("v_add_u32 v%d, v%d, v%d" % (t1, t1, t0))
    A("v_lshrrev_b32 v%d, 4, v%d" % (t0, V_LANE))
    A("v_and_b32 v%d, 1, v%d" % (t0, t0))
    A("v_lshlrev_b32 v%d, 5, v%d" % (t0, t0))
    A("v_add_u32 v%d, v%d, v%d" % (t1, t1, t0))
    A("v_and_b32 v%d, 3, v%d" % (t0, V_LANE))
    A("v_lshlrev_b32 v%d, 3, v%d" % (t0, t0))
    A("v_add_u32 v%d, v%d, v%d" % (t1, t1, t0))
    if swz: A("v_add_u32 v%d, 8192, v%d" % (V_WA, t1))
    else: A("v_mov_b32 v%d, v%d" % (V_WA, t1))

def prologue(A):
    A("s_cmp_ge_u32 s2, 256")
    A("s_cbranch_scc1 K_END")
    A("s_load_dwordx16 s[%d:%d], s[0:1], 0" % (S_PTR, S_PTR + 15))
    A("s_load_dwordx4 s[%d:%d], s[0:1], 64" % (S_PTR + 16, S_PTR + 19))
    A("s_load_dwordx2 s[%d:%d], s[0:1], 80" % (S_PTR + 20, S_PTR + 21))
    A("v_lshrrev_b32 v%d, 6, v0" % V_T)
    A("v_and_b32 v%d, 63, v0" % V_LANE)
    A("v_readfirstlane_b32 s%d, v%d" % (S_W8, V_T))
    A("v_lshlrev_b32 v%d, 4, v%d" % (V_L16, V_LANE))
    A("s_nop 0")
    A("s_and_b32 s%d, s%d, 3" % (S_WAVE, S_W8))
    setup_ids(A)

def publish_nonce(A):
    A("s_cmp_lg_u32 s2, 0")
    A("s_cbranch_scc1 NONCE_SKIP")
    A("s_cmp_lg_u32 s%d, 0" % S_W8)
    A("s_cbranch_scc1 NONCE_SKIP")
    A("s_memrealtime s[%d:%d]" % (S_T0, S_T1))
    A("s_waitcnt lgkmcnt(0)")
    A("s_or_b32 s%d, s%d, 1" % (S_T0, S_T0))
    A("v_mov_b32 v%d, s%d" % (V_T, S_T0))
    A("v_mov_b32 v%d, 0" % (V_T + 1))
    A("s_mov_b64 exec, 1")
    A("global_store_dword v%d, v%d, s[%d:%d] sc0 sc1" % (V_T + 1, V_T, P_DBG, P_DBG + 1))
    A("s_mov_b64 exec, -1")
    A("NONCE_SKIP:")

def get_nonce(A, tag):
    A("s_mov_b32 s%d, 0" % S_SPIN)
    A("v_mov_b32 v%d, 0" % (V_T + 1))
    A("NONCE_L%s:" % tag)
    A("global_load_dword v%d, v%d, s[%d:%d] sc0 sc1" % (V_T, V_T + 1, P_DBG, P_DBG + 1))
    A("s_waitcnt vmcnt(0)")
    A("v_readfirstlane_b32 s%d, v%d" % (S_NONCE, V_T))
    A("s_add_u32 s%d, s%d, 1" % (S_SPIN, S_SPIN))
    A("s_cmp_gt_u32 s%d, 400000" % S_SPIN)
    A("s_cbranch_scc1 NONCE_D%s" % tag)
    A("s_cmp_eq_u32 s%d, 0" % S_NONCE)
    A("s_cbranch_scc1 NONCE_L%s" % tag)
    A("NONCE_D%s:" % tag)

def store_flag(A, s_off):
    A("v_mov_b32 v%d, s%d" % (V_T, S_NONCE))
    A("v_mov_b32 v%d, 0" % (V_T + 1))
    A("s_mov_b64 exec, 1")
    A("buffer_store_dword v%d, v%d, s[%d:%d], s%d offen sc0 sc1" % (V_T, V_T + 1, S_WS, S_WS + 3, s_off))
    A("s_mov_b64 exec, -1")

def set_flag(A, tag, base, s_line, s_idx):
    A("s_cmp_lg_u32 s%d, 0" % S_W8)
    A("s_cbranch_scc1 FLAG_SKIP%s" % tag)
    A("s_lshl_b32 s%d, s%d, 7" % (S_T0, s_line))
    A("s_lshl_b32 s%d, s%d, 2" % (S_T1, s_idx))
    A("s_add_u32 s%d, s%d, s%d" % (S_T0, S_T0, S_T1))
    A("s_add_u32 s%d, s%d, 0x%x" % (S_T0, S_T0, base))
    store_flag(A, S_T0)
    A("FLAG_SKIP%s:" % tag)

def poll_flags(A, tag, base, s_line, shift=0):
    t0, t1 = V_T, V_T + 1
    A("s_lshr_b32 s%d, s%d, %d" % (S_T0, s_line, shift))
    A("s_lshl_b32 s%d, s%d, 7" % (S_T0, S_T0))
    A("s_add_u32 s%d, s%d, 0x%x" % (S_T0, S_T0, base))
    A("v_and_b32 v%d, 31, v%d" % (t1, V_LANE))
    A("v_lshlrev_b32 v%d, 2, v%d" % (t1, t1))
    A("s_mov_b32 s%d, 0" % S_SPIN)
    A("POLL_L%s:" % tag)
    A("buffer_load_dword v%d, v%d, s[%d:%d], s%d offen sc0 sc1" % (t0, t1, S_WS, S_WS + 3, S_T0))
    A("s_waitcnt vmcnt(0)")
    A("v_cmp_ne_u32 vcc, s%d, v%d" % (S_NONCE, t0))
    A("s_add_u32 s%d, s%d, 1" % (S_SPIN, S_SPIN))
    A("s_cmp_gt_u32 s%d, 400000" % S_SPIN)
    A("s_cbranch_scc1 POLL_D%s" % tag)
    A("s_cmp_eq_u64 vcc, 0")
    A("s_cbranch_scc1 POLL_D%s" % tag)
    A("s_sleep 2")
    A("s_branch POLL_L%s" % tag)
    A("POLL_D%s:" % tag)

def touches(A):
    t0, t1, t2 = V_T, V_T + 1, V_T + 2
    A("s_lshr_b32 s%d, s2, 3" % S_T0)
    A("s_lshl_b32 s%d, s%d, 2" % (S_T0, S_T0))
    A("s_add_u32 s%d, s%d, s%d" % (S_T0, S_T0, S_WAVE))
    A("s_lshl_b32 s%d, s%d, 6" % (S_T0, S_T0))
    A("v_add_u32 v%d, s%d, v%d" % (t0, S_T0, V_LANE))
    A("v_mul_u32_u24 v%d, 20165, v%d" % (t1, t0))
    A("v_lshrrev_b32 v%d, 18, v%d" % (t1, t1))
    A("v_mul_u32_u24 v%d, 13, v%d" % (t2, t1))
    A("v_sub_u32 v%d, v%d, v%d" % (t2, t0, t2))
    A("v_mul_u32_u24 v%d, 2752, v%d" % (t1, t1))
    A("v_lshlrev_b32 v%d, 7, v%d" % (t2, t2))
    A("v_add_u32 v%d, v%d, v%d" % (t1, t1, t2))
    A("s_and_b32 s%d, s2, 1" % S_T0)
    A("s_mul_i32 s%d, s%d, 1536" % (S_T0, S_T0))
    A("buffer_load_dword v%d, v%d, s[%d:%d], s%d offen" % (V_TCH, t1, S_B2, S_B2 + 3, S_T0))
    A("buffer_load_dword v%d, v%d, s[%d:%d], s%d offen" % (V_TCH + 1, t1, S_B3, S_B3 + 3, S_T0))
    A("s_getpc_b64 s[%d:%d]" % (S_T2, S_T3))
    A("CODE_REF:")
    A("s_sub_u32 s%d, s%d, CODE_REF - %s_kernel" % (S_T2, S_T2, NAME))
    A("s_subb_u32 s%d, s%d, 0" % (S_T3, S_T3))
    A("s_lshr_b32 s%d, s2, 3" % S_T0)
    A("s_lshl_b32 s%d, s%d, 2" % (S_T0, S_T0))
    A("s_add_u32 s%d, s%d, s%d" % (S_T0, S_T0, S_WAVE))
    A("s_lshl_b32 s%d, s%d, 8" % (S_T0, S_T0))
    A("v_and_b32 v%d, 1, v%d" % (t0, V_LANE))
    A("v_lshlrev_b32 v%d, 7, v%d" % (t0, t0))
    A("v_add_u32 v%d, s%d, v%d" % (t0, S_T0, t0))
    A("v_min_u32 v%d, CODE_BYTES - 4, v%d" % (t0, t0))
    A("global_load_dword v%d, v%d, s[%d:%d]" % (V_TCH + 2, t0, S_T2, S_T3))

def loader(A):
    A.comment("==== loader waves ====")
    t0, t1, t2 = V_T, V_T + 1, V_T + 2
    x_dma_offsets(A, V_XO1, 2, 16)
    A("v_lshrrev_b32 v%d, 3, v%d" % (t0, V_LANE))
    A("s_lshl_b32 s%d, s%d, 4" % (S_T0, S_WAVE))
    A("v_add_u32 v%d, s%d, v%d" % (t0, S_T0, t0))
    A("v_mul_u32_u24 v%d, 3072, v%d" % (t0, t0))
    A("v_lshrrev_b32 v%d, 4, v%d" % (t1, V_LANE))
    A("v_and_b32 v%d, 1, v%d" % (t1, t1))
    A("v_lshlrev_b32 v%d, 2, v%d" % (t1, t1))
    A("v_and_b32 v%d, 7, v%d" % (t2, V_LANE))
    A("v_xor_b32 v%d, v%d, v%d" % (t1, t1, t2))
    A("v_lshlrev_b32 v%d, 4, v%d" % (t1, t1))
    A("v_add_u32 v%d, v%d, v%d" % (V_WO1, t0, t1))
    A("s_waitcnt lgkmcnt(0)")
    srd(A, S_AX, P_AX, 2048 * 1024)
    srd(A, S_B1, P_WQKV, 512 * 3072)
    A("s_mov_b32 s%d, 0" % S_SLI)
    loop(A, "LD_PRO", 4, lambda: issue_group(A, 1))
    srd(A, S_B2, P_WG, 512 * 2752)
    srd(A, S_B3, P_WU, 512 * 2752)
    srd(A, S_WS, P_WS, WS_SIZE)
    touches(A)
    x_dma_offsets(A, V_XO2, 4, 32)
    for e in range(3):
        A("v_add_u32 v%d, %d, v%d" % (t0, 64 * e, V_LANE))
        A("v_mul_u32_u24 v%d, 171, v%d" % (t1, t0))
        A("v_lshrrev_b32 v%d, 11, v%d" % (t1, t1))
        A("v_mul_u32_u24 v%d, 12, v%d" % (t2, t1))
        A("v_sub_u32 v%d, v%d, v%d" % (t2, t0, t2))
        A("s_lshl_b32 s%d, s%d, 4" % (S_T0, S_WAVE))
        A("v_add_u32 v%d, s%d, v%d" % (t1, S_T0, t1))
        A("v_mul_u32_u24 v%d, 2752, v%d" % (t1, t1))
        A("v_lshlrev_b32 v%d, 4, v%d" % (t2, t2))
        A("v_add_u32 v%d, v%d, v%d" % (V_WO2 + e, t1, t2))
    T = NTOUCH
    stamp(A, 1)
    A("s_waitcnt vmcnt(%d)" % (24 + T)); A("s_barrier")
    stamp(A, 2)
    A("s_waitcnt vmcnt(%d)" % (16 + T)); A("s_barrier")
    A("s_waitcnt vmcnt(%d)" % (8 + T)); A("s_barrier"); issue_group(A, 1)
    A("s_waitcnt vmcnt(%d)" % (8 + T)); A("s_barrier"); issue_group(A, 1)
    def la():
        A("s_waitcnt vmcnt(8)"); A("s_barrier"); issue_group(A, 1)
    loop(A, "LD_A", 2, la)
    A("s_cmp_eq_u32 s%d, 15" % S_CG2)
    A("s_cbranch_scc1 LD_GATE")
    A("s_waitcnt vmcnt(8)"); A("s_barrier"); issue_group(A, 2)
    def lb():
        A("s_waitcnt vmcnt(10)"); A("s_barrier"); issue_group(A, 2)
    loop(A, "LD_B", 7, lb)
    A("s_waitcnt vmcnt(10)"); A("s_barrier")
    A("s_waitcnt vmcnt(0)"); A("s_barrier")
    A("s_barrier")
    A("s_branch LD_DONE")
    A("LD_GATE:")
    A("s_waitcnt vmcnt(8)"); A("s_barrier")
    A("s_waitcnt vmcnt(0)"); A("s_barrier")
    A("s_barrier")
    A("s_barrier")
    A("LD_DONE:")

def p1(A):
    A.comment("==== P1: QKV (compute waves) ====")
    RA.XR, RA.WR = 144, 148
    A("s_lshr_b32 s%d, s%d, 1" % (S_T1, S_WAVE))
    x_read_addrs(A, S_T1)
    w_read_base(A, 128, True)
    for r in range(48):
        A("v_mov_b32 v%d, 0" % (V_ACC1 + r))
    A("s_mov_b32 s%d, 0" % S_SLR)
    set_read_addrs(A)
    A("s_waitcnt lgkmcnt(0)")
    srd(A, S_AX, P_AX, 2048 * 1024)
    srd(A, S_WS, P_WS, WS_SIZE)
    publish_nonce(A)
    stamp(A, 1)
    A("s_barrier")
    stamp(A, 2)
    emit(A, p1_read_list(0, V_F)); emit(A, p1_read_list(1, V_F + 16))
    loop(A, "P1_L", 8, lambda: p1_chunk(A))
    A("s_waitcnt lgkmcnt(0)")

def lane_reduce(A, rs, ts, op32, op):
    n = len(rs)
    def pad(k):
        if k > 0: A("s_nop %d" % (k - 1))
    for r, t in zip(rs, ts): A("v_mov_b32 v%d, v%d" % (t, r))
    pad(max(0, 2 - (n - 1)))
    for r, t in zip(rs, ts): A("v_permlane32_swap_b32 v%d, v%d" % (r, t))
    pad(1)
    for r, t in zip(rs, ts): A("%s v%d, v%d, v%d" % (op32, r, r, t))
    for r, t in zip(rs, ts): A("v_mov_b32 v%d, v%d" % (t, r))
    pad(max(0, 2 - (n - 1)))
    for r, t in zip(rs, ts): A("v_permlane16_swap_b32 v%d, v%d" % (r, t))
    pad(1)
    for r, t in zip(rs, ts): A("%s v%d, v%d, v%d" % (op, r, r, t))
    for sh in (8, 4, 2, 1):
        pad(max(0, 2 - (n - 1)))
        for r in rs: A("%s_dpp v%d, v%d, v%d row_ror:%d row_mask:0xf bank_mask:0xf" % (op, r, r, r, sh))

def p1_epilogue(A):
    A.comment("P1 epilogue")
    PQ, PK, PV = 144, 152, 160
    A("s_mov_b32 s%d, 0x%x" % (S_C, f32bits(QSCALE)))
    A("s_mov_b32 s%d, 0x%x" % (S_C + 1, f32bits(QSCALE)))
    A("s_and_b32 s%d, s%d, 1" % (S_T0, S_WAVE))
    A("s_lshl_b32 s%d, s%d, 1" % (S_T0, S_T0))
    A("s_lshl_b32 s%d, s%d, 2" % (S_T1, S_CG1))
    A("s_add_u32 s%d, s%d, s%d" % (S_T0, S_T0, S_T1))
    A("s_lshr_b32 s%d, s%d, 1" % (S_T1, S_WAVE))
    A("s_lshl_b32 s%d, s%d, 1" % (S_T2, S_RB1))
    A("s_add_u32 s%d, s%d, s%d" % (S_T1, S_T1, S_T2))
    A("s_lshl_b32 s%d, s%d, 16" % (S_T2, S_T0))
    A("s_lshl_b32 s%d, s%d, 10" % (S_T3, S_T1))
    A("s_add_u32 s%d, s%d, s%d" % (S_T2, S_T2, S_T3))
    t0, t1 = V_T, V_T + 1
    A("v_lshrrev_b32 v%d, 4, v%d" % (t0, V_LANE))
    A("v_and_b32 v%d, 1, v%d" % (t0, t0))
    A("v_lshlrev_b32 v%d, 16, v%d" % (t0, t0))
    A("v_lshrrev_b32 v%d, 5, v%d" % (t1, V_LANE))
    A("v_lshlrev_b32 v%d, 8, v%d" % (t1, t1))
    A("v_add_u32 v%d, v%d, v%d" % (t0, t0, t1))
    A("v_and_b32 v%d, 15, v%d" % (t1, V_LANE))
    A("v_lshlrev_b32 v%d, 4, v%d" % (t1, t1))
    A("v_add_u32 v%d, v%d, v%d" % (t0, t0, t1))
    A("s_nop 3")
    for p in range(8):
        A("v_cvt_pk_bf16_f32 v%d, v%d, v%d" % (PK + p, V_ACC1 + 16 + 2 * p, V_ACC1 + 17 + 2 * p))
    A("s_add_u32 s%d, s%d, 0x%x" % (S_C + 2, S_T2, WS_KF))
    A("s_add_u32 s%d, s%d, 0x%x" % (S_C + 3, S_T2, WS_KF + 65536))
    A("buffer_store_dwordx4 %s, v%d, s[%d:%d], s%d offen%s" % (vr(PK, 4), V_L16, S_WS, S_WS + 3, S_C + 2, SC))
    A("buffer_store_dwordx4 %s, v%d, s[%d:%d], s%d offen%s" % (vr(PK + 4, 4), V_L16, S_WS, S_WS + 3, S_C + 3, SC))
    for p in range(8):
        A("v_cvt_pk_bf16_f32 v%d, v%d, v%d" % (PV + p, V_ACC1 + 32 + 2 * p, V_ACC1 + 33 + 2 * p))
    A("s_add_u32 s%d, s%d, 0x%x" % (S_C + 2, S_T2, WS_VF))
    A("buffer_store_dwordx4 %s, v%d, s[%d:%d], s%d offen%s" % (vr(PV, 4), t0, S_WS, S_WS + 3, S_C + 2, SC))
    A("buffer_store_dwordx4 %s, v%d, s[%d:%d], s%d offen offset:512%s" % (vr(PV + 4, 4), t0, S_WS, S_WS + 3, S_C + 2, SC))
    for p in range(8):
        A("v_pk_mul_f32 %s, %s, %s" % (vr(V_ACC1 + 2 * p, 2), vr(V_ACC1 + 2 * p, 2), sr(S_C, 2)))
    for p in range(8):
        A("v_cvt_pk_bf16_f32 v%d, v%d, v%d" % (PQ + p, V_ACC1 + 2 * p, V_ACC1 + 2 * p + 1))
    A("s_add_u32 s%d, s%d, 0x%x" % (S_C + 2, S_T2, WS_QF))
    A("s_add_u32 s%d, s%d, 0x%x" % (S_C + 3, S_T2, WS_QF + 65536))
    A("buffer_store_dwordx4 %s, v%d, s[%d:%d], s%d offen%s" % (vr(PQ, 4), V_L16, S_WS, S_WS + 3, S_C + 2, SC))
    A("buffer_store_dwordx4 %s, v%d, s[%d:%d], s%d offen%s" % (vr(PQ + 4, 4), V_L16, S_WS, S_WS + 3, S_C + 3, SC))
    N = [168, 169, 170, 171]; T = [172, 173, 174, 175]
    src = [PQ, PQ + 4, PK, PK + 4]
    for p in range(4):
        for x in range(4):
            A("v_dot2_f32_bf16 v%d, v%d, v%d, %s" % (N[x], src[x] + p, src[x] + p, "0" if p == 0 else "v%d" % N[x]))
    A("s_nop 2")
    lane_reduce(A, N, T, "v_add_f32", "v_max_f32")
    A("s_lshl_b32 s%d, s%d, 8" % (S_T2, S_T0))
    A("s_lshl_b32 s%d, s%d, 2" % (S_T3, S_T1))
    A("s_add_u32 s%d, s%d, s%d" % (S_T2, S_T2, S_T3))
    A("s_add_u32 s%d, s%d, 0x%x" % (S_T2, S_T2, WS_NQ))
    A("v_mov_b32 v%d, 0" % t0)
    A("s_mov_b64 exec, 1")
    A("buffer_store_dword v%d, v%d, s[%d:%d], s%d offen%s" % (N[0], t0, S_WS, S_WS + 3, S_T2, SC))
    A("buffer_store_dword v%d, v%d, s[%d:%d], s%d offen offset:256%s" % (N[1], t0, S_WS, S_WS + 3, S_T2, SC))
    A("s_add_u32 s%d, s%d, 0x%x" % (S_T2, S_T2, WS_NK - WS_NQ))
    A("buffer_store_dword v%d, v%d, s[%d:%d], s%d offen%s" % (N[2], t0, S_WS, S_WS + 3, S_T2, SC))
    A("buffer_store_dword v%d, v%d, s[%d:%d], s%d offen offset:256%s" % (N[3], t0, S_WS, S_WS + 3, S_T2, SC))
    A("s_mov_b64 exec, -1")

def gate(A):
    A.comment("gate")
    srd(A, S_B1, P_GW, 1024)
    G = 32; GW = 64; N = list(range(68, 76)); T = list(range(76, 84))
    A("buffer_load_dwordx4 %s, v%d, s[%d:%d], 0 offen" % (vr(GW, 4), V_L16, S_B1, S_B1 + 3))
    A("s_lshl_b32 s%d, s%d, 7" % (S_T0, S_RB2))
    A("s_lshl_b32 s%d, s%d, 5" % (S_T1, S_WAVE))
    A("s_add_u32 s%d, s%d, s%d" % (S_T0, S_T0, S_T1))
    A("s_mov_b32 s%d, 0x%x" % (S_C, f32bits(-1.4426950408889634)))
    A("s_mov_b32 s%d, 0" % S_I)
    A("GATE_L:")
    A("s_lshl_b32 s%d, s%d, 10" % (S_T1, S_T0))
    for r in range(8):
        A("buffer_load_dwordx4 %s, v%d, s[%d:%d], s%d offen" % (vr(G + 4 * r, 4), V_L16, S_AX, S_AX + 3, S_T1))
        A("s_add_u32 s%d, s%d, 1024" % (S_T1, S_T1))
    A("s_waitcnt vmcnt(0)")
    for p in range(4):
        for x in range(8):
            A("v_dot2_f32_bf16 v%d, v%d, v%d, %s" % (N[x], G + 4 * x + p, GW + p, "0" if p == 0 else "v%d" % N[x]))
    A("s_nop 2")
    lane_reduce(A, N, T, "v_add_f32", "v_add_f32")
    for x in range(8): A("v_mul_f32 v%d, s%d, v%d" % (N[x], S_C, N[x]))
    for x in range(8): A("v_exp_f32 v%d, v%d" % (N[x], N[x]))
    for x in range(8): A("v_add_f32 v%d, 1.0, v%d" % (N[x], N[x]))
    for x in range(8): A("v_rcp_f32 v%d, v%d" % (N[x], N[x]))
    A("s_lshl_b32 s%d, s%d, 2" % (S_T1, S_T0))
    A("s_add_u32 s%d, s%d, 0x%x" % (S_T1, S_T1, WS_G))
    A("v_mov_b32 v%d, 0" % V_T)
    A("s_mov_b64 exec, 1")
    for x in range(8):
        A("buffer_store_dword v%d, v%d, s[%d:%d], s%d offen offset:%d%s" % (N[x], V_T, S_WS, S_WS + 3, S_T1, 4 * x, SC))
    A("s_mov_b64 exec, -1")
    A("s_add_u32 s%d, s%d, 8" % (S_T0, S_T0))
    A("s_add_u32 s%d, s%d, 1" % (S_I, S_I))
    A("s_cmp_lt_u32 s%d, 4" % S_I)
    A("s_cbranch_scc1 GATE_L")

P2_X0, P2_X1, P2_W = 32, 36, 40
def p2_read_list(hs):
    s_, mat = hs >> 1, hs & 1
    L = []
    if mat == 0:
        L.append("ds_read_b128 %s, v%d" % (vr(P2_X0 if (s_ & 1) == 0 else P2_X1, 4), RA.XR + s_))
    F = P2_W + 12 * (hs & 3)
    for u in range(3):
        for q in range(2):
            L.append("ds_read_b64_tr_b16 %s, v%d offset:%d" % (vr(F + 4 * u + 2 * q, 2), RA.WR, 16384 + mat * 12288 + s_ * 3072 + q * 768 + u * 64))
    return L
def p2_mfma_list(hs):
    s_, mat = hs >> 1, hs & 1
    X = P2_X0 if (s_ & 1) == 0 else P2_X1
    F = P2_W + 12 * (hs & 3)
    return [mfma(vr(V_ACC2 + 48 * mat + 16 * u, 16), vr(F + 4 * u, 4), vr(X, 4), vr(V_ACC2 + 48 * mat + 16 * u, 16)) for u in range(3)]
def p2_chunk(A, first=None):
    for hs in range(8):
        if hs == 4:
            if first: first(0)
            A("s_barrier")
            if first: first(1)
        if hs == 6:
            adv_slot(A, S_SLR)
            set_read_addrs(A)
        A("s_waitcnt lgkmcnt(%d)" % (7 if ((hs + 1) & 1) == 0 else 6))
        interleave(A, p2_mfma_list(hs), p2_read_list((hs + 2) & 7))

def p2(A, first):
    A.comment("==== P2: FFN up ====")
    RA.XR, RA.WR = 88, 92
    x_read_addrs(A, S_WAVE)
    w_read_base(A, 192, False)
    for r in range(96):
        A("v_mov_b32 v%d, 0" % (V_ACC2 + r))
    set_read_addrs(A)
    emit(A, p2_read_list(0)); emit(A, p2_read_list(1))
    p2_chunk(A, first)
    loop(A, "P2_L", 7, lambda: p2_chunk(A))
    A("s_waitcnt lgkmcnt(0)")

def p2_epilogue(A, items_a, items_b):
    A.comment("P2 epilogue: GEGLU (+ interleaved attention loads)")
    c1 = -2.0 * 0.7978845608028654 * 1.4426950408889634
    c2 = c1 * 0.044715
    A("s_mov_b32 s%d, 0x%x" % (S_C, f32bits(c2)))
    A("s_mov_b32 s%d, 0x%x" % (S_C + 1, f32bits(c2)))
    A("s_mov_b32 s%d, 1.0" % (S_C + 2))
    A("s_mov_b32 s%d, 1.0" % (S_C + 3))
    C1 = 40
    A("v_mov_b32 v%d, 0x%x" % (C1, f32bits(c1)))
    A("v_mov_b32 v%d, 0x%x" % (C1 + 1, f32bits(c1)))
    A("s_lshl_b32 s%d, s%d, 2" % (S_T0, S_RB2))
    A("s_add_u32 s%d, s%d, s%d" % (S_T0, S_T0, S_WAVE))
    A("s_mul_i32 s%d, s%d, 86" % (S_T0, S_T0))
    A("s_mul_i32 s%d, s%d, 6" % (S_T1, S_CG2))
    A("s_add_u32 s%d, s%d, s%d" % (S_T0, S_T0, S_T1))
    A("s_lshl_b32 s%d, s%d, 10" % (S_T0, S_T0))
    A("s_add_u32 s%d, s%d, 0x%x" % (S_T0, S_T0, WS_HF))
    A("s_cmp_eq_u32 s%d, 15" % S_CG2)
    A("s_cselect_b32 s%d, 0x40000000, s%d" % (S_T0, S_T0))
    T = 32
    pa = split(items_a, 16); pb = split(items_b, 32)
    slots = pa + pb
    blk = [0]
    def slot():
        for it in slots[blk[0]]: emit(A, it)
        blk[0] += 1
    for u in range(3):
        G = V_ACC2 + 16 * u; U = V_ACC2 + 48 + 16 * u
        for grp in range(2):
            prs = [G + 8 * grp + 2 * i for i in range(4)]
            tm = [T + 2 * i for i in range(4)]
            for g, t in zip(prs, tm): A("v_pk_mul_f32 %s, %s, %s" % (vr(t, 2), vr(g, 2), vr(g, 2)))
            slot()
            for g, t in zip(prs, tm): A("v_pk_fma_f32 %s, %s, %s, %s" % (vr(t, 2), vr(t, 2), sr(S_C, 2), vr(C1, 2)))
            slot()
            for g, t in zip(prs, tm): A("v_pk_mul_f32 %s, %s, %s" % (vr(t, 2), vr(t, 2), vr(g, 2)))
            slot()
            for g, t in zip(prs, tm):
                A("v_exp_f32 v%d, v%d" % (t, t)); A("v_exp_f32 v%d, v%d" % (t + 1, t + 1))
            slot()
            for g, t in zip(prs, tm): A("v_pk_add_f32 %s, %s, %s" % (vr(t, 2), vr(t, 2), sr(S_C + 2, 2)))
            slot()
            for g, t in zip(prs, tm):
                A("v_rcp_f32 v%d, v%d" % (t, t)); A("v_rcp_f32 v%d, v%d" % (t + 1, t + 1))
            slot()
            for g, t in zip(prs, tm): A("v_pk_mul_f32 %s, %s, %s" % (vr(g, 2), vr(g, 2), vr(U + (g - G), 2)))
            slot()
            for g, t in zip(prs, tm): A("v_pk_mul_f32 %s, %s, %s" % (vr(t, 2), vr(t, 2), vr(g, 2)))
            P = 48 + 4 * grp + 8 * (u & 1)
            for i, t in enumerate(tm): A("v_cvt_pk_bf16_f32 v%d, v%d, v%d" % (P + i, t, t + 1))
            A("buffer_store_dwordx4 %s, v%d, s[%d:%d], s%d offen offset:%d%s" % (vr(P, 4), V_L16, S_WS, S_WS + 3, S_T0, grp * 1024, SC))
            slot()
        A("s_add_u32 s%d, s%d, 2048" % (S_T0, S_T0))
        if u == 0:
            A("s_cmp_eq_u32 s%d, 14" % S_CG2)
            A("s_cselect_b32 s%d, 0x40000000, s%d" % (S_T0, S_T0))

V_FL, V_DO, V_RA, V_FLG, V_VOFF, V_MXA = 6, 7, 8, 10, 12, 13
V_NRM = 14
V_S = [16, 32]
V_C = 48
V_P = 64
V_Q, V_QN = 72, 76
V_K = 80
V_O = 112
V_ACCB = 128
V_ACT = 160
V_WF = 176
A_V = 0
OSLOT = 2304
L_OB = 0
L_W = 73728
L_MX = L_W + 65536
NT = 8
V_FL4 = 0

def tile(A, t, extra=None, oinit=False):
    S = V_S[t & 1]; Sp = V_S[(t + 1) & 1]
    e = lambda i: "v_exp_f32 v%d, v%d" % (S + i, S + i)
    c = lambda j: "v_cvt_pk_bf16_f32 v%d, v%d, v%d" % (V_P + j, S + 2 * j, S + 2 * j + 1)
    c7p = "v_cvt_pk_bf16_f32 v%d, v%d, v%d" % (V_P + 7, Sp + 14, Sp + 15)
    tp = (t - 1) % NT
    pvb = mfma(vr(V_O, 16), ar(A_V + 4 * (2 * tp + 1), 4), vr(V_P + 4, 4), vr(V_O, 16))
    pva = mfma(vr(V_O, 16), ar(A_V + 4 * (2 * t), 4), vr(V_P, 4), "0" if (t == 0 and not oinit) else vr(V_O, 16))
    tn = (t + 1) % NT
    qk = mfma(vr(Sp, 16), vr(V_K + 4 * tn, 4), vr(V_Q, 4), vr(V_C, 16))
    seq = [e(0), c7p, e(1), e(2), pvb, c(0), e(3), e(4), c(1), qk, e(5), e(6), c(2), e(7), e(8), c(3), e(9), e(10), None if oinit else pva,
           c(4), e(11), e(12), c(5), "X", e(13), e(14), c(6), e(15), "END"]
    extra = extra or {}
    for i, ins in enumerate(seq):
        for l in extra.get(i, []): A(l)
        if ins == "X":
            for l in extra.get("x", []): A(l)
        elif ins == "END":
            if oinit:
                A("s_waitcnt lgkmcnt(0)")
                A(pva)
        elif ins is not None:
            A(ins)

def flush_lines(slot):
    o = slot * OSLOT
    return ["ds_write_b128 v%d, %s offset:%d" % (V_FL, vr(V_O, 4), o),
            "ds_write_b128 v%d, %s offset:%d" % (V_FL, vr(V_O + 4, 4), o + 1024),
            "ds_write_b32 v%d, v%d offset:%d" % (V_FL4, V_O + 8, o + 2048)]
def oinit_lines(slot):
    o = slot * OSLOT
    return ["ds_read_b128 %s, v%d offset:%d" % (vr(V_O, 4), V_FL, o),
            "ds_read_b128 %s, v%d offset:%d" % (vr(V_O + 4, 4), V_FL, o + 1024),
            "ds_read_b32 v%d, v%d offset:%d" % (V_O + 8, V_FL4, o + 2048)]

S_KO, S_VO = S_GX, S_GW0
def attn_loads_pre(A):
    t0, t1 = V_T, V_T + 1
    A("v_lshlrev_b32 v%d, 2, v%d" % (t0, V_LANE))
    A("s_lshl_b32 s%d, s%d, 8" % (S_T0, S_HEAD))
    A("s_add_u32 s%d, s%d, 0x%x" % (S_T1, S_T0, WS_NK))
    A("buffer_load_dword v%d, v%d, s[%d:%d], s%d offen%s" % (V_NRM, t0, S_WS, S_WS + 3, S_T1, SC))
    A("v_and_b32 v%d, 7, v%d" % (t1, V_LANE))
    A("v_lshlrev_b32 v%d, 2, v%d" % (t1, t1))
    A("s_lshl_b32 s%d, s%d, 5" % (S_T2, S_QB))
    A("s_add_u32 s%d, s%d, s%d" % (S_T1, S_T0, S_T2))
    A("s_add_u32 s%d, s%d, 0x%x" % (S_T1, S_T1, WS_NQ))
    A("buffer_load_dword v%d, v%d, s[%d:%d], s%d offen%s" % (V_NRM + 1, t1, S_WS, S_WS + 3, S_T1, SC))
    A("s_lshl_b32 s%d, s%d, 16" % (S_T0, S_HEAD))
    A("s_lshl_b32 s%d, s%d, 13" % (S_T1, S_QB))
    A("s_add_u32 s%d, s%d, s%d" % (S_QOFF, S_T0, S_T1))
    A("s_lshr_b32 s%d, s%d, 2" % (S_T1, S_W8))
    A("s_lshl_b32 s%d, s%d, 12" % (S_T1, S_T1))
    A("s_add_u32 s%d, s%d, s%d" % (S_QOFF, S_QOFF, S_T1))
    A("s_add_u32 s%d, s%d, 0x%x" % (S_QOFF, S_QOFF, WS_QF))
    A("buffer_load_dwordx4 %s, v%d, s[%d:%d], s%d offen%s" % (vr(V_Q, 4), V_L16, S_WS, S_WS + 3, S_QOFF, SC))
    A("s_lshl_b32 s%d, s%d, 14" % (S_T1, S_WAVE))
    A("s_add_u32 s%d, s%d, s%d" % (S_T1, S_T1, S_T0))
    A("s_add_u32 s%d, s%d, 0x%x" % (S_KO, S_T1, WS_KF))
    A("s_add_u32 s%d, s%d, 0x%x" % (S_VO, S_T1, WS_VF))
    Z = V_QN
    for r in range(4): A("v_mov_b32 v%d, 0" % (Z + r))
    A("v_mov_b32 v%d, 0x3f803f80" % (t0))
    A("s_nop 0")
    for r in range(16): A("v_accvgpr_write_b32 a%d, v%d" % (A_V + r, t0))
    A("s_nop 1")
    for g in range(1, 4):
        A(mfma(ar(A_V + 16 * g, 16), vr(Z, 4), vr(Z, 4), ar(A_V, 16)))
    A("v_lshrrev_b32 v%d, 5, v%d" % (t0, V_LANE))
    A("v_lshlrev_b32 v%d, 8, v%d" % (t0, t0))
    A("v_and_b32 v%d, 15, v%d" % (t1, V_LANE))
    A("v_lshlrev_b32 v%d, 4, v%d" % (t1, t1))
    A("v_add_u32 v%d, v%d, v%d" % (V_VOFF, t0, t1))
    A("s_mov_b32 s%d, 0x0000ffff" % S_EXM)
    A("s_mov_b32 s%d, 0x0000ffff" % (S_EXM + 1))
    A("s_nop 7")

def k_item(i):
    it = ["buffer_load_dwordx4 %s, v%d, s[%d:%d], s%d offen offset:%d%s" % (vr(V_K + 4 * i, 4), V_L16, S_WS, S_WS + 3, S_KO, (i & 3) * 1024, SC)]
    if i == 3: it.append("s_add_u32 s%d, s%d, 4096" % (S_KO, S_KO))
    return it
def v_item(i):
    it = ["s_mov_b64 exec, s[%d:%d]" % (S_EXM, S_EXM + 1)]
    for g in (2 * i, 2 * i + 1):
        it.append("buffer_load_dwordx4 %s, v%d, s[%d:%d], s%d offen offset:%d%s" % (ar(A_V + 4 * g, 4), V_VOFF, S_WS, S_WS + 3, S_VO, (g & 7) * 512, SC))
    it.append("s_mov_b64 exec, -1")
    if i == 3: it.append("s_add_u32 s%d, s%d, 4096" % (S_VO, S_VO))
    return it

def bound(A):
    M = V_NRM
    lane_reduce(A, [M, M + 1], [V_T, V_T + 1], "v_max_f32", "v_max_f32")
    A("v_mul_f32 v%d, v%d, v%d" % (M, M, M + 1))
    A("v_sqrt_f32 v%d, v%d" % (M, M))
    A("v_mov_b32 v%d, 0x42400000" % (M + 1))
    A("v_cmp_nle_f32 vcc, v%d, v%d" % (M, M + 1))
    A("v_sub_f32 v%d, 0, v%d" % (M, M))
    A("s_nop 1")
    A("s_cmp_lg_u64 vcc, 0")
    A("s_cselect_b32 s%d, 1, 0" % S_SLOW)
    for r in range(16): A("v_mov_b32 v%d, v%d" % (V_C + r, M))

def slow_set_c(A, tag, T, qi):
    A("s_cmp_eq_u32 s%d, 0" % S_SLOW)
    A("s_cbranch_scc1 SLOWC_%s" % tag)
    for kg in range(4):
        A("ds_read_b32 v%d, v%d offset:%d" % (T + kg, V_MXA, kg * 1024 + qi * 128))
    A("s_waitcnt lgkmcnt(0)")
    for kg in range(1, 4):
        A("v_max_f32 v%d, v%d, v%d" % (T, T, T + kg))
    A("v_sub_f32 v%d, 0, v%d" % (T, T))
    A("s_nop 7")
    for r in range(16): A("v_mov_b32 v%d, v%d" % (V_C + r, T))
    A("s_nop 1")
    A("SLOWC_%s:" % tag)

def slow_prepass(A):
    A("s_cmp_eq_u32 s%d, 0" % S_SLOW)
    A("s_cbranch_scc1 SLOWP_END")
    S0 = V_S[0]; MX = V_S[1]; AD = V_S[1] + 6
    A("v_and_b32 v%d, 31, v%d" % (AD, V_LANE))
    A("v_lshlrev_b32 v%d, 2, v%d" % (AD, AD))
    A("s_lshr_b32 s%d, s%d, 2" % (S_T0, S_W8))
    A("s_lshl_b32 s%d, s%d, 9" % (S_T0, S_T0))
    A("s_add_u32 s%d, s%d, %d" % (S_T0, S_T0, L_MX))
    A("v_add_u32 v%d, s%d, v%d" % (V_MXA, S_T0, AD))
    A("s_lshl_b32 s%d, s%d, 10" % (S_T0, S_WAVE))
    A("v_add_u32 v%d, s%d, v%d" % (AD, S_T0, V_MXA))
    for q in range(4): A("v_mov_b32 v%d, 0xff800000" % (MX + q))
    A("s_sub_u32 s%d, s%d, 4096" % (S_T3, S_KO))
    A("s_mov_b32 s%d, 0" % S_I)
    A("SLOWP_H:")
    for t in range(NT):
        A("s_add_u32 s%d, s%d, %d" % (S_T2, S_T3, t * 1024))
        A("buffer_load_dwordx4 %s, v%d, s[%d:%d], s%d offen%s" % (vr(V_K + 4 * t, 4), V_L16, S_WS, S_WS + 3, S_T2, SC))
    for q in range(4):
        A("s_add_u32 s%d, s%d, %d" % (S_T2, S_QOFF, q * 1024))
        A("buffer_load_dwordx4 %s, v%d, s[%d:%d], s%d offen%s" % (vr(V_QN, 4), V_L16, S_WS, S_WS + 3, S_T2, SC))
        A("s_waitcnt vmcnt(0)")
        for t in range(NT):
            A(mfma(vr(S0, 16), vr(V_K + 4 * t, 4), vr(V_QN, 4), "0"))
            A("s_nop 15")
            for r in range(0, 16, 2):
                A("v_max3_f32 v%d, v%d, v%d, v%d" % (MX + q, MX + q, S0 + r, S0 + r + 1))
            A("s_nop 1")
    A("s_add_u32 s%d, s%d, 8192" % (S_T3, S_T3))
    A("s_add_u32 s%d, s%d, 1" % (S_I, S_I))
    A("s_cmp_lt_u32 s%d, 2" % S_I)
    A("s_cbranch_scc1 SLOWP_H")
    for q in range(4):
        A("v_mov_b32 v%d, v%d" % (MX + 4, MX + q))
        A("s_nop 1")
        A("v_permlane32_swap_b32 v%d, v%d" % (MX + q, MX + 4))
        A("s_nop 1")
        A("v_max_f32 v%d, v%d, v%d" % (MX + q, MX + q, MX + 4))
        A("ds_write_b32 v%d, v%d offset:%d" % (AD, MX + q, q * 128))
    A("s_sub_u32 s%d, s%d, 4096" % (S_T3, S_KO))
    for t in range(NT):
        A("s_add_u32 s%d, s%d, %d" % (S_T2, S_T3, t * 1024))
        A("buffer_load_dwordx4 %s, v%d, s[%d:%d], s%d offen%s" % (vr(V_K + 4 * t, 4), V_L16, S_WS, S_WS + 3, S_T2, SC))
    A("s_waitcnt vmcnt(0) lgkmcnt(0)")
    A("s_barrier")
    slow_set_c(A, "P", V_S[1] + 8, 0)
    A("SLOWP_END:")

S_HSRD = 8
S_WD = 12
S_OUT = 16
def tail_setup(A):
    t0, t1, t2 = V_T, V_T + 1, V_T + 2
    A("s_and_b32 s%d, s2, 7" % S_T0)
    A("s_lshr_b32 s%d, s2, 3" % S_T1)
    A("s_lshl_b32 s%d, s%d, 2" % (S_RB3, S_T0))
    A("s_and_b32 s%d, s%d, 3" % (S_T2, S_T1))
    A("s_add_u32 s%d, s%d, s%d" % (S_RB3, S_RB3, S_T2))
    A("s_lshr_b32 s%d, s%d, 2" % (S_CB3, S_T1))
    srd(A, S_HSRD, P_WS, HF_BYTES, add=WS_HF)
    srd(A, S_WD, P_WD, 1376 * 1024)
    srd(A, S_OUT, P_OUT, 2048 * 1024)
    A("v_lshrrev_b32 v%d, 3, v%d" % (t0, V_LANE))
    A("v_lshlrev_b32 v%d, 10, v%d" % (t0, t0))
    A("v_lshrrev_b32 v%d, 4, v%d" % (t1, V_LANE))
    A("v_and_b32 v%d, 1, v%d" % (t1, t1))
    A("v_lshlrev_b32 v%d, 2, v%d" % (t1, t1))
    A("v_and_b32 v%d, 7, v%d" % (t2, V_LANE))
    A("v_xor_b32 v%d, v%d, v%d" % (t1, t1, t2))
    A("v_lshlrev_b32 v%d, 4, v%d" % (t1, t1))
    A("v_add_u32 v%d, v%d, v%d" % (V_DO, t0, t1))
    A("s_lshl_b32 s%d, s%d, 13" % (S_LB, S_W8))
    A("s_add_u32 s%d, s%d, %d" % (S_LB, S_LB, L_W))
    A("v_and_b32 v%d, 15, v%d" % (t0, V_LANE))
    A("v_lshrrev_b32 v%d, 2, v%d" % (t0, t0))
    A("v_lshrrev_b32 v%d, 5, v%d" % (t1, V_LANE))
    A("v_lshlrev_b32 v%d, 2, v%d" % (t1, t1))
    A("v_add_u32 v%d, v%d, v%d" % (t1, t1, t0))
    A("v_lshlrev_b32 v%d, 7, v%d" % (t1, t1))
    A("v_lshrrev_b32 v%d, 1, v%d" % (t0, t0))
    A("v_lshlrev_b32 v%d, 6, v%d" % (t0, t0))
    A("v_add_u32 v%d, v%d, v%d" % (t1, t1, t0))
    A("v_lshrrev_b32 v%d, 4, v%d" % (t0, V_LANE))
    A("v_and_b32 v%d, 1, v%d" % (t0, t0))
    A("v_lshlrev_b32 v%d, 5, v%d" % (t0, t0))
    A("v_add_u32 v%d, v%d, v%d" % (t1, t1, t0))
    A("v_and_b32 v%d, 3, v%d" % (t0, V_LANE))
    A("v_lshlrev_b32 v%d, 3, v%d" % (t0, t0))
    A("v_add_u32 v%d, v%d, v%d" % (t1, t1, t0))
    A("v_add_u32 v%d, s%d, v%d" % (V_RA, S_LB, t1))
    A("v_xor_b32 v%d, 64, v%d" % (V_RA + 1, V_RA))
    A("s_lshl_b32 s%d, s%d, 1" % (S_T0, S_RB3))
    A("s_and_b32 s%d, s%d, 1" % (S_T1, S_W8))
    A("s_add_u32 s%d, s%d, s%d" % (S_T0, S_T0, S_T1))
    A("s_mul_i32 s%d, s%d, 86" % (S_T0, S_T0))
    A("s_lshr_b32 s%d, s%d, 1" % (S_T1, S_W8))
    A("s_mul_i32 s%d, s%d, 24" % (S_T1, S_T1))
    A("s_add_u32 s%d, s%d, s%d" % (S_T0, S_T0, S_T1))
    A("s_lshl_b32 s%d, s%d, 10" % (S_AO, S_T0))
    A("s_lshl_b32 s%d, s%d, 14" % (S_WO0, S_T1))
    A("s_lshl_b32 s%d, s%d, 7" % (S_T2, S_CB3))
    A("s_add_u32 s%d, s%d, s%d" % (S_WO0, S_WO0, S_T2))
    A("s_add_u32 s%d, s%d, 8192" % (S_WO1, S_WO0))
    A("s_lshl_b32 s%d, s%d, 7" % (S_FA, S_RB3))
    A("s_add_u32 s%d, s%d, 0x%x" % (S_FA, S_FA, WS_F2))
    A("v_and_b32 v%d, 31, v%d" % (V_FLG + 1, V_LANE))
    A("v_lshlrev_b32 v%d, 2, v%d" % (V_FLG + 1, V_FLG + 1))
    A("s_lshl_b32 s%d, s%d, 3" % (S_T0, S_WAVE))
    A("s_lshr_b32 s%d, s%d, 2" % (S_T1, S_W8))
    A("s_lshl_b32 s%d, s%d, 2" % (S_T1, S_T1))
    A("s_add_u32 s%d, s%d, s%d" % (S_T0, S_T0, S_T1))
    A("s_mul_i32 s%d, s%d, %d" % (S_T0, S_T0, OSLOT))
    A("v_add_u32 v%d, s%d, v%d" % (V_FL, S_T0, V_L16))
    A("v_lshlrev_b32 v%d, 2, v%d" % (V_FL4, V_LANE))
    A("v_add_u32 v%d, s%d, v%d" % (V_FL4, S_T0, V_FL4))

def sh_load(slot):
    a = ["buffer_load_dwordx4 %s, v%d, s[%d:%d], s%d offen%s" % (vr(V_ACT + 4 * slot, 4), V_L16, S_HSRD, S_HSRD + 3, S_AO, SC),
         "s_add_u32 s%d, s%d, 1024" % (S_AO, S_AO)]
    b = ["s_add_u32 m0, s%d, %d" % (S_LB, slot * 2048), "s_nop 0",
         "buffer_load_dwordx4 v%d, s[%d:%d], s%d offen lds" % (V_DO, S_WD, S_WD + 3, S_WO0), "s_add_u32 s%d, s%d, 16384" % (S_WO0, S_WO0)]
    c = ["s_add_u32 m0, s%d, %d" % (S_LB, slot * 2048 + 1024), "s_nop 0",
         "buffer_load_dwordx4 v%d, s[%d:%d], s%d offen lds" % (V_DO, S_WD, S_WD + 3, S_WO1), "s_add_u32 s%d, s%d, 16384" % (S_WO1, S_WO1)]
    return a, b, c

def w_reads(slot, F):
    return ["ds_read_b64_tr_b16 %s, v%d offset:%d" % (vr(F + 4 * u + 2 * q, 2), V_RA + u, slot * 2048 + q * 1024) for u in range(2) for q in range(2)]

class VM:
    def __init__(self): self.ops = []
    def resolve(self, A, lines):
        for l in lines:
            if l.startswith("VM:"):
                tag, ins = l[3:].split("|", 1)
                self.ops.append(tag); A(ins)
            elif l.startswith("WAITVM:"):
                tag = l[7:]
                if tag == "*": n = 0;
                else:
                    idx = max([k for k, t in enumerate(self.ops) if t == tag])
                    n = len(self.ops) - 1 - idx
                A("s_waitcnt vmcnt(%d)" % n)
            else:
                A(l)

def vmtag(tag, lines):
    return [("VM:%s|%s" % (tag, l)) if l.startswith("buffer_") else l for l in lines]

def attn_iter(B, it):
    qi = it & 3
    for t in range(NT):
        ex = {}
        def add(k, lines): ex.setdefault(k, []).extend(lines)
        oinit = (it >= 4 and t == 0)
        if t == 0:
            if it > 0:
                fl = flush_lines((it - 1) & 3)
                if oinit: fl = fl + oinit_lines(qi)
                add(17, fl)
            add(2, ["s_add_u32 s%d, s%d, %d" % (S_T0, S_QOFF, ((it + 1) & 3) * 1024),
                    "VM:Q%d|buffer_load_dwordx4 %s, v%d, s[%d:%d], s%d offen%s" % (it, vr(V_QN, 4), V_L16, S_WS, S_WS + 3, S_T0, SC)])
        if it == 1:
            if t == 0:
                add(6, ["VM:F|buffer_load_dword v%d, v%d, s[%d:%d], s%d offen sc0 sc1" % (V_FLG, V_FLG + 1, S_WS, S_WS + 3, S_FA)])
            if t == 2:
                add(2, ["WAITVM:F", "v_cmp_ne_u32 vcc, s%d, v%d" % (S_NONCE, V_FLG), "s_nop 1", "s_cmp_eq_u64 vcc, 0",
                        "s_cbranch_scc1 S2_OK", "s_call_b64 s[0:1], S2_SPIN", "S2_OK:"])
            if t in (2, 4, 6):
                k = (t - 2) // 2
                a, b, c = sh_load(k)
                add(10, vmtag("L%d" % k, a)); add(16, vmtag("L%d" % k, b)); add(21, vmtag("L%d" % k, c))
            if t == 7:
                add(19, ["WAITVM:L0"])
                add(20, w_reads(0, V_WF))
        if it >= 2:
            g, i2 = t >> 1, t & 1
            pass
        if it >= 2:
            s_ = 4 * (it - 2) + g
            if i2 == 0:
                if s_ + 3 < 24:
                    a, b, c = sh_load((g + 3) & 3)
                    add(6, vmtag("L%d" % (s_ + 3), a)); add(11, vmtag("L%d" % (s_ + 3), b)); add(20, vmtag("L%d" % (s_ + 3), c))
                nnew = 0
                if g == 0: nnew = 6 if oinit else 3
                add(23, ["s_waitcnt lgkmcnt(%d)" % nnew])
            else:
                if s_ + 1 < 24:
                    add(19, ["WAITVM:L%d" % (s_ + 1)])
                    add(20, w_reads((g + 1) & 3, V_WF + 8 * ((g + 1) & 1)))
            d = vr(V_ACCB + 16 * i2, 16)
            ex["x"] = [mfma(d, vr(V_WF + 8 * (g & 1) + 4 * i2, 4), vr(V_ACT + 4 * g, 4), d)]
        if it == 3:
            if t == 0: add(3, ["s_add_u32 s%d, s%d, 4096" % (S_KO, S_KO)])
            kl = ["VM:K%d|buffer_load_dwordx4 %s, v%d, s[%d:%d], s%d offen offset:%d%s" % (t, vr(V_K + 4 * t, 4), V_L16, S_WS, S_WS + 3, S_KO, (t & 3) * 1024, SC)]
            if t == 3: kl.append("s_add_u32 s%d, s%d, 4096" % (S_KO, S_KO))
            add(13, kl)
        if (it == 3 and t >= 1) or (it == 4 and t == 0):
            tv = (t - 1) % NT
            vl = []
            if tv == 0 or tv == 4: vl.append("s_add_u32 s%d, s%d, 4096" % (S_VO, S_VO))
            vl.append("s_mov_b64 exec, s[%d:%d]" % (S_EXM, S_EXM + 1))
            for gq in (2 * tv, 2 * tv + 1):
                vl.append("VM:V%d|buffer_load_dwordx4 %s, v%d, s[%d:%d], s%d offen offset:%d%s" % (tv, ar(A_V + 4 * gq, 4), V_VOFF, S_WS, S_WS + 3, S_VO, (gq & 7) * 512, SC))
            vl.append("s_mov_b64 exec, -1")
            add(7, vl)
        if it == 3 and t == 7: add(8, ["WAITVM:K0"])
        if it == 4:
            if t < 7: add(8, ["WAITVM:K%d" % (t + 1)])
            add(16, ["WAITVM:V%d" % t])
        if t == 7:
            add(1, ["WAITVM:Q%d" % it])
            add(2, ["v_mov_b32 v%d, v%d" % (V_Q + r, V_QN + r) for r in range(4)])
            Bf = Buf(); slow_set_c(Bf, "I%d" % it, V_S[0], (it + 1) & 3)
            for l in Bf.lines: B(l)
        tile(B, t, ex, oinit)

def s2_spin(A):
    A("S2_SPIN:")
    A("s_mov_b32 s%d, 0" % S_SPIN)
    A("S2_SPIN_L:")
    A("buffer_load_dword v%d, v%d, s[%d:%d], s%d offen sc0 sc1" % (V_FLG, V_FLG + 1, S_WS, S_WS + 3, S_FA))
    A("s_waitcnt vmcnt(0)")
    A("v_cmp_ne_u32 vcc, s%d, v%d" % (S_NONCE, V_FLG))
    A("s_add_u32 s%d, s%d, 1" % (S_SPIN, S_SPIN))
    A("s_cmp_gt_u32 s%d, 400000" % S_SPIN)
    A("s_cbranch_scc1 S2_SPIN_D")
    A("s_cmp_eq_u64 vcc, 0")
    A("s_cbranch_scc1 S2_SPIN_D")
    A("s_sleep 4")
    A("s_branch S2_SPIN_L")
    A("S2_SPIN_D:")
    A("s_setpc_b64 s[0:1]")

def attn_epilogue(A):
    t0 = V_T
    R = 16
    A("s_mul_i32 s%d, s%d, %d" % (S_T0, S_W8, OSLOT))
    A("v_add_u32 v%d, s%d, v%d" % (t0, S_T0, V_L16))
    A("v_lshlrev_b32 v%d, 2, v%d" % (t0 + 1, V_LANE))
    A("v_add_u32 v%d, s%d, v%d" % (t0 + 1, S_T0, t0 + 1))
    for kg in range(4):
        b = R + 12 * kg
        A("ds_read_b128 %s, v%d offset:%d" % (vr(b, 4), t0, kg * 8 * OSLOT))
        A("ds_read_b128 %s, v%d offset:%d" % (vr(b + 4, 4), t0, kg * 8 * OSLOT + 1024))
        A("ds_read_b32 v%d, v%d offset:%d" % (b + 8, t0 + 1, kg * 8 * OSLOT + 2048))
    A("s_lshl_b32 s%d, s%d, 3" % (S_T0, S_QB))
    A("s_add_u32 s%d, s%d, s%d" % (S_T0, S_T0, S_W8))
    A("s_lshl_b32 s%d, s%d, 5" % (S_T0, S_T0))
    A("s_add_u32 s%d, s%d, s%d" % (S_T0, S_T0, S_HEAD))
    A("s_lshl_b32 s%d, s%d, 10" % (S_T0, S_T0))
    A("s_add_u32 s%d, s%d, 0x%x" % (S_T0, S_T0, WS_OF))
    A("s_waitcnt lgkmcnt(0)")
    for r in range(9):
        A("v_add_f32 v%d, v%d, v%d" % (R + r, R + r, R + 12 + r))
        A("v_add_f32 v%d, v%d, v%d" % (R + 24 + r, R + 24 + r, R + 36 + r))
    for r in range(9):
        A("v_add_f32 v%d, v%d, v%d" % (R + r, R + r, R + 24 + r))
    A("v_rcp_f32 v%d, v%d" % (R + 8, R + 8))
    A("s_nop 0")
    for r in range(8):
        A("v_mul_f32 v%d, v%d, v%d" % (R + r, R + r, R + 8))
    P = 64
    for p in range(4):
        A("v_cvt_pk_bf16_f32 v%d, v%d, v%d" % (P + p, R + 2 * p, R + 2 * p + 1))
    A("buffer_store_dwordx4 %s, v%d, s[%d:%d], s%d offen%s" % (vr(P, 4), V_L16, S_WS, S_WS + 3, S_T0, SC))

V_WF8 = 32
V_ACT8 = 96
A_ACCA = 0
V_G = 14
def outproj_prefetch(A):
    srd(A, S_WD, P_WO, 512 * 1024)
    A("s_lshl_b32 s%d, s%d, 16" % (S_WO0, S_W8))
    A("s_lshl_b32 s%d, s%d, 7" % (S_T1, S_CB3))
    A("s_add_u32 s%d, s%d, s%d" % (S_WO0, S_WO0, S_T1))
    A("s_add_u32 s%d, s%d, 8192" % (S_WO1, S_WO0))
    for i in range(4):
        A("s_add_u32 m0, s%d, %d" % (S_LB, i * 2048)); A("s_nop 0")
        A("buffer_load_dwordx4 v%d, s[%d:%d], s%d offen lds" % (V_DO, S_WD, S_WD + 3, S_WO0))
        A("s_add_u32 m0, s%d, %d" % (S_LB, i * 2048 + 1024)); A("s_add_u32 s%d, s%d, 16384" % (S_WO0, S_WO0))
        A("buffer_load_dwordx4 v%d, s[%d:%d], s%d offen lds" % (V_DO, S_WD, S_WD + 3, S_WO1))
        A("s_add_u32 s%d, s%d, 16384" % (S_WO1, S_WO1))
    t0 = V_T
    A("v_and_b32 v%d, 31, v%d" % (t0, V_LANE))
    A("v_lshlrev_b32 v%d, 2, v%d" % (t0, t0))
    A("s_lshl_b32 s%d, s%d, 1" % (S_T0, S_RB3))
    A("s_and_b32 s%d, s%d, 1" % (S_T1, S_W8))
    A("s_add_u32 s%d, s%d, s%d" % (S_T0, S_T0, S_T1))
    A("s_lshl_b32 s%d, s%d, 7" % (S_T0, S_T0))
    A("s_add_u32 s%d, s%d, 0x%x" % (S_T0, S_T0, WS_G))
    A("buffer_load_dword v%d, v%d, s[%d:%d], s%d offen%s" % (V_G, t0, S_WS, S_WS + 3, S_T0, SC))
    A("s_and_b32 s%d, s%d, 1" % (S_T1, S_W8))
    A("s_lshl_b32 s%d, s%d, 13" % (S_T1, S_T1))
    A("v_subrev_u32 v%d, s%d, v%d" % (V_RA, S_T1, V_RA))
    A("v_subrev_u32 v%d, s%d, v%d" % (V_RA + 1, S_T1, V_RA + 1))

def outproj(A):
    A("s_lshl_b32 s%d, s%d, 1" % (S_T0, S_RB3))
    A("s_and_b32 s%d, s%d, 1" % (S_T1, S_W8))
    A("s_add_u32 s%d, s%d, s%d" % (S_T0, S_T0, S_T1))
    A("s_lshl_b32 s%d, s%d, 15" % (S_AO, S_T0))
    A("s_lshr_b32 s%d, s%d, 1" % (S_T1, S_W8))
    A("s_lshl_b32 s%d, s%d, 13" % (S_T1, S_T1))
    A("s_add_u32 s%d, s%d, s%d" % (S_AO, S_AO, S_T1))
    A("s_add_u32 s%d, s%d, 0x%x" % (S_AO, S_AO, WS_OF))
    for i in range(8):
        if i == 4: A("s_add_u32 s%d, s%d, 4096" % (S_AO, S_AO))
        A("buffer_load_dwordx4 %s, v%d, s[%d:%d], s%d offen offset:%d%s" % (vr(V_ACT8 + 4 * i, 4), V_L16, S_WS, S_WS + 3, S_AO, (i & 3) * 1024, SC))
    for i in range(8):
        A("s_waitcnt vmcnt(%d)" % (7 - i))
        for u in range(2):
            d = ar(A_ACCA + 16 * u, 16)
            A(mfma(d, vr(V_WF8 + 8 * i + 4 * u, 4), vr(V_ACT8 + 4 * i, 4), "0" if i == 0 else d))

def final(A):
    t0, t1 = V_T, V_T + 1
    A("v_sub_f32 v%d, 1.0, v%d" % (V_G + 1, V_G))
    for r in range(32):
        A("v_mul_f32 v%d, v%d, v%d" % (V_ACCB + r, V_G + 1, V_ACCB + r))
    A("s_nop 7")
    T = 32
    for r in range(32):
        A("v_accvgpr_read_b32 v%d, a%d" % (T + r, A_ACCA + r))
    for r in range(32):
        A("v_fmac_f32 v%d, v%d, v%d" % (V_ACCB + r, V_G, T + r))
    A("s_lshl_b32 s%d, s%d, 13" % (S_T0, S_W8))
    A("s_add_u32 s%d, s%d, %d" % (S_T0, S_T0, L_W))
    A("v_add_u32 v%d, s%d, v%d" % (t0, S_T0, V_L16))
    for u in range(2):
        for q in range(4):
            A("ds_write_b128 v%d, %s offset:%d" % (t0, vr(V_ACCB + 16 * u + 4 * q, 4), u * 4096 + q * 1024))
    A("s_waitcnt lgkmcnt(0)")
    A("s_barrier")
    A("s_and_b32 s%d, s%d, 1" % (S_T0, S_W8))
    A("s_lshl_b32 s%d, s%d, 13" % (S_T0, S_T0))
    A("s_lshr_b32 s%d, s%d, 1" % (S_T1, S_W8))
    A("s_and_b32 s%d, s%d, 1" % (S_T1, S_T1))
    A("s_lshl_b32 s%d, s%d, 12" % (S_T2, S_T1))
    A("s_add_u32 s%d, s%d, s%d" % (S_T0, S_T0, S_T2))
    A("s_lshr_b32 s%d, s%d, 2" % (S_T2, S_W8))
    A("s_lshl_b32 s%d, s%d, 11" % (S_T3, S_T2))
    A("s_add_u32 s%d, s%d, s%d" % (S_T0, S_T0, S_T3))
    A("s_add_u32 s%d, s%d, %d" % (S_T0, S_T0, L_W))
    A("v_add_u32 v%d, s%d, v%d" % (t0, S_T0, V_L16))
    R = 32
    for kq in range(4):
        for q in range(2):
            A("ds_read_b128 %s, v%d offset:%d" % (vr(R + 8 * kq + 4 * q, 4), t0, kq * 16384 + q * 1024))
    A("v_and_b32 v%d, 31, v%d" % (t1, V_LANE))
    A("v_lshlrev_b32 v%d, 10, v%d" % (t1, t1))
    A("v_lshrrev_b32 v%d, 5, v%d" % (t0 + 2, V_LANE))
    A("v_lshlrev_b32 v%d, 4, v%d" % (t0 + 2, t0 + 2))
    A("v_add_u32 v%d, v%d, v%d" % (t1, t1, t0 + 2))
    A("s_lshl_b32 s%d, s%d, 16" % (S_T0, S_RB3))
    A("s_and_b32 s%d, s%d, 1" % (S_T3, S_W8))
    A("s_lshl_b32 s%d, s%d, 15" % (S_T3, S_T3))
    A("s_add_u32 s%d, s%d, s%d" % (S_T0, S_T0, S_T3))
    A("s_lshl_b32 s%d, s%d, 7" % (S_T3, S_CB3))
    A("s_add_u32 s%d, s%d, s%d" % (S_T0, S_T0, S_T3))
    A("s_lshl_b32 s%d, s%d, 6" % (S_T1, S_T1))
    A("s_add_u32 s%d, s%d, s%d" % (S_T0, S_T0, S_T1))
    A("s_lshl_b32 s%d, s%d, 5" % (S_T2, S_T2))
    A("s_add_u32 s%d, s%d, s%d" % (S_T0, S_T0, S_T2))
    A("s_waitcnt lgkmcnt(0)")
    for r in range(8):
        A("v_add_f32 v%d, v%d, v%d" % (R + r, R + r, R + 8 + r))
        A("v_add_f32 v%d, v%d, v%d" % (R + 16 + r, R + 16 + r, R + 24 + r))
    for r in range(8):
        A("v_add_f32 v%d, v%d, v%d" % (R + r, R + r, R + 16 + r))
    P = 64
    for p in range(4):
        A("v_cvt_pk_bf16_f32 v%d, v%d, v%d" % (P + p, R + 2 * p, R + 2 * p + 1))
    A("s_nop 1")
    A("v_permlane32_swap_b32 v%d, v%d" % (P, P + 2))
    A("v_permlane32_swap_b32 v%d, v%d" % (P + 1, P + 3))
    A("buffer_store_dwordx4 %s, v%d, s[%d:%d], s%d offen" % (vr(P, 4), t1, S_OUT, S_OUT + 3, S_T0))

def nonce_check(A, tag):
    A("v_readfirstlane_b32 s%d, v%d" % (S_NONCE, V_NONCE))
    A("s_nop 3")
    A("s_cmp_lg_u32 s%d, 0" % S_NONCE)
    A("s_cbranch_scc1 NONCE_OK%s" % tag)
    get_nonce(A, tag)
    A("NONCE_OK%s:" % tag)

def zero_ob(A):
    t0 = V_T
    for r in range(4): A("v_mov_b32 v%d, 0" % (32 + r))
    A("s_mul_i32 s%d, s%d, 4608" % (S_T0, S_WAVE))
    A("v_add_u32 v%d, s%d, v%d" % (t0, S_T0, V_L16))
    for k in range(4):
        A("ds_write_b128 v%d, %s offset:%d" % (t0, vr(32, 4), L_OB + k * 1024))
    A("s_mov_b64 exec, 0xffffffff")
    A("ds_write_b128 v%d, %s offset:%d" % (t0, vr(32, 4), L_OB + 4096))
    A("s_mov_b64 exec, -1")
    A("s_waitcnt lgkmcnt(0)")

def attn_setup_common(A):
    bound(A)
    tail_setup(A)
    slow_prepass(A)
    for r in range(16): A("v_mov_b32 v%d, 0" % (V_S[1] + r))
    for r in range(8): A("v_mov_b32 v%d, 0" % (V_P + r))
    Z = V_QN
    for r in range(4): A("v_mov_b32 v%d, 0" % (Z + r))
    A("s_nop 1")
    A(mfma(vr(V_ACCB, 16), vr(Z, 4), vr(Z, 4), "0"))
    A(mfma(vr(V_ACCB + 16, 16), vr(Z, 4), vr(Z, 4), "0"))
    A(mfma(vr(V_O, 16), vr(Z, 4), vr(Z, 4), "0"))
    A(mfma(vr(V_S[0], 16), vr(V_K, 4), vr(V_Q, 4), vr(V_C, 16)))
    A("s_nop 15")

def build():
    A = Asm()
    prologue(A)
    rstamp(A, S_R0)
    stamp(A, 0)
    A("s_cmp_ge_u32 s%d, 4" % S_W8)
    A("s_cbranch_scc1 K_LOADER")
    p1(A)
    stamp(A, 3)
    A("v_mov_b32 v%d, 0" % (V_T + 6))
    A("global_load_dword v%d, v%d, s[%d:%d] sc0 sc1" % (V_NONCE, V_T + 6, P_DBG, P_DBG + 1))
    p1_epilogue(A)
    stamp(A, 4)
    A("s_cmp_eq_u32 s%d, 15" % S_CG2)
    A("s_cbranch_scc1 K_GATE")
    def first(phase):
        if phase == 0:
            A("s_waitcnt vmcnt(0)")
        else:
            nonce_check(A, "a")
            set_flag(A, "1a", WS_F1, S_CG1, S_RB1)
    p2(A, first)
    A("s_barrier")
    A("s_branch K_C1")
    A("K_GATE:")
    A("s_waitcnt vmcnt(0)")
    A("s_barrier")
    nonce_check(A, "b")
    set_flag(A, "1b", WS_F1, S_CG1, S_RB1)
    A("s_barrier")
    gate(A)
    A("K_C1:")
    stamp(A, 5)
    poll_flags(A, "1c", WS_F1, S_HEAD, 2)
    stamp(A, 6)
    attn_loads_pre(A)
    p2_epilogue(A, [k_item(i) for i in range(4)] + [v_item(i) for i in range(4)], [v_item(i) for i in range(4, 8)] + [k_item(i) for i in range(4, 8)])
    A("s_waitcnt vmcnt(0)")
    A("s_lshl_b32 s%d, s%d, 1" % (S_T0, S_RB2))
    A("s_lshr_b32 s%d, s%d, 1" % (S_T1, S_WAVE))
    A("s_add_u32 s%d, s%d, s%d" % (S_T0, S_T0, S_T1))
    A("s_lshl_b32 s%d, s%d, 7" % (S_T0, S_T0))
    A("s_lshl_b32 s%d, s%d, 1" % (S_T1, S_CG2))
    A("s_and_b32 s%d, s%d, 1" % (S_T2, S_WAVE))
    A("s_add_u32 s%d, s%d, s%d" % (S_T1, S_T1, S_T2))
    A("s_lshl_b32 s%d, s%d, 2" % (S_T1, S_T1))
    A("s_add_u32 s%d, s%d, s%d" % (S_T0, S_T0, S_T1))
    A("s_add_u32 s%d, s%d, 0x%x" % (S_T0, S_T0, WS_F2))
    store_flag(A, S_T0)
    A("s_branch K_ATT")
    A("K_LOADER:")
    loader(A)
    A("s_barrier")
    stamp(A, 5)
    get_nonce(A, "l")
    poll_flags(A, "1l", WS_F1, S_HEAD, 2)
    stamp(A, 6)
    attn_loads_pre(A)
    for i in range(8):
        emit(A, k_item(i)); emit(A, v_item(i))
    A("s_waitcnt vmcnt(0)")
    A("K_ATT:")
    stamp(A, 7)
    attn_setup_common(A)
    stamp(A, 8)
    B = Buf()
    for it in range(8): attn_iter(B, it)
    VM().resolve(A, B.lines)
    A("s_nop 0")
    A("v_cvt_pk_bf16_f32 v%d, v%d, v%d" % (V_P + 7, V_S[1] + 14, V_S[1] + 15))
    A("s_waitcnt vmcnt(0) lgkmcnt(0)")
    A("s_nop 0")
    A(mfma(vr(V_O, 16), ar(A_V + 4 * 15, 4), vr(V_P + 4, 4), vr(V_O, 16)))
    outproj_prefetch(A)
    emit(A, flush_lines(3))
    A("s_waitcnt lgkmcnt(0)")
    stamp(A, 9)
    A("s_barrier")
    attn_epilogue(A)
    A("s_waitcnt vmcnt(0)")
    A("s_barrier")
    set_flag(A, "3", WS_F3, S_QB, S_HEAD)
    stamp(A, 10)
    for i in range(8):
        emit(A, w_reads(i, V_WF8 + 8 * i))
        if i % 3 == 2: A("s_waitcnt lgkmcnt(0)")
    A("s_waitcnt lgkmcnt(0)")
    A("s_barrier")
    poll_flags(A, "3", WS_F3, S_RB3, 2)
    stamp(A, 11)
    outproj(A)
    final(A)
    stamp(A, 12)
    rstamp(A, S_R1)
    stamp_flush(A, 13)
    A("s_waitcnt vmcnt(0)")
    A("K_END:")
    A("s_endpgm")
    s2_spin(A)
    return A.text()

def write(fn, stamps=False):
    Cfg.stamps = stamps
    body = build()
    t, d = kernel_text(NAME + "_kernel", body, vgpr=192, agpr=64)
    t += "K_CODE_END:\n.set CODE_BYTES, K_CODE_END - %s_kernel\n" % NAME
    txt = file_text([(None, 256, 512, 163840)], [(t, d)])
    open(fn, "w").write(txt)
    return txt

if __name__ == "__main__":
    import hazard, sys
    if len(sys.argv) > 1:
        for e in sys.argv[1:]:
            Cfg.exp = set(e.split("+"))
            write("mk8_x_%s.s" % e, True)
        sys.exit(0)
    for st in (False, True):
        txt = write("mk8_st.s" if st else "mk8.s", st)
        hazard.check(txt)
```

```python
from gen import *
import struct

WS_QF = 0x0000000
WS_KF = 0x0200000
WS_VF = 0x0400000
WS_OF = 0x0600000
WS_HF = 0x0800000
HF_BYTES = 64 * 86 * 1024
WS_NQ = 0x0E00000
WS_NK = 0x0E02000
WS_G  = 0x0E04000
WS_F1 = 0x0E10000
WS_F2 = 0x0E11000
WS_F3 = 0x0E13000
WS_ST = 0x1700000
WS_SIZE = 0x1800000
QSCALE = 0.25 * 1.4426950408889634
def f32bits(x): return struct.unpack("<I", struct.pack("<f", x))[0]

class Cfg:
    stamps = False
    exp = set()
    prio_b = 0
SC = " sc1"

S_AX, S_B1, S_B2, S_B3, S_WS = 4, 8, 12, 16, 20
S_W8, S_WAVE = 24, 25
S_RB1, S_CG1, S_KC1, S_XB1, S_WB1, S_WX1 = 26, 27, 28, 29, 30, 31
S_RB2, S_CG2, S_KC2, S_XB2, S_WB2, S_WX2, S_WW2 = 32, 33, 34, 35, 36, 37, 38
S_I, S_SLI, S_SLR = 39, 40, 41
S_GX, S_GW0, S_GW1, S_GM, S_GM2 = 42, 43, 44, 45, 46
S_T0, S_T1, S_T2, S_T3 = 48, 49, 50, 51
S_C = 52
S_NONCE = 56
S_HEAD, S_QB, S_QOFF, S_SLOW = 57, 58, 59, 60
S_SPIN = 61
S_EXM = 62
S_PTR = 64
P_AX, P_WQKV, P_WO, P_BX, P_WG, P_WU, P_WD, P_GW, P_OUT, P_DBG, P_WS = [S_PTR + 2 * i for i in range(11)]
S_ST = 86
S_R0, S_R1 = 39 + 62, 3
S_RB3, S_CB3, S_LB, S_AO, S_WO0, S_WO1, S_FA = 70, 71, 66, 72, 73, 74, 75
S_HF = 8

def srd(A, d, p, nbytes, add=0):
    if add:
        A("s_add_u32 s%d, s%d, 0x%x" % (d, p, add))
        A("s_addc_u32 s%d, s%d, 0" % (d + 1, p + 1))
    else:
        A("s_mov_b32 s%d, s%d" % (d, p))
        A("s_mov_b32 s%d, s%d" % (d + 1, p + 1))
    A("s_mov_b32 s%d, 0x%x" % (d + 2, nbytes))
    A("s_mov_b32 s%d, 0x00020000" % (d + 3))

def stamp(A, idx):
    if not Cfg.stamps: return
    A("s_memtime s[%d:%d]" % (S_ST, S_ST + 1))
    A("s_waitcnt lgkmcnt(0)")
    A("s_mov_b32 s%d, s%d" % (S_ST + 2 + idx, S_ST))
V_STV = 10
class SV: reg = 10
def stampv(A, idx=None):
    if "sv" not in Cfg.exp: return
    A("s_memtime s[%d:%d]" % (S_ST, S_ST + 1))
    A("s_waitcnt lgkmcnt(0)")
    if idx is None:
        A("v_cmp_eq_u32 vcc, s%d, v%d" % (S_SVI, V_LANE))
        A("v_mov_b32 v%d, s%d" % (V_T + 1, S_ST))
        A("s_add_u32 s%d, s%d, 1" % (S_SVI, S_SVI))
        A("s_nop 1")
        A("v_cndmask_b32 v%d, v%d, v%d, vcc" % (SV.reg, SV.reg, V_T + 1))
def stampv_flush(A):
    if "sv" not in Cfg.exp: return
    A("s_lshl_b32 s%d, s2, 3" % (S_ST + 1))
    A("s_add_u32 s%d, s%d, s%d" % (S_ST + 1, S_ST + 1, S_W8))
    A("s_lshl_b32 s%d, s%d, 8" % (S_ST + 1, S_ST + 1))
    A("s_add_u32 s%d, s%d, 0x%x" % (S_ST + 1, S_ST + 1, WS_ST + 0x80000))
    A("v_lshlrev_b32 v%d, 2, v%d" % (V_T, V_LANE))
    A("buffer_store_dword v%d, v%d, s[%d:%d], s%d offen" % (40, V_T, S_WS, S_WS + 3, S_ST + 1))
S_SVI = 101
def rstamp(A, sreg):
    if not Cfg.stamps: return
    A("s_memrealtime s[%d:%d]" % (S_ST, S_ST + 1))
    A("s_waitcnt lgkmcnt(0)")
    A("s_mov_b32 s%d, s%d" % (sreg, S_ST))
def stamp_flush(A, n):
    if not Cfg.stamps: return
    A("s_lshl_b32 s%d, s2, 3" % (S_ST + 1))
    A("s_add_u32 s%d, s%d, s%d" % (S_ST + 1, S_ST + 1, S_W8))
    A("s_lshl_b32 s%d, s%d, 7" % (S_ST + 1, S_ST + 1))
    A("s_add_u32 s%d, s%d, 0x%x" % (S_ST + 1, S_ST + 1, WS_ST))
    A("v_mov_b32 v11, 0")
    A("s_mov_b64 exec, 1")
    for i in range(n):
        A("v_mov_b32 v10, s%d" % (S_ST + 2 + i))
        A("buffer_store_dword v10, v11, s[%d:%d], s%d offen offset:%d" % (S_WS, S_WS + 3, S_ST + 1, 4 * i))
    A("v_mov_b32 v10, s%d" % S_R0)
    A("buffer_store_dword v10, v11, s[%d:%d], s%d offen offset:%d" % (S_WS, S_WS + 3, S_ST + 1, 4 * 14))
    A("v_mov_b32 v10, s%d" % S_R1)
    A("buffer_store_dword v10, v11, s[%d:%d], s%d offen offset:%d" % (S_WS, S_WS + 3, S_ST + 1, 4 * 15))
    A("s_mov_b64 exec, -1")

def emit(A, lines):
    for l in lines: A(l)
def mfma(d, a_, b_, c):
    return "v_mfma_f32_32x32x16_bf16 %s, %s, %s, %s" % (d, a_, b_, c)
def loop(A, name, count, body):
    A("s_mov_b32 s%d, 0" % S_I)
    A(name + ":")
    body()
    A("s_add_u32 s%d, s%d, 1" % (S_I, S_I))
    A("s_cmp_lt_u32 s%d, %d" % (S_I, count))
    A("s_cbranch_scc1 " + name)
def split(lines, n):
    return [lines[(len(lines) * i) // n:(len(lines) * (i + 1)) // n] for i in range(n)]
class BarAsm(Asm):
    on = False
    def __call__(self, txt):
        Asm.__call__(self, txt)
        if self.on and txt.strip() == "s_barrier":
            self.on = False
            stampv(self)
            self.on = True
class Buf:
    def __init__(self): self.lines = []
    def __call__(self, t):
        for l in t.split("\n"):
            if l.strip(): self.lines.append(l.strip())
    def comment(self, t): pass

V_LANE, V_L16 = 1, 2
V_T = 3
V_XO1, V_WO1 = 14, 16
V_XO2, V_WO2 = 17, 21
V_XA, V_WA = 24, 28
V_NONCE = 29
V_TCH = 30
V_F = 32
V_ACC1 = 96
V_ACC2 = 96
SLOT = 40960
NSLOT = 4
NTOUCH = 3
class RA:
    XR, WR = 144, 148

def x_dma_offsets(A, dst, n_instr, rowbase_wave):
    t0, t1, t2 = V_T, V_T + 1, V_T + 2
    for n in range(n_instr):
        A("v_lshrrev_b32 v%d, 3, v%d" % (t0, V_LANE))
        A("s_mul_i32 s%d, s%d, %d" % (S_T0, S_WAVE, rowbase_wave))
        A("s_add_u32 s%d, s%d, %d" % (S_T0, S_T0, 8 * n))
        A("v_add_u32 v%d, s%d, v%d" % (t0, S_T0, t0))
        A("v_lshrrev_b32 v%d, 1, v%d" % (t1, t0))
        A("v_and_b32 v%d, 7, v%d" % (t1, t1))
        A("v_and_b32 v%d, 7, v%d" % (t2, V_LANE))
        A("v_xor_b32 v%d, v%d, v%d" % (t1, t1, t2))
        A("v_lshlrev_b32 v%d, 4, v%d" % (t1, t1))
        A("v_lshlrev_b32 v%d, 10, v%d" % (t0, t0))
        A("v_add_u32 v%d, v%d, v%d" % (dst + n, t0, t1))

def x_read_addrs(A, s_rowtile):
    t0, t1, t2 = V_T, V_T + 1, V_T + 2
    A("v_and_b32 v%d, 31, v%d" % (t0, V_LANE))
    A("s_lshl_b32 s%d, s%d, 5" % (S_T0, s_rowtile))
    A("v_add_u32 v%d, s%d, v%d" % (t0, S_T0, t0))
    A("v_lshrrev_b32 v%d, 1, v%d" % (t1, t0))
    A("v_and_b32 v%d, 7, v%d" % (t1, t1))
    A("v_lshrrev_b32 v%d, 5, v%d" % (t2, V_LANE))
    A("v_xor_b32 v%d, v%d, v%d" % (t1, t1, t2))
    A("v_lshlrev_b32 v%d, 7, v%d" % (t0, t0))
    for s_ in range(4):
        A("v_xor_b32 v%d, %d, v%d" % (t2, 2 * s_, t1))
        A("v_lshlrev_b32 v%d, 4, v%d" % (t2, t2))
        A("v_add_u32 v%d, v%d, v%d" % (V_XA + s_, t0, t2))

def adv_slot(A, sreg):
    A("s_add_u32 s%d, s%d, %d" % (sreg, sreg, SLOT))
    A("s_cmp_eq_u32 s%d, %d" % (sreg, NSLOT * SLOT))
    A("s_cselect_b32 s%d, 0, s%d" % (sreg, sreg))

def dma_lines(m0base, m0add, voff, srdn, soff, imm=0):
    return ["s_add_u32 m0, s%d, %d" % (m0base, m0add), "s_nop 0",
            "buffer_load_dwordx4 v%d, s[%d:%d], s%d offen%s lds" % (voff, srdn, srdn + 3, soff, (" offset:%d" % imm) if imm else "")]

def issue_group_merged(A, typ, lines):
    B = Buf(); issue_group(B, typ)
    blocks, cur = [], []
    for l in B.lines:
        cur.append(l)
        if l.startswith("buffer_load"): blocks.append(cur); cur = []
    parts = split(lines, len(blocks))
    for b, p in zip(blocks, parts):
        emit(A, b); emit(A, p)
    emit(A, cur)

def issue_group(A, typ):
    if typ == 1:
        emit(A, ["s_lshl_b32 s%d, s%d, 7" % (S_GX, S_KC1), "s_add_u32 s%d, s%d, s%d" % (S_GX, S_GX, S_XB1),
              "s_mul_i32 s%d, s%d, %d" % (S_GW0, S_KC1, 64 * 3072), "s_add_u32 s%d, s%d, s%d" % (S_GW0, S_GW0, S_WB1),
              "s_add_u32 s%d, s%d, %d" % (S_GW1, S_GW0, 8 * 3072),
              "s_add_u32 s%d, s%d, s%d" % (S_GM, S_SLI, S_WX1),
              "s_add_u32 s%d, s%d, 1" % (S_KC1, S_KC1), "s_and_b32 s%d, s%d, 7" % (S_KC1, S_KC1)])
        for n in range(2): emit(A, dma_lines(S_GM, n * 1024, V_XO1 + n, S_AX, S_GX))
        for t in range(3):
            for n in range(2):
                emit(A, dma_lines(S_GM, 8192 + t * 8192 + n * 1024 - t * 1024, V_WO1, S_B1, S_GW0 if n == 0 else S_GW1, t * 1024))
    else:
        emit(A, ["s_lshl_b32 s%d, s%d, 7" % (S_GX, S_KC2), "s_add_u32 s%d, s%d, s%d" % (S_GX, S_GX, S_XB2),
              "s_mul_i32 s%d, s%d, %d" % (S_GW0, S_KC2, 64 * 2752), "s_add_u32 s%d, s%d, s%d" % (S_GW0, S_GW0, S_WB2),
              "s_add_u32 s%d, s%d, s%d" % (S_GM, S_SLI, S_WX2),
              "s_add_u32 s%d, s%d, s%d" % (S_GM2, S_SLI, S_WW2),
              "s_add_u32 s%d, s%d, 1" % (S_KC2, S_KC2), "s_and_b32 s%d, s%d, 7" % (S_KC2, S_KC2)])
        for n in range(4): emit(A, dma_lines(S_GM, n * 1024, V_XO2 + n, S_AX, S_GX))
        for mat in range(2):
            for e in range(3):
                emit(A, dma_lines(S_GM2, mat * 12288 + e * 1024, V_WO2 + e, S_B2 if mat == 0 else S_B3, S_GW0))
    adv_slot(A, S_SLI)

def set_read_addrs(A):
    for s_ in range(4):
        A("v_add_u32 v%d, s%d, v%d" % (RA.XR + s_, S_SLR, V_XA + s_))
    A("v_add_u32 v%d, s%d, v%d" % (RA.WR, S_SLR, V_WA))

def interleave(A, ms, rs):
    n = len(ms); k = 0
    for i, m in enumerate(ms):
        A(m)
        cnt = (len(rs) * (i + 1)) // n - (len(rs) * i) // n
        for _ in range(cnt):
            A(rs[k]); k += 1

def p1_read_list(s_, F):
    L = ["ds_read_b128 %s, v%d" % (vr(F, 4), RA.XR + s_)]
    for t in range(3):
        for q in range(2):
            L.append("ds_read_b64_tr_b16 %s, v%d offset:%d" % (vr(F + 4 + 4 * t + 2 * q, 2), RA.WR, t * 8192 + s_ * 2048 + q * 512))
    return L
A_ACC1 = 0
def p1_mfma_list(F):
    return [mfma(ar(A_ACC1, 16), vr(F + 4, 4), vr(F, 4), ar(A_ACC1, 16)),
            mfma(ar(A_ACC1 + 16, 16), vr(F + 8, 4), vr(F, 4), ar(A_ACC1 + 16, 16)),
            mfma(ar(A_ACC1 + 32, 16), vr(F, 4), vr(F + 12, 4), ar(A_ACC1 + 32, 16))]
def p1_chunk(A):
    for s_ in range(4):
        if s_ == 2:
            A("s_barrier")
            adv_slot(A, S_SLR)
            set_read_addrs(A)
        A("s_waitcnt lgkmcnt(7)")
        interleave(A, p1_mfma_list(V_F + 16 * s_), p1_read_list((s_ + 2) & 3, V_F + 16 * ((s_ + 2) & 3)))

def setup_ids(A):
    A("s_and_b32 s%d, s2, 7" % S_T0)
    A("s_lshr_b32 s%d, s2, 3" % S_T1)
    A("s_lshr_b32 s%d, s%d, 1" % (S_RB1, S_T0))
    A("s_lshl_b32 s%d, s%d, 3" % (S_RB1, S_RB1))
    A("s_and_b32 s%d, s%d, 7" % (S_T2, S_T1))
    A("s_add_u32 s%d, s%d, s%d" % (S_RB1, S_RB1, S_T2))
    A("s_and_b32 s%d, s%d, 1" % (S_CG1, S_T0))
    A("s_lshl_b32 s%d, s%d, 2" % (S_CG1, S_CG1))
    A("s_lshr_b32 s%d, s%d, 3" % (S_T2, S_T1))
    A("s_add_u32 s%d, s%d, s%d" % (S_CG1, S_CG1, S_T2))
    A("s_lshl_b32 s%d, s%d, 1" % (S_T2, S_T2))
    A("s_add_u32 s%d, s%d, s%d" % (S_KC1, S_T1, S_T2))
    A("s_and_b32 s%d, s%d, 7" % (S_KC1, S_KC1))
    A("s_lshl_b32 s%d, s%d, 16" % (S_XB1, S_RB1))
    A("s_lshl_b32 s%d, s%d, 7" % (S_WB1, S_CG1))
    A("s_lshl_b32 s%d, s%d, 11" % (S_WX1, S_WAVE))
    A("s_lshr_b32 s%d, s%d, 1" % (S_RB2, S_T0))
    A("s_lshl_b32 s%d, s%d, 2" % (S_RB2, S_RB2))
    A("s_and_b32 s%d, s%d, 3" % (S_T2, S_T1))
    A("s_add_u32 s%d, s%d, s%d" % (S_RB2, S_RB2, S_T2))
    A("s_and_b32 s%d, s%d, 1" % (S_CG2, S_T0))
    A("s_lshl_b32 s%d, s%d, 3" % (S_CG2, S_CG2))
    A("s_lshr_b32 s%d, s%d, 2" % (S_T3, S_T1))
    A("s_add_u32 s%d, s%d, s%d" % (S_CG2, S_CG2, S_T3))
    A("s_lshl_b32 s%d, s%d, 1" % (S_T2, S_T2))
    A("s_add_u32 s%d, s%d, s%d" % (S_KC2, S_T3, S_T2))
    A("s_and_b32 s%d, s%d, 7" % (S_KC2, S_KC2))
    A("s_lshl_b32 s%d, s%d, 17" % (S_XB2, S_RB2))
    A("s_mul_i32 s%d, s%d, 192" % (S_WB2, S_CG2))
    A("s_lshl_b32 s%d, s%d, 12" % (S_WX2, S_WAVE))
    A("s_mul_i32 s%d, s%d, 3072" % (S_WW2, S_WAVE))
    A("s_add_u32 s%d, s%d, 16384" % (S_WW2, S_WW2))
    A("s_lshl_b32 s%d, s%d, 2" % (S_HEAD, S_T0))
    A("s_and_b32 s%d, s%d, 3" % (S_T2, S_T1))
    A("s_add_u32 s%d, s%d, s%d" % (S_HEAD, S_HEAD, S_T2))
    A("s_lshr_b32 s%d, s%d, 2" % (S_QB, S_T1))

def w_read_base(A, rowbytes, swz):
    t0, t1 = V_T, V_T + 1
    A("v_and_b32 v%d, 15, v%d" % (t0, V_LANE))
    A("v_lshrrev_b32 v%d, 2, v%d" % (t0, t0))
    A("v_lshrrev_b32 v%d, 5, v%d" % (t1, V_LANE))
    A("v_lshlrev_b32 v%d, 3, v%d" % (t1, t1))
    A("v_add_u32 v%d, v%d, v%d" % (t1, t1, t0))
    A("v_mul_u32_u24 v%d, %d, v%d" % (t1, rowbytes, t1))
    if swz:
        A("v_lshrrev_b32 v%d, 1, v%d" % (t0, t0))
        A("s_and_b32 s%d, s%d, 1" % (S_T2, S_WAVE))
        A("v_xor_b32 v%d, s%d, v%d" % (t0, S_T2, t0))
        A("v_lshlrev_b32 v%d, 6, v%d" % (t0, t0))
        A("v_add_u32 v%d, v%d, v%d" % (t1, t1, t0))
    A("v_lshrrev_b32 v%d, 4, v%d" % (t0, V_LANE))
    A("v_and_b32 v%d, 1, v%d" % (t0, t0))
    A("v_lshlrev_b32 v%d, 5, v%d" % (t0, t0))
    A("v_add_u32 v%d, v%d, v%d" % (t1, t1, t0))
    A("v_and_b32 v%d, 3, v%d" % (t0, V_LANE))
    A("v_lshlrev_b32 v%d, 3, v%d" % (t0, t0))
    A("v_add_u32 v%d, v%d, v%d" % (t1, t1, t0))
    if swz: A("v_add_u32 v%d, 8192, v%d" % (V_WA, t1))
    else: A("v_mov_b32 v%d, v%d" % (V_WA, t1))

def prologue(A):
    A("s_cmp_ge_u32 s2, 256")
    A("s_cbranch_scc1 K_END")
    A("s_load_dwordx16 s[%d:%d], s[0:1], 0" % (S_PTR, S_PTR + 15))
    A("s_load_dwordx4 s[%d:%d], s[0:1], 64" % (S_PTR + 16, S_PTR + 19))
    A("s_load_dwordx2 s[%d:%d], s[0:1], 80" % (S_PTR + 20, S_PTR + 21))
    A("v_lshrrev_b32 v%d, 6, v0" % V_T)
    A("v_and_b32 v%d, 63, v0" % V_LANE)
    A("v_readfirstlane_b32 s%d, v%d" % (S_W8, V_T))
    A("v_lshlrev_b32 v%d, 4, v%d" % (V_L16, V_LANE))
    A("s_nop 0")
    A("s_and_b32 s%d, s%d, 3" % (S_WAVE, S_W8))
    setup_ids(A)

def publish_nonce(A):
    A("s_cmp_lg_u32 s2, 0")
    A("s_cbranch_scc1 NONCE_SKIP")
    A("s_cmp_lg_u32 s%d, 0" % S_W8)
    A("s_cbranch_scc1 NONCE_SKIP")
    A("s_memrealtime s[%d:%d]" % (S_T0, S_T1))
    A("s_waitcnt lgkmcnt(0)")
    A("s_or_b32 s%d, s%d, 1" % (S_T0, S_T0))
    A("v_mov_b32 v%d, s%d" % (V_T, S_T0))
    A("v_mov_b32 v%d, 0" % (V_T + 1))
    A("s_mov_b64 exec, 1")
    A("global_store_dword v%d, v%d, s[%d:%d] sc1" % (V_T + 1, V_T, P_DBG, P_DBG + 1))
    A("s_mov_b64 exec, -1")
    A("NONCE_SKIP:")

def get_nonce(A, tag):
    A("s_mov_b32 s%d, 0" % S_SPIN)
    A("v_mov_b32 v%d, 0" % (V_T + 1))
    A("NONCE_L%s:" % tag)
    A("global_load_dword v%d, v%d, s[%d:%d] sc1" % (V_T, V_T + 1, P_DBG, P_DBG + 1))
    A("s_waitcnt vmcnt(0)")
    A("v_readfirstlane_b32 s%d, v%d" % (S_NONCE, V_T))
    A("s_add_u32 s%d, s%d, 1" % (S_SPIN, S_SPIN))
    A("s_cmp_gt_u32 s%d, 400000" % S_SPIN)
    A("s_cbranch_scc1 NONCE_D%s" % tag)
    A("s_cmp_eq_u32 s%d, 0" % S_NONCE)
    A("s_cbranch_scc1 NONCE_L%s" % tag)
    A("NONCE_D%s:" % tag)

def store_flag(A, s_off):
    A("v_mov_b32 v%d, s%d" % (V_T, S_NONCE))
    A("v_mov_b32 v%d, 0" % (V_T + 1))
    A("s_mov_b64 exec, 1")
    A("buffer_store_dword v%d, v%d, s[%d:%d], s%d offen sc1" % (V_T, V_T + 1, S_WS, S_WS + 3, s_off))
    A("s_mov_b64 exec, -1")

def set_flag(A, tag, base, s_line, s_idx):
    A("s_cmp_lg_u32 s%d, 0" % S_W8)
    A("s_cbranch_scc1 FLAG_SKIP%s" % tag)
    A("s_lshl_b32 s%d, s%d, 7" % (S_T0, s_line))
    A("s_lshl_b32 s%d, s%d, 2" % (S_T1, s_idx))
    A("s_add_u32 s%d, s%d, s%d" % (S_T0, S_T0, S_T1))
    A("s_add_u32 s%d, s%d, 0x%x" % (S_T0, S_T0, base))
    store_flag(A, S_T0)
    A("FLAG_SKIP%s:" % tag)

def poll_flags(A, tag, base, s_line, shift=0, n=32):
    t0, t1 = V_T, V_T + 1
    A("s_lshr_b32 s%d, s%d, %d" % (S_T0, s_line, shift))
    A("s_lshl_b32 s%d, s%d, %d" % (S_T0, S_T0, 7 if n == 32 else 8))
    A("s_add_u32 s%d, s%d, 0x%x" % (S_T0, S_T0, base))
    A("v_and_b32 v%d, %d, v%d" % (t1, n - 1, V_LANE))
    A("v_lshlrev_b32 v%d, 2, v%d" % (t1, t1))
    A("s_mov_b32 s%d, 0" % S_SPIN)
    A("POLL_L%s:" % tag)
    A("buffer_load_dword v%d, v%d, s[%d:%d], s%d offen sc1" % (t0, t1, S_WS, S_WS + 3, S_T0))
    A("s_waitcnt vmcnt(0)")
    A("v_cmp_ne_u32 vcc, s%d, v%d" % (S_NONCE, t0))
    A("s_add_u32 s%d, s%d, 1" % (S_SPIN, S_SPIN))
    A("s_cmp_gt_u32 s%d, 400000" % S_SPIN)
    A("s_cbranch_scc1 POLL_D%s" % tag)
    A("s_cmp_eq_u64 vcc, 0")
    A("s_cbranch_scc1 POLL_D%s" % tag)
    A("s_sleep 2")
    A("s_branch POLL_L%s" % tag)
    A("POLL_D%s:" % tag)

def touches(A):
    t0 = V_T
    A("s_getpc_b64 s[%d:%d]" % (S_T2, S_T3))
    A("CODE_REF:")
    A("s_sub_u32 s%d, s%d, CODE_REF - %s_kernel" % (S_T2, S_T2, NAME))
    A("s_subb_u32 s%d, s%d, 0" % (S_T3, S_T3))
    A("s_lshr_b32 s%d, s2, 3" % S_T0)
    A("s_lshl_b32 s%d, s%d, 2" % (S_T0, S_T0))
    A("s_add_u32 s%d, s%d, s%d" % (S_T0, S_T0, S_WAVE))
    A("s_lshl_b32 s%d, s%d, 9" % (S_T0, S_T0))
    A("v_and_b32 v%d, 3, v%d" % (t0, V_LANE))
    A("v_lshlrev_b32 v%d, 7, v%d" % (t0, t0))
    A("v_add_u32 v%d, s%d, v%d" % (t0, S_T0, t0))
    A("v_min_u32 v%d, CODE_BYTES - 4, v%d" % (t0, t0))
    A("global_load_dword v%d, v%d, s[%d:%d]" % (V_TCH, t0, S_T2, S_T3))

def p2_dma_setup(A):
    t0, t1, t2 = V_T, V_T + 1, V_T + 2
    x_dma_offsets(A, V_XO2, 4, 32)
    for e in range(3):
        A("v_add_u32 v%d, %d, v%d" % (t0, 64 * e, V_LANE))
        A("v_mul_u32_u24 v%d, 171, v%d" % (t1, t0))
        A("v_lshrrev_b32 v%d, 11, v%d" % (t1, t1))
        A("v_mul_u32_u24 v%d, 12, v%d" % (t2, t1))
        A("v_sub_u32 v%d, v%d, v%d" % (t2, t0, t2))
        A("s_lshl_b32 s%d, s%d, 4" % (S_T0, S_WAVE))
        A("v_add_u32 v%d, s%d, v%d" % (t1, S_T0, t1))
        A("v_mul_u32_u24 v%d, 2752, v%d" % (t1, t1))
        A("v_lshlrev_b32 v%d, 4, v%d" % (t2, t2))
        A("v_add_u32 v%d, v%d, v%d" % (V_WO2 + e, t1, t2))

def all_srds(A):
    A("s_waitcnt lgkmcnt(0)")
    srd(A, S_AX, P_AX, 2048 * 1024)
    srd(A, S_B1, P_WQKV, 512 * 3072)
    srd(A, S_B2, P_WG, 512 * 2752)
    srd(A, S_B3, P_WU, 512 * 2752)
    srd(A, S_WS, P_WS, WS_SIZE)

def role_b(A):
    A.comment("==== B waves: P1 loader ====")
    t0, t1, t2 = V_T, V_T + 1, V_T + 2
    x_dma_offsets(A, V_XO1, 2, 16)
    A("v_lshrrev_b32 v%d, 3, v%d" % (t0, V_LANE))
    A("s_lshl_b32 s%d, s%d, 4" % (S_T0, S_WAVE))
    A("v_add_u32 v%d, s%d, v%d" % (t0, S_T0, t0))
    A("v_mul_u32_u24 v%d, 3072, v%d" % (t0, t0))
    A("v_lshrrev_b32 v%d, 4, v%d" % (t1, V_LANE))
    A("v_and_b32 v%d, 1, v%d" % (t1, t1))
    A("v_lshlrev_b32 v%d, 2, v%d" % (t1, t1))
    A("v_and_b32 v%d, 7, v%d" % (t2, V_LANE))
    A("v_xor_b32 v%d, v%d, v%d" % (t1, t1, t2))
    A("v_lshlrev_b32 v%d, 4, v%d" % (t1, t1))
    A("v_add_u32 v%d, v%d, v%d" % (V_WO1, t0, t1))
    all_srds(A)
    A("s_mov_b32 s%d, 0" % S_SLI)
    loop(A, "LD_PRO", 2, lambda: issue_group(A, 1))
    p2_dma_setup(A)
    x_read_addrs(A, S_WAVE)
    w_read_base(A, 192, False)
    tail_setup(A)
    stamp(A, 1)
    A("s_waitcnt vmcnt(8)"); A("s_barrier")
    stamp(A, 2)
    issue_group(A, 1)
    touches(A)
    A("s_waitcnt vmcnt(9)"); A("s_barrier")
    issue_group(A, 1)
    def la():
        A("s_waitcnt vmcnt(8)"); A("s_barrier"); issue_group(A, 1)
    loop(A, "LD_A", 4, la)
    A("v_mov_b32 v%d, 0" % (V_T + 2))
    A("global_load_dword v%d, v%d, s[%d:%d] sc1" % (V_NONCE, V_T + 2, P_DBG, P_DBG + 1))
    A("s_cmp_eq_u32 s%d, 15" % S_CG2)
    A("s_cbranch_scc1 B_GATE")
    A("s_waitcnt vmcnt(9)"); A("s_barrier"); issue_group(A, 2)
    A("s_waitcnt vmcnt(10)"); A("s_barrier"); issue_group(A, 2)
    A("s_waitcnt vmcnt(10)"); A("s_barrier")
    stamp(A, 3)
    nonce_check(A, "b1")
    tail_srds(A)
    p2(A)
    A("s_barrier")
    A("s_branch B_C1")
    A("B_GATE:")
    A("s_waitcnt vmcnt(9)"); A("s_barrier")
    A("s_waitcnt vmcnt(0)"); A("s_barrier")
    A("s_barrier")
    A("s_barrier")
    nonce_check(A, "b2")
    tail_srds(A)
    A("s_barrier")
    gate(A)
    A("B_C1:")
    A("s_setprio 3")
    stamp(A, 5)
    poll_flags(A, "1c", WS_F1, S_HEAD, 2)
    stamp(A, 6)
    attn_loads_pre(A)
    p2_epilogue(A, [k_item(i) for i in range(4)] + [v_item(i) for i in range(4)], [v_item(i) for i in range(4, 8)] + [k_item(i) for i in range(4, 8)])
    A("s_waitcnt vmcnt(0)")
    A("s_lshl_b32 s%d, s%d, 1" % (S_T0, S_RB2))
    A("s_lshr_b32 s%d, s%d, 1" % (S_T1, S_WAVE))
    A("s_add_u32 s%d, s%d, s%d" % (S_T0, S_T0, S_T1))
    A("s_lshl_b32 s%d, s%d, 7" % (S_T0, S_T0))
    A("s_lshl_b32 s%d, s%d, 1" % (S_T1, S_CG2))
    A("s_and_b32 s%d, s%d, 1" % (S_T2, S_WAVE))
    A("s_add_u32 s%d, s%d, s%d" % (S_T1, S_T1, S_T2))
    A("s_lshl_b32 s%d, s%d, 2" % (S_T1, S_T1))
    A("s_add_u32 s%d, s%d, s%d" % (S_T0, S_T0, S_T1))
    A("s_add_u32 s%d, s%d, 0x%x" % (S_T0, S_T0, WS_F2))
    store_flag(A, S_T0)
    bound(A)
    A("s_setprio %d" % Cfg.prio_b)
    if "sv" in Cfg.exp: A("v_mov_b32 v40, v%d" % SV.reg)

def s1_flag_load(A):
    A("s_lshr_b32 s%d, s%d, 2" % (S_T0, S_HEAD))
    A("s_lshl_b32 s%d, s%d, 7" % (S_T0, S_T0))
    A("s_add_u32 s%d, s%d, 0x%x" % (S_T0, S_T0, WS_F1))
    A("buffer_load_dword v%d, v%d, s[%d:%d], s%d offen sc1" % (V_FLG, V_FLG + 1, S_WS, S_WS + 3, S_T0))

def s1_check(A, tag):
    A("v_cmp_ne_u32 vcc, s%d, v%d" % (S_NONCE, V_FLG))
    A("s_nop 3")
    A("s_cmp_eq_u64 vcc, 0")
    A("s_cbranch_scc1 S1_OK%s" % tag)
    poll_flags(A, "1s" + tag, WS_F1, S_HEAD, 2)
    A("S1_OK%s:" % tag)

def role_a(A):
    A.comment("==== A waves: P1 compute ====")
    RA.XR, RA.WR = 144, 148
    A("s_lshr_b32 s%d, s%d, 1" % (S_T1, S_WAVE))
    x_read_addrs(A, S_T1)
    w_read_base(A, 128, True)
    for r in range(48):
        A("v_accvgpr_write_b32 a%d, 0" % (A_ACC1 + r))
    A("s_mov_b32 s%d, 0" % S_SLR)
    set_read_addrs(A)
    p2_dma_setup(A)
    all_srds(A)
    publish_nonce(A)
    tail_setup(A)
    A("s_add_u32 s%d, s%d, 2" % (S_KC2, S_KC2))
    A("s_and_b32 s%d, s%d, 7" % (S_KC2, S_KC2))
    A("s_mov_b32 s%d, %d" % (S_SLI, 2 * SLOT))
    stamp(A, 1)
    A("s_barrier")
    stamp(A, 2)
    emit(A, p1_read_list(0, V_F)); emit(A, p1_read_list(1, V_F + 16))
    loop(A, "P1_L", 8, lambda: p1_chunk(A))
    A("s_waitcnt lgkmcnt(0)")
    stamp(A, 3)
    A("v_mov_b32 v%d, 0" % (V_T + 2))
    A("global_load_dword v%d, v%d, s[%d:%d] sc1" % (V_NONCE, V_T + 2, P_DBG, P_DBG + 1))
    E = Buf(); p1_epilogue(E)
    L = E.lines
    A("s_cmp_eq_u32 s%d, 15" % S_CG2)
    A("s_cbranch_scc1 A_GATE")
    n1 = 40; n2 = [k_ for k_, l_ in enumerate(L) if "MARK" in l_][0]
    nm = [k_ for k_, l_ in enumerate(L) if "MARK" in l_][0]
    body, tail = L[:nm], L[nm:]
    n1, n2 = len(body) * 2 // 7, len(body) * 5 // 7
    B1 = Buf(); issue_group_merged(B1, 2, body[:n1])
    B2 = Buf(); issue_group_merged(B2, 2, body[n1:n2])
    last = max(k_ for k_, l_ in enumerate(B1.lines) if l_.endswith(" lds"))
    newer = sum(1 for l_ in B1.lines[last + 1:] + B2.lines if l_.startswith("buffer_"))
    emit(A, B1.lines)
    A("s_barrier")
    emit(A, B2.lines)
    A("s_waitcnt vmcnt(%d)" % newer)
    A("s_barrier")
    emit(A, body[n2:])
    emit(A, tail)
    issue_group(A, 2)
    A("s_waitcnt vmcnt(10)"); A("s_barrier")
    stamp(A, 4)
    nonce_check(A, "a1")
    set_flag(A, "1a", WS_F1, S_CG1, S_RB1)
    issue_group(A, 2)
    A("s_waitcnt vmcnt(10)"); A("s_barrier"); issue_group(A, 2)
    A("s_waitcnt vmcnt(10)"); A("s_barrier")
    s1_flag_load(A)
    issue_group(A, 2)
    A("s_waitcnt vmcnt(10)"); A("s_barrier")
    s1_check(A, "l")
    attn_loads_pre(A)
    for i in range(3):
        emit(A, k_item(i)); emit(A, v_item(i))
    A("s_waitcnt vmcnt(12)"); A("s_barrier")
    for i in range(3, 8):
        emit(A, k_item(i)); emit(A, v_item(i))
    tail_srds(A)
    A("s_barrier")
    A("s_waitcnt vmcnt(0)")
    bound(A)
    A("s_barrier")
    A("s_branch A_DONE")
    A("A_GATE:")
    A("s_nop 7")
    emit(A, [l.replace("LRX", "LRX") for l in L])
    A("s_waitcnt vmcnt(0)")
    A("s_barrier")
    nonce_check(A, "a2")
    set_flag(A, "1b", WS_F1, S_CG1, S_RB1)
    A("s_barrier")
    poll_flags(A, "1lg", WS_F1, S_HEAD, 2)
    attn_loads_pre(A)
    for i in range(8):
        emit(A, k_item(i)); emit(A, v_item(i))
    tail_srds(A)
    A("s_waitcnt vmcnt(0)")
    bound(A)
    A("A_DONE:")
    stamp(A, 5)
    stamp(A, 6)
    if "sv" in Cfg.exp: A("v_mov_b32 v40, v%d" % SV.reg)

def lane_reduce(A, rs, ts, op32, op):
    n = len(rs)
    def pad(k):
        if k > 0: A("s_nop %d" % (k - 1))
    for r, t in zip(rs, ts): A("v_mov_b32 v%d, v%d" % (t, r))
    pad(max(0, 2 - (n - 1)))
    for r, t in zip(rs, ts): A("v_permlane32_swap_b32 v%d, v%d" % (r, t))
    pad(1)
    for r, t in zip(rs, ts): A("%s v%d, v%d, v%d" % (op32, r, r, t))
    for r, t in zip(rs, ts): A("v_mov_b32 v%d, v%d" % (t, r))
    pad(max(0, 2 - (n - 1)))
    for r, t in zip(rs, ts): A("v_permlane16_swap_b32 v%d, v%d" % (r, t))
    pad(1)
    for r, t in zip(rs, ts): A("%s v%d, v%d, v%d" % (op, r, r, t))
    for sh in (8, 4, 2, 1):
        pad(max(0, 2 - (n - 1)))
        for r in rs: A("%s_dpp v%d, v%d, v%d row_ror:%d row_mask:0xf bank_mask:0xf" % (op, r, r, r, sh))

S_E0, S_E1, S_E2, S_E3 = 28, 29, 30, 31
def p1_epilogue(A):
    TA, TB, TC, TD = 32, 33, 34, 35
    PA, PB = 36, 40
    VADDR = 48
    N = [44, 45, 46, 47]
    A("s_and_b32 s%d, s%d, 1" % (S_E0, S_WAVE))
    A("s_lshl_b32 s%d, s%d, 1" % (S_E0, S_E0))
    A("s_lshl_b32 s%d, s%d, 2" % (S_E1, S_CG1))
    A("s_add_u32 s%d, s%d, s%d" % (S_E0, S_E0, S_E1))
    A("s_lshr_b32 s%d, s%d, 1" % (S_E1, S_WAVE))
    A("s_lshl_b32 s%d, s%d, 1" % (S_E2, S_RB1))
    A("s_add_u32 s%d, s%d, s%d" % (S_E1, S_E1, S_E2))
    A("s_lshl_b32 s%d, s%d, 16" % (S_E2, S_E0))
    A("s_lshl_b32 s%d, s%d, 10" % (S_E3, S_E1))
    A("s_add_u32 s%d, s%d, s%d" % (S_E2, S_E2, S_E3))
    A("v_lshrrev_b32 v%d, 4, v%d" % (TA, V_LANE))
    A("v_and_b32 v%d, 1, v%d" % (TA, TA))
    A("v_lshlrev_b32 v%d, 16, v%d" % (TA, TA))
    A("v_lshrrev_b32 v%d, 5, v%d" % (TB, V_LANE))
    A("v_lshlrev_b32 v%d, 8, v%d" % (TB, TB))
    A("v_add_u32 v%d, v%d, v%d" % (TA, TA, TB))
    A("v_and_b32 v%d, 15, v%d" % (TB, V_LANE))
    A("v_lshlrev_b32 v%d, 4, v%d" % (TB, TB))
    A("v_add_u32 v%d, v%d, v%d" % (VADDR, TA, TB))
    A("s_mov_b32 s%d, 0x%x" % (S_C, f32bits(QSCALE)))
    k = [0]
    def head_part(acc, scale, nrm, addr, soff_base, imm):
        P = PA if k[0] % 2 == 0 else PB; k[0] += 1
        for p in range(4):
            a_, b_ = (TA, TB) if p % 2 == 0 else (TC, TD)
            A("v_accvgpr_read_b32 v%d, a%d" % (a_, acc + 2 * p))
            A("v_accvgpr_read_b32 v%d, a%d" % (b_, acc + 2 * p + 1))
            if scale:
                A("v_mul_f32 v%d, s%d, v%d" % (a_, S_C, a_))
                A("v_mul_f32 v%d, s%d, v%d" % (b_, S_C, b_))
            A("v_cvt_pk_bf16_f32 v%d, v%d, v%d" % (P + p, a_, b_))
        A("s_add_u32 s%d, s%d, 0x%x" % (S_E3, S_E2, soff_base))
        A("buffer_store_dwordx4 %s, v%d, s[%d:%d], s%d offen%s%s" % (vr(P, 4), addr, S_WS, S_WS + 3, S_E3, (" offset:%d" % imm) if imm else "", SC))
        if nrm is not None:
            for p in range(4):
                A("v_dot2_f32_bf16 v%d, v%d, v%d, %s" % (nrm, P + p, P + p, "0" if p == 0 else "v%d" % nrm))
    head_part(A_ACC1 + 16, False, N[2], V_L16, WS_KF, 0)
    head_part(A_ACC1 + 24, False, N[3], V_L16, WS_KF + 65536, 0)
    head_part(A_ACC1 + 32, False, None, VADDR, WS_VF, 0)
    head_part(A_ACC1 + 40, False, None, VADDR, WS_VF, 512)
    head_part(A_ACC1 + 0, True, N[0], V_L16, WS_QF, 0)
    head_part(A_ACC1 + 8, True, N[1], V_L16, WS_QF + 65536, 0)
    A("s_nop 2")
    A("s_nop 0 ; MARK")
    lane_reduce(A, N, [TA, TB, TC, TD], "v_add_f32", "v_max_f32")
    A("s_lshl_b32 s%d, s%d, 8" % (S_E2, S_E0))
    A("s_lshl_b32 s%d, s%d, 2" % (S_E3, S_E1))
    A("s_add_u32 s%d, s%d, s%d" % (S_E2, S_E2, S_E3))
    A("s_add_u32 s%d, s%d, 0x%x" % (S_E2, S_E2, WS_NQ))
    A("v_mov_b32 v%d, 0" % TA)
    A("s_add_u32 s%d, s%d, 0x%x" % (S_E3, S_E2, WS_NK - WS_NQ))
    A("s_mov_b64 exec, 1")
    A("buffer_store_dword v%d, v%d, s[%d:%d], s%d offen%s" % (N[0], TA, S_WS, S_WS + 3, S_E2, SC))
    A("buffer_store_dword v%d, v%d, s[%d:%d], s%d offen offset:256%s" % (N[1], TA, S_WS, S_WS + 3, S_E2, SC))
    A("buffer_store_dword v%d, v%d, s[%d:%d], s%d offen%s" % (N[2], TA, S_WS, S_WS + 3, S_E3, SC))
    A("buffer_store_dword v%d, v%d, s[%d:%d], s%d offen offset:256%s" % (N[3], TA, S_WS, S_WS + 3, S_E3, SC))
    A("s_mov_b64 exec, -1")

def gate(A):
    A.comment("gate: 32 rows per wave")
    S_GS = 44
    srd(A, S_GS, P_GW, 1024)
    GW = 160; G = 32
    N = list(range(164, 172)); T = list(range(172, 180))
    A("buffer_load_dwordx4 %s, v%d, s[%d:%d], 0 offen" % (vr(GW, 4), V_L16, S_GS, S_GS + 3))
    A("s_lshl_b32 s%d, s%d, 7" % (S_T0, S_RB2))
    A("s_lshl_b32 s%d, s%d, 5" % (S_T1, S_WAVE))
    A("s_add_u32 s%d, s%d, s%d" % (S_T0, S_T0, S_T1))
    A("s_lshl_b32 s%d, s%d, 10" % (S_T1, S_T0))
    for r in range(32):
        A("buffer_load_dwordx4 %s, v%d, s[%d:%d], s%d offen offset:%d" % (vr(G + 4 * r, 4), V_L16, S_AX, S_AX + 3, S_T1, (r & 3) * 1024))
        if (r & 3) == 3: A("s_add_u32 s%d, s%d, 4096" % (S_T1, S_T1))
    A("s_mov_b32 s%d, 0x%x" % (S_C, f32bits(-1.4426950408889634)))
    A("s_lshl_b32 s%d, s%d, 2" % (S_T1, S_T0))
    A("s_add_u32 s%d, s%d, 0x%x" % (S_T1, S_T1, WS_G))
    A("v_mov_b32 v%d, 0" % V_T)
    for b in range(4):
        A("s_waitcnt vmcnt(%d)" % (24 - 8 * b + 8 * b))
        for p in range(4):
            for x in range(8):
                A("v_dot2_f32_bf16 v%d, v%d, v%d, %s" % (N[x], G + 32 * b + 4 * x + p, GW + p, "0" if p == 0 else "v%d" % N[x]))
        A("s_nop 2")
        lane_reduce(A, N, T, "v_add_f32", "v_add_f32")
        for x in range(8): A("v_mul_f32 v%d, s%d, v%d" % (N[x], S_C, N[x]))
        for x in range(8): A("v_exp_f32 v%d, v%d" % (N[x], N[x]))
        for x in range(8): A("v_add_f32 v%d, 1.0, v%d" % (N[x], N[x]))
        for x in range(8): A("v_rcp_f32 v%d, v%d" % (N[x], N[x]))
        A("s_mov_b64 exec, 1")
        for x in range(8):
            A("buffer_store_dword v%d, v%d, s[%d:%d], s%d offen offset:%d%s" % (N[x], V_T, S_WS, S_WS + 3, S_T1, 32 * b + 4 * x, SC))
        A("s_mov_b64 exec, -1")
        A("s_nop 1")

P2_X0, P2_X1, P2_W = 32, 36, 40
def p2_read_list(hs):
    s_, mat = hs >> 1, hs & 1
    L = []
    if mat == 0:
        L.append("ds_read_b128 %s, v%d" % (vr(P2_X0 if (s_ & 1) == 0 else P2_X1, 4), RA.XR + s_))
    F = P2_W + 12 * (hs & 3)
    for u in range(3):
        for q in range(2):
            L.append("ds_read_b64_tr_b16 %s, v%d offset:%d" % (vr(F + 4 * u + 2 * q, 2), RA.WR, 16384 + mat * 12288 + s_ * 3072 + q * 768 + u * 64))
    return L
def p2_mfma_list(hs, zero=False):
    s_, mat = hs >> 1, hs & 1
    X = P2_X0 if (s_ & 1) == 0 else P2_X1
    F = P2_W + 12 * (hs & 3)
    return [mfma(vr(V_ACC2 + 48 * mat + 16 * u, 16), vr(F + 4 * u, 4), vr(X, 4), "0" if zero else vr(V_ACC2 + 48 * mat + 16 * u, 16)) for u in range(3)]
def p2_chunk(A, hook=None, extra=None, zero=False):
    ex = split(extra or [], 24)
    for hs in range(8):
        if hs == 4:
            if hook: hook(0)
            A("s_barrier")
            if hook: hook(1)
        if hs == 6:
            adv_slot(A, S_SLR)
            set_read_addrs(A)
        A("s_waitcnt lgkmcnt(%d)" % (7 if ((hs + 1) & 1) == 0 else 6))
        ms = p2_mfma_list(hs, zero and hs < 2); rs = p2_read_list((hs + 2) & 7)
        k = 0
        for i, m in enumerate(ms):
            A(m)
            cnt = (len(rs) * (i + 1)) // 3 - (len(rs) * i) // 3
            for _ in range(cnt):
                A(rs[k]); k += 1
            for l in ex[3 * hs + i]: A(l)

def atomic_split(lines):
    return lines

def p2(A):
    A.comment("==== P2: FFN up (B waves) ====")
    RA.XR, RA.WR = 88, 92
    A("s_mov_b32 s%d, 0" % S_SLR)
    set_read_addrs(A)
    emit(A, p2_read_list(0)); emit(A, p2_read_list(1))
    def w9(ph):
        if ph == 0: A("s_waitcnt vmcnt(0)")
    p2_chunk(A, hook=w9, zero=True)
    loop(A, "P2_L", 7, lambda: p2_chunk(A))
    A("s_waitcnt lgkmcnt(0)")

def p2_epilogue(A, items_a, items_b):
    A.comment("P2 epilogue: GEGLU (+ interleaved attention loads)")
    c1 = -2.0 * 0.7978845608028654 * 1.4426950408889634
    c2 = c1 * 0.044715
    A("s_mov_b32 s%d, 0x%x" % (S_C, f32bits(c2)))
    A("s_mov_b32 s%d, 0x%x" % (S_C + 1, f32bits(c2)))
    A("s_mov_b32 s%d, 1.0" % (S_C + 2))
    A("s_mov_b32 s%d, 1.0" % (S_C + 3))
    C1 = 40
    A("v_mov_b32 v%d, 0x%x" % (C1, f32bits(c1)))
    A("v_mov_b32 v%d, 0x%x" % (C1 + 1, f32bits(c1)))
    A("s_lshl_b32 s%d, s%d, 2" % (S_T0, S_RB2))
    A("s_add_u32 s%d, s%d, s%d" % (S_T0, S_T0, S_WAVE))
    A("s_mul_i32 s%d, s%d, 86" % (S_T0, S_T0))
    A("s_mul_i32 s%d, s%d, 6" % (S_T1, S_CG2))
    A("s_add_u32 s%d, s%d, s%d" % (S_T0, S_T0, S_T1))
    A("s_lshl_b32 s%d, s%d, 10" % (S_T0, S_T0))
    A("s_add_u32 s%d, s%d, 0x%x" % (S_T0, S_T0, WS_HF))
    A("s_cmp_eq_u32 s%d, 15" % S_CG2)
    A("s_cselect_b32 s%d, 0x40000000, s%d" % (S_T0, S_T0))
    T = 32
    pa = split(items_a, 16); pb = split(items_b, 32)
    slots = pa + pb
    blk = [0]
    def slot():
        for it in slots[blk[0]]: emit(A, it)
        blk[0] += 1
    for u in range(3):
        G = V_ACC2 + 16 * u; U = V_ACC2 + 48 + 16 * u
        for grp in range(2):
            prs = [G + 8 * grp + 2 * i for i in range(4)]
            tm = [T + 2 * i for i in range(4)]
            for g, t in zip(prs, tm): A("v_pk_mul_f32 %s, %s, %s" % (vr(t, 2), vr(g, 2), vr(g, 2)))
            slot()
            for g, t in zip(prs, tm): A("v_pk_fma_f32 %s, %s, %s, %s" % (vr(t, 2), vr(t, 2), sr(S_C, 2), vr(C1, 2)))
            slot()
            for g, t in zip(prs, tm): A("v_pk_mul_f32 %s, %s, %s" % (vr(t, 2), vr(t, 2), vr(g, 2)))
            slot()
            for g, t in zip(prs, tm):
                A("v_exp_f32 v%d, v%d" % (t, t)); A("v_exp_f32 v%d, v%d" % (t + 1, t + 1))
            slot()
            for g, t in zip(prs, tm): A("v_pk_add_f32 %s, %s, %s" % (vr(t, 2), vr(t, 2), sr(S_C + 2, 2)))
            slot()
            for g, t in zip(prs, tm):
                A("v_rcp_f32 v%d, v%d" % (t, t)); A("v_rcp_f32 v%d, v%d" % (t + 1, t + 1))
            slot()
            for g, t in zip(prs, tm): A("v_pk_mul_f32 %s, %s, %s" % (vr(g, 2), vr(g, 2), vr(U + (g - G), 2)))
            slot()
            for g, t in zip(prs, tm): A("v_pk_mul_f32 %s, %s, %s" % (vr(t, 2), vr(t, 2), vr(g, 2)))
            P = 48 + 4 * grp + 8 * (u & 1)
            for i, t in enumerate(tm): A("v_cvt_pk_bf16_f32 v%d, v%d, v%d" % (P + i, t, t + 1))
            A("buffer_store_dwordx4 %s, v%d, s[%d:%d], s%d offen offset:%d%s" % (vr(P, 4), V_L16, S_WS, S_WS + 3, S_T0, grp * 1024, SC))
            slot()
        A("s_add_u32 s%d, s%d, 2048" % (S_T0, S_T0))
        if u == 0:
            A("s_cmp_eq_u32 s%d, 14" % S_CG2)
            A("s_cselect_b32 s%d, 0x40000000, s%d" % (S_T0, S_T0))

V_FL, V_DO, V_RA, V_FLG, V_VOFF, V_MXA = 6, 7, 8, 10, 12, 13
V_NRM = 14
V_S = [16, 32]
V_C = 48
V_P = 64
V_Q, V_QN = 72, 76
V_K = 80
V_O = 112
V_ACCB = 128
V_ACT = 160
V_WF = 176
A_V = 0
OSLOT = 2304
L_OB = 0
L_W = 73728
L_MX = L_W + 65536
NT = 8
V_FL4 = 0

def tile(A, t, extra=None, oinit=False):
    S = V_S[t & 1]; Sp = V_S[(t + 1) & 1]
    e = lambda i: "v_exp_f32 v%d, v%d" % (S + i, S + i)
    c = lambda j: "v_cvt_pk_bf16_f32 v%d, v%d, v%d" % (V_P + j, S + 2 * j, S + 2 * j + 1)
    c7p = "v_cvt_pk_bf16_f32 v%d, v%d, v%d" % (V_P + 7, Sp + 14, Sp + 15)
    tp = (t - 1) % NT
    pvb = mfma(vr(V_O, 16), ar(A_V + 4 * (2 * tp + 1), 4), vr(V_P + 4, 4), vr(V_O, 16))
    pva = mfma(vr(V_O, 16), ar(A_V + 4 * (2 * t), 4), vr(V_P, 4), "0" if (t == 0 and not oinit) else vr(V_O, 16))
    tn = (t + 1) % NT
    qk = mfma(vr(Sp, 16), vr(V_K + 4 * tn, 4), vr(V_Q, 4), vr(V_C, 16))
    seq = [e(0), c7p, e(1), e(2), pvb, c(0), e(3), e(4), c(1), qk, e(5), e(6), c(2), e(7), e(8), c(3), e(9), e(10), None if oinit else pva,
           c(4), e(11), e(12), c(5), "X", e(13), e(14), c(6), e(15), "END"]
    extra = extra or {}
    for i, ins in enumerate(seq):
        for l in extra.get(i, []): A(l)
        if ins == "X":
            for l in extra.get("x", []): A(l)
        elif ins == "END":
            if oinit:
                A("WAITDS:OI")
                A(pva)
        elif ins is not None:
            A(ins)

def flush_lines(slot):
    o = slot * OSLOT
    return ["ds_write_b128 v%d, %s offset:%d" % (V_FL, vr(V_O, 4), o),
            "ds_write_b128 v%d, %s offset:%d" % (V_FL, vr(V_O + 4, 4), o + 1024),
            "ds_write_b32 v%d, v%d offset:%d" % (V_FL4, V_O + 8, o + 2048)]
def oinit_lines(slot):
    o = slot * OSLOT
    return ["ds_read_b128 %s, v%d offset:%d" % (vr(V_O, 4), V_FL, o),
            "ds_read_b128 %s, v%d offset:%d" % (vr(V_O + 4, 4), V_FL, o + 1024),
            "ds_read_b32 v%d, v%d offset:%d" % (V_O + 8, V_FL4, o + 2048)]

S_KO, S_VO = S_GX, S_GW0
def attn_loads_pre(A):
    t0, t1 = V_T, V_T + 1
    A("v_lshlrev_b32 v%d, 2, v%d" % (t0, V_LANE))
    A("s_lshl_b32 s%d, s%d, 8" % (S_T0, S_HEAD))
    A("s_add_u32 s%d, s%d, 0x%x" % (S_T1, S_T0, WS_NK))
    A("buffer_load_dword v%d, v%d, s[%d:%d], s%d offen%s" % (V_NRM, t0, S_WS, S_WS + 3, S_T1, SC))
    A("v_and_b32 v%d, 7, v%d" % (t1, V_LANE))
    A("v_lshlrev_b32 v%d, 2, v%d" % (t1, t1))
    A("s_lshl_b32 s%d, s%d, 5" % (S_T2, S_QB))
    A("s_add_u32 s%d, s%d, s%d" % (S_T1, S_T0, S_T2))
    A("s_add_u32 s%d, s%d, 0x%x" % (S_T1, S_T1, WS_NQ))
    A("buffer_load_dword v%d, v%d, s[%d:%d], s%d offen%s" % (V_NRM + 1, t1, S_WS, S_WS + 3, S_T1, SC))
    A("s_lshl_b32 s%d, s%d, 16" % (S_T0, S_HEAD))
    A("s_lshl_b32 s%d, s%d, 13" % (S_T1, S_QB))
    A("s_add_u32 s%d, s%d, s%d" % (S_QOFF, S_T0, S_T1))
    A("s_lshr_b32 s%d, s%d, 2" % (S_T1, S_W8))
    A("s_lshl_b32 s%d, s%d, 12" % (S_T1, S_T1))
    A("s_add_u32 s%d, s%d, s%d" % (S_QOFF, S_QOFF, S_T1))
    A("s_add_u32 s%d, s%d, 0x%x" % (S_QOFF, S_QOFF, WS_QF))
    A("buffer_load_dwordx4 %s, v%d, s[%d:%d], s%d offen%s" % (vr(V_Q, 4), V_L16, S_WS, S_WS + 3, S_QOFF, SC))
    A("s_lshl_b32 s%d, s%d, 14" % (S_T1, S_WAVE))
    A("s_add_u32 s%d, s%d, s%d" % (S_T1, S_T1, S_T0))
    A("s_add_u32 s%d, s%d, 0x%x" % (S_KO, S_T1, WS_KF))
    A("s_add_u32 s%d, s%d, 0x%x" % (S_VO, S_T1, WS_VF))
    Z = V_QN
    for r in range(4): A("v_mov_b32 v%d, 0" % (Z + r))
    A("v_mov_b32 v%d, 0x3f803f80" % (t0))
    A("s_nop 0")
    for r in range(16): A("v_accvgpr_write_b32 a%d, v%d" % (A_V + r, t0))
    A("s_nop 1")
    for g in range(1, 4):
        A(mfma(ar(A_V + 16 * g, 16), vr(Z, 4), vr(Z, 4), ar(A_V, 16)))
    A("v_lshrrev_b32 v%d, 5, v%d" % (t0, V_LANE))
    A("v_lshlrev_b32 v%d, 8, v%d" % (t0, t0))
    A("v_and_b32 v%d, 15, v%d" % (t1, V_LANE))
    A("v_lshlrev_b32 v%d, 4, v%d" % (t1, t1))
    A("v_add_u32 v%d, v%d, v%d" % (V_VOFF, t0, t1))
    A("s_mov_b32 s%d, 0x0000ffff" % S_EXM)
    A("s_mov_b32 s%d, 0x0000ffff" % (S_EXM + 1))
    A("s_nop 7")

def k_item(i):
    it = ["buffer_load_dwordx4 %s, v%d, s[%d:%d], s%d offen offset:%d%s" % (vr(V_K + 4 * i, 4), V_L16, S_WS, S_WS + 3, S_KO, (i & 3) * 1024, SC)]
    if i == 3: it.append("s_add_u32 s%d, s%d, 4096" % (S_KO, S_KO))
    return it
def v_item(i):
    it = ["s_mov_b64 exec, s[%d:%d]" % (S_EXM, S_EXM + 1)]
    for g in (2 * i, 2 * i + 1):
        it.append("buffer_load_dwordx4 %s, v%d, s[%d:%d], s%d offen offset:%d%s" % (ar(A_V + 4 * g, 4), V_VOFF, S_WS, S_WS + 3, S_VO, (g & 7) * 512, SC))
    it.append("s_mov_b64 exec, -1")
    if i == 3: it.append("s_add_u32 s%d, s%d, 4096" % (S_VO, S_VO))
    return it

def bound(A):
    M = V_NRM
    lane_reduce(A, [M, M + 1], [V_T, V_T + 1], "v_max_f32", "v_max_f32")
    A("v_mul_f32 v%d, v%d, v%d" % (M, M, M + 1))
    A("v_sqrt_f32 v%d, v%d" % (M, M))
    A("v_mov_b32 v%d, 0x42400000" % (M + 1))
    A("v_cmp_nle_f32 vcc, v%d, v%d" % (M, M + 1))
    A("v_sub_f32 v%d, 0, v%d" % (M, M))
    A("s_nop 1")
    A("s_cmp_lg_u64 vcc, 0")
    A("s_cselect_b32 s%d, 1, 0" % S_SLOW)
    for r in range(16): A("v_mov_b32 v%d, v%d" % (V_C + r, M))

def slow_set_c(A, tag, T, qi):
    A("s_cmp_eq_u32 s%d, 0" % S_SLOW)
    A("s_cbranch_scc1 SLOWC_%s" % tag)
    for kg in range(4):
        A("ds_read_b32 v%d, v%d offset:%d" % (T + kg, V_MXA, kg * 1024 + qi * 128))
    A("s_waitcnt lgkmcnt(0)")
    for kg in range(1, 4):
        A("v_max_f32 v%d, v%d, v%d" % (T, T, T + kg))
    A("v_sub_f32 v%d, 0, v%d" % (T, T))
    A("s_nop 7")
    for r in range(16): A("v_mov_b32 v%d, v%d" % (V_C + r, T))
    A("s_nop 1")
    A("SLOWC_%s:" % tag)

def slow_prepass(A):
    A("s_cmp_eq_u32 s%d, 0" % S_SLOW)
    A("s_cbranch_scc1 SLOWP_END")
    S0 = V_S[0]; MX = V_S[1]; AD = V_S[1] + 6
    A("v_and_b32 v%d, 31, v%d" % (AD, V_LANE))
    A("v_lshlrev_b32 v%d, 2, v%d" % (AD, AD))
    A("s_lshr_b32 s%d, s%d, 2" % (S_T0, S_W8))
    A("s_lshl_b32 s%d, s%d, 9" % (S_T0, S_T0))
    A("s_add_u32 s%d, s%d, %d" % (S_T0, S_T0, L_MX))
    A("v_add_u32 v%d, s%d, v%d" % (V_MXA, S_T0, AD))
    A("s_lshl_b32 s%d, s%d, 10" % (S_T0, S_WAVE))
    A("v_add_u32 v%d, s%d, v%d" % (AD, S_T0, V_MXA))
    for q in range(4): A("v_mov_b32 v%d, 0xff800000" % (MX + q))
    A("s_sub_u32 s%d, s%d, 4096" % (S_T3, S_KO))
    A("s_mov_b32 s%d, 0" % S_I)
    A("SLOWP_H:")
    for t in range(NT):
        A("s_add_u32 s%d, s%d, %d" % (S_T2, S_T3, t * 1024))
        A("buffer_load_dwordx4 %s, v%d, s[%d:%d], s%d offen%s" % (vr(V_K + 4 * t, 4), V_L16, S_WS, S_WS + 3, S_T2, SC))
    for q in range(4):
        A("s_add_u32 s%d, s%d, %d" % (S_T2, S_QOFF, q * 1024))
        A("buffer_load_dwordx4 %s, v%d, s[%d:%d], s%d offen%s" % (vr(V_QN, 4), V_L16, S_WS, S_WS + 3, S_T2, SC))
        A("s_waitcnt vmcnt(0)")
        for t in range(NT):
            A(mfma(vr(S0, 16), vr(V_K + 4 * t, 4), vr(V_QN, 4), "0"))
            A("s_nop 15")
            for r in range(0, 16, 2):
                A("v_max3_f32 v%d, v%d, v%d, v%d" % (MX + q, MX + q, S0 + r, S0 + r + 1))
            A("s_nop 1")
    A("s_add_u32 s%d, s%d, 8192" % (S_T3, S_T3))
    A("s_add_u32 s%d, s%d, 1" % (S_I, S_I))
    A("s_cmp_lt_u32 s%d, 2" % S_I)
    A("s_cbranch_scc1 SLOWP_H")
    for q in range(4):
        A("v_mov_b32 v%d, v%d" % (MX + 4, MX + q))
        A("s_nop 1")
        A("v_permlane32_swap_b32 v%d, v%d" % (MX + q, MX + 4))
        A("s_nop 1")
        A("v_max_f32 v%d, v%d, v%d" % (MX + q, MX + q, MX + 4))
        A("ds_write_b32 v%d, v%d offset:%d" % (AD, MX + q, q * 128))
    A("s_sub_u32 s%d, s%d, 4096" % (S_T3, S_KO))
    for t in range(NT):
        A("s_add_u32 s%d, s%d, %d" % (S_T2, S_T3, t * 1024))
        A("buffer_load_dwordx4 %s, v%d, s[%d:%d], s%d offen%s" % (vr(V_K + 4 * t, 4), V_L16, S_WS, S_WS + 3, S_T2, SC))
    A("s_waitcnt vmcnt(0) lgkmcnt(0)")
    A("s_barrier")
    slow_set_c(A, "P", V_S[1] + 8, 0)
    A("SLOWP_END:")

S_HSRD = 8
S_WD = 12
S_OUT = 16
def tail_setup(A):
    t0, t1, t2 = V_T, V_T + 1, V_T + 2
    A("s_and_b32 s%d, s2, 7" % S_T0)
    A("s_lshr_b32 s%d, s2, 3" % S_T1)
    A("s_lshl_b32 s%d, s%d, 2" % (S_RB3, S_T0))
    A("s_and_b32 s%d, s%d, 3" % (S_T2, S_T1))
    A("s_add_u32 s%d, s%d, s%d" % (S_RB3, S_RB3, S_T2))
    A("s_lshr_b32 s%d, s%d, 2" % (S_CB3, S_T1))
    A("v_lshrrev_b32 v%d, 3, v%d" % (t0, V_LANE))
    A("v_lshlrev_b32 v%d, 10, v%d" % (t0, t0))
    A("v_lshrrev_b32 v%d, 4, v%d" % (t1, V_LANE))
    A("v_and_b32 v%d, 1, v%d" % (t1, t1))
    A("v_lshlrev_b32 v%d, 2, v%d" % (t1, t1))
    A("v_and_b32 v%d, 7, v%d" % (t2, V_LANE))
    A("v_xor_b32 v%d, v%d, v%d" % (t1, t1, t2))
    A("v_lshlrev_b32 v%d, 4, v%d" % (t1, t1))
    A("v_add_u32 v%d, v%d, v%d" % (V_DO, t0, t1))
    A("s_lshl_b32 s%d, s%d, 13" % (S_LB, S_W8))
    A("s_add_u32 s%d, s%d, %d" % (S_LB, S_LB, L_W))
    A("v_and_b32 v%d, 15, v%d" % (t0, V_LANE))
    A("v_lshrrev_b32 v%d, 2, v%d" % (t0, t0))
    A("v_lshrrev_b32 v%d, 5, v%d" % (t1, V_LANE))
    A("v_lshlrev_b32 v%d, 2, v%d" % (t1, t1))
    A("v_add_u32 v%d, v%d, v%d" % (t1, t1, t0))
    A("v_lshlrev_b32 v%d, 7, v%d" % (t1, t1))
    A("v_lshrrev_b32 v%d, 1, v%d" % (t0, t0))
    A("v_lshlrev_b32 v%d, 6, v%d" % (t0, t0))
    A("v_add_u32 v%d, v%d, v%d" % (t1, t1, t0))
    A("v_lshrrev_b32 v%d, 4, v%d" % (t0, V_LANE))
    A("v_and_b32 v%d, 1, v%d" % (t0, t0))
    A("v_lshlrev_b32 v%d, 5, v%d" % (t0, t0))
    A("v_add_u32 v%d, v%d, v%d" % (t1, t1, t0))
    A("v_and_b32 v%d, 3, v%d" % (t0, V_LANE))
    A("v_lshlrev_b32 v%d, 3, v%d" % (t0, t0))
    A("v_add_u32 v%d, v%d, v%d" % (t1, t1, t0))
    A("v_add_u32 v%d, s%d, v%d" % (V_RA, S_LB, t1))
    A("v_xor_b32 v%d, 64, v%d" % (V_RA + 1, V_RA))
    A("s_lshl_b32 s%d, s%d, 1" % (S_T0, S_RB3))
    A("s_and_b32 s%d, s%d, 1" % (S_T1, S_W8))
    A("s_add_u32 s%d, s%d, s%d" % (S_T0, S_T0, S_T1))
    A("s_mul_i32 s%d, s%d, 86" % (S_T0, S_T0))
    A("s_lshr_b32 s%d, s%d, 1" % (S_T1, S_W8))
    A("s_mul_i32 s%d, s%d, 24" % (S_T1, S_T1))
    A("s_add_u32 s%d, s%d, s%d" % (S_T0, S_T0, S_T1))
    A("s_lshl_b32 s%d, s%d, 10" % (S_AO, S_T0))
    A("s_lshl_b32 s%d, s%d, 14" % (S_WO0, S_T1))
    A("s_lshl_b32 s%d, s%d, 7" % (S_T2, S_CB3))
    A("s_add_u32 s%d, s%d, s%d" % (S_WO0, S_WO0, S_T2))
    A("s_add_u32 s%d, s%d, 8192" % (S_WO1, S_WO0))
    A("s_lshl_b32 s%d, s%d, 7" % (S_FA, S_RB3))
    A("s_add_u32 s%d, s%d, 0x%x" % (S_FA, S_FA, WS_F2))
    A("v_and_b32 v%d, 31, v%d" % (V_FLG + 1, V_LANE))
    A("v_lshlrev_b32 v%d, 2, v%d" % (V_FLG + 1, V_FLG + 1))
    A("s_lshl_b32 s%d, s%d, 3" % (S_T0, S_WAVE))
    A("s_lshr_b32 s%d, s%d, 2" % (S_T1, S_W8))
    A("s_lshl_b32 s%d, s%d, 2" % (S_T1, S_T1))
    A("s_add_u32 s%d, s%d, s%d" % (S_T0, S_T0, S_T1))
    A("s_mul_i32 s%d, s%d, %d" % (S_T0, S_T0, OSLOT))
    A("v_add_u32 v%d, s%d, v%d" % (V_FL, S_T0, V_L16))
    A("v_lshlrev_b32 v%d, 2, v%d" % (V_FL4, V_LANE))
    A("v_add_u32 v%d, s%d, v%d" % (V_FL4, S_T0, V_FL4))

def tail_srds(A):
    srd(A, S_HSRD, P_WS, HF_BYTES, add=WS_HF)
    srd(A, S_WD, P_WD, 1376 * 1024)
    srd(A, S_OUT, P_OUT, 2048 * 1024)

def sh_load(slot):
    a = ["buffer_load_dwordx4 %s, v%d, s[%d:%d], s%d offen%s" % (vr(V_ACT + 4 * slot, 4), V_L16, S_HSRD, S_HSRD + 3, S_AO, SC),
         "s_add_u32 s%d, s%d, 1024" % (S_AO, S_AO)]
    b = ["s_add_u32 m0, s%d, %d" % (S_LB, slot * 2048), "s_nop 0",
         "buffer_load_dwordx4 v%d, s[%d:%d], s%d offen lds" % (V_DO, S_WD, S_WD + 3, S_WO0), "s_add_u32 s%d, s%d, 16384" % (S_WO0, S_WO0)]
    c = ["s_add_u32 m0, s%d, %d" % (S_LB, slot * 2048 + 1024), "s_nop 0",
         "buffer_load_dwordx4 v%d, s[%d:%d], s%d offen lds" % (V_DO, S_WD, S_WD + 3, S_WO1), "s_add_u32 s%d, s%d, 16384" % (S_WO1, S_WO1)]
    return a, b, c

def w_reads(slot, F):
    return ["ds_read_b64_tr_b16 %s, v%d offset:%d" % (vr(F + 4 * u + 2 * q, 2), V_RA + u, slot * 2048 + q * 1024) for u in range(2) for q in range(2)]

class Track:
    def __init__(self): self.vm = []; self.ds = []
    def resolve(self, A, lines):
        for l in lines:
            if l.startswith("VM:") or l.startswith("DS:"):
                tag, ins = l[3:].split("|", 1)
                (self.vm if l[0] == "V" else self.ds).append(tag); A(ins)
            elif l.startswith("WAITVM:") or l.startswith("WAITDS:"):
                ops = self.vm if l[4] == "V" else self.ds
                tag = l[7:]
                idx = max([k for k, t in enumerate(ops) if t == tag])
                n = len(ops) - 1 - idx
                if l[4] == "V": A("s_waitcnt vmcnt(%d)" % min(n, 63))
                else: A("s_waitcnt lgkmcnt(%d)" % min(n, 15))
            elif l.startswith("NT|"):
                A(l[3:])
            else:
                assert not (l.startswith("buffer_") or l.startswith("ds_") or l.startswith("global_")), l
                A(l)

def vmtag(tag, lines):
    return [("VM:%s|%s" % (tag, l)) if l.startswith("buffer_") else (("DS:%s|%s" % (tag, l)) if l.startswith("ds_") else l) for l in lines]

T_CHECK = 20
T_FIRST = 24
NSTEP = 24
def tau(s): return T_FIRST + (5 * s) // 3

def attn_all(B):
    X1, X2 = 13, 23
    ex = [dict() for _ in range(64)]
    def add(T, k, lines): ex[T].setdefault(k, []).extend(lines)
    add(T_CHECK - 2, 6, ["VM:F|buffer_load_dword v%d, v%d, s[%d:%d], s%d offen sc1" % (V_FLG, V_FLG + 1, S_WS, S_WS + 3, S_FA)])
    add(T_CHECK, 2, ["WAITVM:F", "v_cmp_ne_u32 vcc, s%d, v%d" % (S_NONCE, V_FLG), "s_nop 3", "s_and_b32 vcc_lo, vcc_lo, 0x3fffffff", "s_and_b32 vcc_hi, vcc_hi, 0x3fffffff",
                     "s_cmp_eq_u64 vcc, 0", "s_cbranch_scc1 S2_OK", "s_call_b64 s[0:1], S2_SPIN", "S2_OK:"])
    used = {}
    for s_ in range(NSTEP):
        TL = (T_CHECK + 1 + s_) if s_ < 3 else tau(s_ - 3)
        a, b, c = sh_load(s_ & 3)
        add(TL, 6, vmtag("L%d" % s_, b)); add(TL, 11, vmtag("L%d" % s_, c)); add(TL, 20, vmtag("L%d" % s_, a))
        TR = tau(s_) - 1
        add(TR, 26, ["WAITVM:L%d" % s_] + vmtag("W%d" % s_, w_reads(s_ & 3, V_WF + 8 * (s_ & 1))))
        for u in range(2):
            T = tau(s_) + u
            d = vr(V_ACCB + 16 * u, 16)
            m = mfma(d, vr(V_WF + 8 * (s_ & 1) + 4 * u, 4), vr(V_ACT + 4 * (s_ & 3), 4), d)
            if u == 0:
                add(T, X2, ["WAITDS:W%d" % s_, m]); used[(T, X2)] = 1
            else:
                pos = X1 if (T, X1) not in used and any(tau(k) == T for k in range(NSTEP)) else X2
                add(T, pos, [m]); used[(T, pos)] = 1
    for it in range(8):
        qi = it & 3
        for t in range(NT):
            T = 8 * it + t
            oinit = (it >= 4 and t == 0)
            if t == 0:
                if it > 0:
                    fl = vmtag("O", flush_lines((it - 1) & 3))
                    if oinit: fl = fl + vmtag("OI", oinit_lines(qi))
                    add(T, 17, fl)
                add(T, 2, ["s_add_u32 s%d, s%d, %d" % (S_T0, S_QOFF, ((it + 1) & 3) * 1024),
                           "VM:Q%d|buffer_load_dwordx4 %s, v%d, s[%d:%d], s%d offen%s" % (it, vr(V_QN, 4), V_L16, S_WS, S_WS + 3, S_T0, SC)])
            if it == 3:
                if t == 0: add(T, 3, ["s_add_u32 s%d, s%d, 4096" % (S_KO, S_KO)])
                kl = ["VM:K%d|buffer_load_dwordx4 %s, v%d, s[%d:%d], s%d offen offset:%d%s" % (t, vr(V_K + 4 * t, 4), V_L16, S_WS, S_WS + 3, S_KO, (t & 3) * 1024, SC)]
                if t == 3: kl.append("s_add_u32 s%d, s%d, 4096" % (S_KO, S_KO))
                add(T, 14, kl)
            if (it == 3 and t >= 1) or (it == 4 and t == 0):
                tv = (t - 1) % NT
                vl = []
                if tv == 0 or tv == 4: vl.append("s_add_u32 s%d, s%d, 4096" % (S_VO, S_VO))
                vl.append("s_mov_b64 exec, s[%d:%d]" % (S_EXM, S_EXM + 1))
                for gq in (2 * tv, 2 * tv + 1):
                    vl.append("VM:V%d|buffer_load_dwordx4 %s, v%d, s[%d:%d], s%d offen offset:%d%s" % (tv, ar(A_V + 4 * gq, 4), V_VOFF, S_WS, S_WS + 3, S_VO, (gq & 7) * 512, SC))
                vl.append("s_mov_b64 exec, -1")
                add(T, 7, vl)
            if it == 3 and t == 7: add(T, 8, ["WAITVM:K0"])
            if it == 4:
                if t < 7: add(T, 8, ["WAITVM:K%d" % (t + 1)])
                add(T, 16, ["WAITVM:V%d" % t])
            if t == 7:
                add(T, 1, ["WAITVM:Q%d" % it])
                add(T, 2, ["v_mov_b32 v%d, v%d" % (V_Q + r, V_QN + r) for r in range(4)])
                Bf = Buf(); slow_set_c(Bf, "I%d" % it, V_S[0], (it + 1) & 3)
                for l in Bf.lines:
                    B(("NT|" + l) if l.startswith("ds_") else l)
            e_ = dict(ex[T]);
            if X2 in e_: e_["x"] = e_.pop(X2)
            tile(B, t, e_, oinit)

def s2_spin(A):
    A("S2_SPIN:")
    A("s_mov_b32 s%d, 0" % S_SPIN)
    A("S2_SPIN_L:")
    A("buffer_load_dword v%d, v%d, s[%d:%d], s%d offen sc1" % (V_FLG, V_FLG + 1, S_WS, S_WS + 3, S_FA))
    A("s_waitcnt vmcnt(0)")
    A("v_cmp_ne_u32 vcc, s%d, v%d" % (S_NONCE, V_FLG))
    A("s_add_u32 s%d, s%d, 1" % (S_SPIN, S_SPIN))
    A("s_nop 3")
    A("s_and_b32 vcc_lo, vcc_lo, 0x3fffffff")
    A("s_and_b32 vcc_hi, vcc_hi, 0x3fffffff")
    A("s_cmp_gt_u32 s%d, 400000" % S_SPIN)
    A("s_cbranch_scc1 S2_SPIN_D")
    A("s_cmp_eq_u64 vcc, 0")
    A("s_cbranch_scc1 S2_SPIN_D")
    A("s_sleep 4")
    A("s_branch S2_SPIN_L")
    A("S2_SPIN_D:")
    A("s_setpc_b64 s[0:1]")

def attn_epilogue(A):
    t0 = V_T
    R = 16
    A("s_mul_i32 s%d, s%d, %d" % (S_T0, S_W8, OSLOT))
    A("v_add_u32 v%d, s%d, v%d" % (t0, S_T0, V_L16))
    A("v_lshlrev_b32 v%d, 2, v%d" % (t0 + 1, V_LANE))
    A("v_add_u32 v%d, s%d, v%d" % (t0 + 1, S_T0, t0 + 1))
    for kg in range(4):
        b = R + 12 * kg
        A("ds_read_b128 %s, v%d offset:%d" % (vr(b, 4), t0, kg * 8 * OSLOT))
        A("ds_read_b128 %s, v%d offset:%d" % (vr(b + 4, 4), t0, kg * 8 * OSLOT + 1024))
        A("ds_read_b32 v%d, v%d offset:%d" % (b + 8, t0 + 1, kg * 8 * OSLOT + 2048))
    A("s_lshl_b32 s%d, s%d, 3" % (S_T0, S_QB))
    A("s_add_u32 s%d, s%d, s%d" % (S_T0, S_T0, S_W8))
    A("s_lshl_b32 s%d, s%d, 5" % (S_T0, S_T0))
    A("s_add_u32 s%d, s%d, s%d" % (S_T0, S_T0, S_HEAD))
    A("s_lshl_b32 s%d, s%d, 10" % (S_T0, S_T0))
    A("s_add_u32 s%d, s%d, 0x%x" % (S_T0, S_T0, WS_OF))
    A("s_waitcnt lgkmcnt(0)")
    for r in range(9):
        A("v_add_f32 v%d, v%d, v%d" % (R + r, R + r, R + 12 + r))
        A("v_add_f32 v%d, v%d, v%d" % (R + 24 + r, R + 24 + r, R + 36 + r))
    for r in range(9):
        A("v_add_f32 v%d, v%d, v%d" % (R + r, R + r, R + 24 + r))
    A("v_rcp_f32 v%d, v%d" % (R + 8, R + 8))
    A("s_nop 0")
    for r in range(8):
        A("v_mul_f32 v%d, v%d, v%d" % (R + r, R + r, R + 8))
    P = 64
    for p in range(4):
        A("v_cvt_pk_bf16_f32 v%d, v%d, v%d" % (P + p, R + 2 * p, R + 2 * p + 1))
    A("buffer_store_dwordx4 %s, v%d, s[%d:%d], s%d offen%s" % (vr(P, 4), V_L16, S_WS, S_WS + 3, S_T0, SC))

V_WF8 = 32
V_ACT8 = 96
V_ACCA = 160
V_G = 14
def outproj_prefetch(A):
    srd(A, S_WD, P_WO, 512 * 1024)
    A("s_lshl_b32 s%d, s%d, 16" % (S_WO0, S_W8))
    A("s_lshl_b32 s%d, s%d, 7" % (S_T1, S_CB3))
    A("s_add_u32 s%d, s%d, s%d" % (S_WO0, S_WO0, S_T1))
    A("s_add_u32 s%d, s%d, 8192" % (S_WO1, S_WO0))
    for i in range(4):
        A("s_add_u32 m0, s%d, %d" % (S_LB, i * 2048)); A("s_nop 0")
        A("buffer_load_dwordx4 v%d, s[%d:%d], s%d offen lds" % (V_DO, S_WD, S_WD + 3, S_WO0))
        A("s_add_u32 m0, s%d, %d" % (S_LB, i * 2048 + 1024)); A("s_add_u32 s%d, s%d, 16384" % (S_WO0, S_WO0))
        A("buffer_load_dwordx4 v%d, s[%d:%d], s%d offen lds" % (V_DO, S_WD, S_WD + 3, S_WO1))
        A("s_add_u32 s%d, s%d, 16384" % (S_WO1, S_WO1))
    A("s_and_b32 s%d, s%d, 1" % (S_T1, S_W8))
    A("s_lshl_b32 s%d, s%d, 13" % (S_T1, S_T1))
    A("v_subrev_u32 v%d, s%d, v%d" % (V_RA, S_T1, V_RA))
    A("v_subrev_u32 v%d, s%d, v%d" % (V_RA + 1, S_T1, V_RA + 1))

def outproj(A):
    A("s_lshl_b32 s%d, s%d, 1" % (S_T0, S_RB3))
    A("s_and_b32 s%d, s%d, 1" % (S_T1, S_W8))
    A("s_add_u32 s%d, s%d, s%d" % (S_T0, S_T0, S_T1))
    A("s_lshl_b32 s%d, s%d, 15" % (S_AO, S_T0))
    A("s_lshr_b32 s%d, s%d, 1" % (S_T1, S_W8))
    A("s_lshl_b32 s%d, s%d, 13" % (S_T1, S_T1))
    A("s_add_u32 s%d, s%d, s%d" % (S_AO, S_AO, S_T1))
    A("s_add_u32 s%d, s%d, 0x%x" % (S_AO, S_AO, WS_OF))
    for i in range(8):
        if i == 4: A("s_add_u32 s%d, s%d, 4096" % (S_AO, S_AO))
        A("buffer_load_dwordx4 %s, v%d, s[%d:%d], s%d offen offset:%d%s" % (vr(V_ACT8 + 4 * i, 4), V_L16, S_WS, S_WS + 3, S_AO, (i & 3) * 1024, SC))
    for i in range(8):
        A("s_waitcnt vmcnt(%d)" % (7 - i))
        for u in range(2):
            d = vr(V_ACCA + 16 * u, 16)
            A(mfma(d, vr(V_WF8 + 8 * i + 4 * u, 4), vr(V_ACT8 + 4 * i, 4), "0" if i == 0 else d))

def final(A):
    t0, t1 = V_T, V_T + 1
    A("s_lshl_b32 s%d, s%d, 13" % (S_T0, S_W8))
    A("s_nop 7")
    A("s_nop 3")
    for r in range(32):
        A("v_fmac_f32 v%d, v%d, v%d" % (V_ACCB + r, V_G, V_ACCA + r))
    A("s_lshl_b32 s%d, s%d, 13" % (S_T0, S_W8))
    A("s_add_u32 s%d, s%d, %d" % (S_T0, S_T0, L_W))
    A("v_add_u32 v%d, s%d, v%d" % (t0, S_T0, V_L16))
    for u in range(2):
        for q in range(4):
            A("ds_write_b128 v%d, %s offset:%d" % (t0, vr(V_ACCB + 16 * u + 4 * q, 4), u * 4096 + q * 1024))
    A("s_waitcnt lgkmcnt(0)")
    A("s_barrier")
    A("s_and_b32 s%d, s%d, 1" % (S_T0, S_W8))
    A("s_lshl_b32 s%d, s%d, 13" % (S_T0, S_T0))
    A("s_lshr_b32 s%d, s%d, 1" % (S_T1, S_W8))
    A("s_and_b32 s%d, s%d, 1" % (S_T1, S_T1))
    A("s_lshl_b32 s%d, s%d, 12" % (S_T2, S_T1))
    A("s_add_u32 s%d, s%d, s%d" % (S_T0, S_T0, S_T2))
    A("s_lshr_b32 s%d, s%d, 2" % (S_T2, S_W8))
    A("s_lshl_b32 s%d, s%d, 11" % (S_T3, S_T2))
    A("s_add_u32 s%d, s%d, s%d" % (S_T0, S_T0, S_T3))
    A("s_add_u32 s%d, s%d, %d" % (S_T0, S_T0, L_W))
    A("v_add_u32 v%d, s%d, v%d" % (t0, S_T0, V_L16))
    R = 32
    for kq in range(4):
        for q in range(2):
            A("ds_read_b128 %s, v%d offset:%d" % (vr(R + 8 * kq + 4 * q, 4), t0, kq * 16384 + q * 1024))
    A("v_and_b32 v%d, 31, v%d" % (t1, V_LANE))
    A("v_lshlrev_b32 v%d, 10, v%d" % (t1, t1))
    A("v_lshrrev_b32 v%d, 5, v%d" % (t0 + 2, V_LANE))
    A("v_lshlrev_b32 v%d, 4, v%d" % (t0 + 2, t0 + 2))
    A("v_add_u32 v%d, v%d, v%d" % (t1, t1, t0 + 2))
    A("s_lshl_b32 s%d, s%d, 16" % (S_T0, S_RB3))
    A("s_and_b32 s%d, s%d, 1" % (S_T3, S_W8))
    A("s_lshl_b32 s%d, s%d, 15" % (S_T3, S_T3))
    A("s_add_u32 s%d, s%d, s%d" % (S_T0, S_T0, S_T3))
    A("s_lshl_b32 s%d, s%d, 7" % (S_T3, S_CB3))
    A("s_add_u32 s%d, s%d, s%d" % (S_T0, S_T0, S_T3))
    A("s_lshl_b32 s%d, s%d, 6" % (S_T1, S_T1))
    A("s_add_u32 s%d, s%d, s%d" % (S_T0, S_T0, S_T1))
    A("s_lshl_b32 s%d, s%d, 5" % (S_T2, S_T2))
    A("s_add_u32 s%d, s%d, s%d" % (S_T0, S_T0, S_T2))
    A("s_waitcnt lgkmcnt(0)")
    for r in range(8):
        A("v_add_f32 v%d, v%d, v%d" % (R + r, R + r, R + 8 + r))
        A("v_add_f32 v%d, v%d, v%d" % (R + 16 + r, R + 16 + r, R + 24 + r))
    for r in range(8):
        A("v_add_f32 v%d, v%d, v%d" % (R + r, R + r, R + 16 + r))
    P = 64
    for p in range(4):
        A("v_cvt_pk_bf16_f32 v%d, v%d, v%d" % (P + p, R + 2 * p, R + 2 * p + 1))
    A("s_nop 1")
    A("v_permlane32_swap_b32 v%d, v%d" % (P, P + 2))
    A("v_permlane32_swap_b32 v%d, v%d" % (P + 1, P + 3))
    A("buffer_store_dwordx4 %s, v%d, s[%d:%d], s%d offen" % (vr(P, 4), t1, S_OUT, S_OUT + 3, S_T0))

def nonce_check(A, tag):
    A("v_readfirstlane_b32 s%d, v%d" % (S_NONCE, V_NONCE))
    A("s_nop 3")
    A("s_cmp_lg_u32 s%d, 0" % S_NONCE)
    A("s_cbranch_scc1 NONCE_OK%s" % tag)
    get_nonce(A, tag)
    A("NONCE_OK%s:" % tag)

def zero_ob(A):
    t0 = V_T
    for r in range(4): A("v_mov_b32 v%d, 0" % (32 + r))
    A("s_mul_i32 s%d, s%d, 4608" % (S_T0, S_WAVE))
    A("v_add_u32 v%d, s%d, v%d" % (t0, S_T0, V_L16))
    for k in range(4):
        A("ds_write_b128 v%d, %s offset:%d" % (t0, vr(32, 4), L_OB + k * 1024))
    A("s_mov_b64 exec, 0xffffffff")
    A("ds_write_b128 v%d, %s offset:%d" % (t0, vr(32, 4), L_OB + 4096))
    A("s_mov_b64 exec, -1")
    A("s_waitcnt lgkmcnt(0)")

def attn_setup_common(A):
    slow_prepass(A)
    for r in range(16): A("v_mov_b32 v%d, 0" % (V_S[1] + r))
    for r in range(8): A("v_mov_b32 v%d, 0" % (V_P + r))
    Z = V_QN
    for r in range(4): A("v_mov_b32 v%d, 0" % (Z + r))
    A("s_nop 1")
    A(mfma(vr(V_ACCB, 16), vr(Z, 4), vr(Z, 4), "0"))
    A(mfma(vr(V_ACCB + 16, 16), vr(Z, 4), vr(Z, 4), "0"))
    A(mfma(vr(V_O, 16), vr(Z, 4), vr(Z, 4), "0"))
    A(mfma(vr(V_S[0], 16), vr(V_K, 4), vr(V_Q, 4), vr(V_C, 16)))
    A("s_nop 15")

def build():
    A = BarAsm()
    prologue(A)
    if "sv" in Cfg.exp:
        A("s_mov_b32 s%d, 0" % S_SVI)
        A("v_mov_b32 v13, 0")
        SV.reg = 13
        stampv(A)
        A.on = True
    rstamp(A, S_R0)
    stamp(A, 0)
    A("s_cmp_ge_u32 s%d, 4" % S_W8)
    A("s_cbranch_scc1 K_B")
    role_a(A)
    A("s_branch K_ATT")
    A("K_B:")
    role_b(A)
    A("K_ATT:")
    A.on = False
    SV.reg = 40
    stampv(A)
    stampv_flush(A)
    stamp(A, 7)
    attn_setup_common(A)
    stamp(A, 8)
    B = Buf()
    attn_all(B)
    Track().resolve(A, B.lines)
    A("s_nop 0")
    A("v_cvt_pk_bf16_f32 v%d, v%d, v%d" % (V_P + 7, V_S[1] + 14, V_S[1] + 15))
    A("s_waitcnt vmcnt(0) lgkmcnt(0)")
    A("s_nop 0")
    A(mfma(vr(V_O, 16), ar(A_V + 4 * 15, 4), vr(V_P + 4, 4), vr(V_O, 16)))
    outproj_prefetch(A)
    emit(A, flush_lines(3))
    A("s_waitcnt lgkmcnt(0)")
    stamp(A, 9)
    A("s_barrier")
    attn_epilogue(A)
    A("s_waitcnt vmcnt(0)")
    A("s_lshl_b32 s%d, s%d, 2" % (S_T0, S_QB))
    A("s_lshr_b32 s%d, s%d, 1" % (S_T1, S_W8))
    A("s_add_u32 s%d, s%d, s%d" % (S_T0, S_T0, S_T1))
    A("s_lshl_b32 s%d, s%d, 8" % (S_T0, S_T0))
    A("s_lshl_b32 s%d, s%d, 1" % (S_T1, S_HEAD))
    A("s_and_b32 s%d, s%d, 1" % (S_T2, S_W8))
    A("s_add_u32 s%d, s%d, s%d" % (S_T1, S_T1, S_T2))
    A("s_lshl_b32 s%d, s%d, 2" % (S_T1, S_T1))
    A("s_add_u32 s%d, s%d, s%d" % (S_T0, S_T0, S_T1))
    A("s_add_u32 s%d, s%d, 0x%x" % (S_T0, S_T0, WS_F3))
    store_flag(A, S_T0)
    stamp(A, 10)
    A("s_barrier")
    poll_flags(A, "2g", WS_F2, S_RB3, 0)
    A("v_and_b32 v%d, 31, v%d" % (V_T, V_LANE))
    A("v_lshlrev_b32 v%d, 2, v%d" % (V_T, V_T))
    A("s_lshl_b32 s%d, s%d, 1" % (S_T0, S_RB3))
    A("s_and_b32 s%d, s%d, 1" % (S_T1, S_W8))
    A("s_add_u32 s%d, s%d, s%d" % (S_T0, S_T0, S_T1))
    A("s_lshl_b32 s%d, s%d, 7" % (S_T0, S_T0))
    A("s_add_u32 s%d, s%d, 0x%x" % (S_T0, S_T0, WS_G))
    A("buffer_load_dword v%d, v%d, s[%d:%d], s%d offen%s" % (V_G, V_T, S_WS, S_WS + 3, S_T0, SC))
    for i in range(8):
        emit(A, w_reads(i, V_WF8 + 8 * i))
        if i % 3 == 2: A("s_waitcnt lgkmcnt(0)")
    A("s_waitcnt lgkmcnt(0)")
    A("s_waitcnt vmcnt(0)")
    A("v_sub_f32 v%d, 1.0, v%d" % (V_G + 1, V_G))
    for r in range(32):
        A("v_mul_f32 v%d, v%d, v%d" % (V_ACCB + r, V_G + 1, V_ACCB + r))
    A("s_cmp_lg_u32 s%d, 0" % S_W8)
    A("s_cbranch_scc1 S3_SKIP")
    poll_flags(A, "3", WS_F3, S_RB3, 0, 64)
    A("S3_SKIP:")
    A("s_barrier")
    stamp(A, 11)
    outproj(A)
    final(A)
    stamp(A, 12)
    rstamp(A, S_R1)
    stamp_flush(A, 13)
    A("s_waitcnt vmcnt(0)")
    A("K_END:")
    A("s_endpgm")
    s2_spin(A)
    return A.text()

def write(fn, stamps=False):
    Cfg.stamps = stamps
    body = build()
    t, d = kernel_text(NAME + "_kernel", body, vgpr=192, agpr=64)
    t += "K_CODE_END:\n.set CODE_BYTES, K_CODE_END - %s_kernel\n" % NAME
    txt = file_text([(None, 256, 512, 163840)], [(t, d)])
    open(fn, "w").write(txt)
    return txt

if __name__ == "__main__":
    import hazard, sys
    if len(sys.argv) > 1:
        for e in sys.argv[1:]:
            Cfg.exp = set(e.split("+"))
            Cfg.prio_b = 1 if "pb1" in Cfg.exp else 0
            write("mk10_x_%s.s" % e, True)
        sys.exit(0)
    for st in (False, True):
        txt = write("mk10_st.s" if st else "mk10.s", st)
        hazard.check(txt)
```

```python
from gen import *
import struct

WS_QF = 0x0000000
WS_KF = 0x0200000
WS_VF = 0x0400000
WS_OF = 0x0600000
WS_HF = 0x0800000
HF_BYTES = 64 * 86 * 1024
WS_NQ = 0x0E00000
WS_NK = 0x0E02000
WS_G  = 0x0E04000
WS_F1 = 0x0E10000
WS_F2 = 0x0E11000
WS_F3 = 0x0E13000
WS_ST = 0x1700000
WS_SIZE = 0x1800000
QSCALE = 0.25 * 1.4426950408889634
def f32bits(x): return struct.unpack("<I", struct.pack("<f", x))[0]

class Cfg:
    stamps = False
    exp = set()
    prio_b = 1
    prio_t = 28
    dp = False
    noendwait = True
    outmod = ''
    dp2 = False
    dpsleep = 1
    dplight = False
    t2 = True
    t2touch = True
    m1b = 0.3
    map2 = False
    btouch = False
    ptouch = None
    zrows = True
    ct0 = True
    wtouch = False
    trans = 'm1'
    bz = True
    early = 13
SC = " sc1"

S_AX, S_B1, S_B2, S_B3, S_WS = 4, 8, 12, 16, 20
S_W8, S_WAVE = 24, 25
S_RB1, S_CG1, S_KC1, S_XB1, S_WB1, S_WX1 = 26, 27, 28, 29, 30, 31
S_RB2, S_CG2, S_KC2, S_XB2, S_WB2, S_WX2, S_WW2 = 32, 33, 34, 35, 36, 37, 38
S_I, S_SLI, S_SLR = 39, 40, 41
S_GX, S_GW0, S_GW1, S_GM, S_GM2 = 42, 43, 44, 45, 46
S_T0, S_T1, S_T2, S_T3 = 48, 49, 50, 51
S_C = 52
S_NONCE = 56
S_HEAD, S_QB, S_QOFF, S_SLOW = 57, 58, 59, 60
S_SPIN = 61
S_EXM = 62
S_PTR = 64
P_AX, P_WQKV, P_WO, P_BX, P_WG, P_WU, P_WD, P_GW, P_OUT, P_DBG, P_WS = [S_PTR + 2 * i for i in range(11)]
S_ST = 86
S_R0, S_R1 = 39 + 62, 3
S_RB3, S_CB3, S_LB, S_AO, S_WO0, S_WO1, S_FA = 70, 71, 66, 72, 73, 74, 75
S_HF = 8

def srd(A, d, p, nbytes, add=0):
    if add:
        A("s_add_u32 s%d, s%d, 0x%x" % (d, p, add))
        A("s_addc_u32 s%d, s%d, 0" % (d + 1, p + 1))
    else:
        A("s_mov_b32 s%d, s%d" % (d, p))
        A("s_mov_b32 s%d, s%d" % (d + 1, p + 1))
    A("s_mov_b32 s%d, 0x%x" % (d + 2, nbytes))
    A("s_mov_b32 s%d, 0x00020000" % (d + 3))

def stamp(A, idx):
    if not Cfg.stamps: return
    A("s_memtime s[%d:%d]" % (S_ST, S_ST + 1))
    A("s_waitcnt lgkmcnt(0)")
    A("s_mov_b32 s%d, s%d" % (S_ST + 2 + idx, S_ST))
V_STV = 10
class SV: reg = 10
def stampv(A, idx=None):
    if "sv" not in Cfg.exp: return
    A("s_memtime s[%d:%d]" % (S_ST, S_ST + 1))
    A("s_waitcnt lgkmcnt(0)")
    if idx is None:
        A("v_cmp_eq_u32 vcc, s%d, v%d" % (S_SVI, V_LANE))
        A("v_mov_b32 v%d, s%d" % (V_T + 1, S_ST))
        A("s_add_u32 s%d, s%d, 1" % (S_SVI, S_SVI))
        A("s_nop 1")
        A("v_cndmask_b32 v%d, v%d, v%d, vcc" % (SV.reg, SV.reg, V_T + 1))
def stampv_flush(A):
    if "sv" not in Cfg.exp: return
    A("s_lshl_b32 s%d, s2, 3" % (S_ST + 1))
    A("s_add_u32 s%d, s%d, s%d" % (S_ST + 1, S_ST + 1, S_W8))
    A("s_lshl_b32 s%d, s%d, 8" % (S_ST + 1, S_ST + 1))
    A("s_add_u32 s%d, s%d, 0x%x" % (S_ST + 1, S_ST + 1, WS_ST + 0x80000))
    A("v_lshlrev_b32 v%d, 2, v%d" % (V_T, V_LANE))
    A("buffer_store_dword v%d, v%d, s[%d:%d], s%d offen" % (40, V_T, S_WS, S_WS + 3, S_ST + 1))
S_SVI = 100
def rstamp(A, sreg):
    if not Cfg.stamps: return
    A("s_memrealtime s[%d:%d]" % (S_ST, S_ST + 1))
    A("s_waitcnt lgkmcnt(0)")
    A("s_mov_b32 s%d, s%d" % (sreg, S_ST))
def stamp_flush(A, n):
    if not Cfg.stamps: return
    A("s_lshl_b32 s%d, s2, 3" % (S_ST + 1))
    A("s_add_u32 s%d, s%d, s%d" % (S_ST + 1, S_ST + 1, S_W8))
    A("s_lshl_b32 s%d, s%d, 7" % (S_ST + 1, S_ST + 1))
    A("s_add_u32 s%d, s%d, 0x%x" % (S_ST + 1, S_ST + 1, WS_ST))
    A("v_mov_b32 v11, 0")
    A("s_mov_b64 exec, 1")
    for i in range(n):
        A("v_mov_b32 v10, s%d" % (S_ST + 2 + i))
        A("buffer_store_dword v10, v11, s[%d:%d], s%d offen offset:%d" % (S_WS, S_WS + 3, S_ST + 1, 4 * i))
    A("v_mov_b32 v10, s%d" % S_R0)
    A("buffer_store_dword v10, v11, s[%d:%d], s%d offen offset:%d" % (S_WS, S_WS + 3, S_ST + 1, 4 * 14))
    A("v_mov_b32 v10, s%d" % S_R1)
    A("buffer_store_dword v10, v11, s[%d:%d], s%d offen offset:%d" % (S_WS, S_WS + 3, S_ST + 1, 4 * 15))
    A("s_mov_b64 exec, -1")

def emit(A, lines):
    for l in lines: A(l)
def mfma(d, a_, b_, c):
    return "v_mfma_f32_32x32x16_bf16 %s, %s, %s, %s" % (d, a_, b_, c)
def loop(A, name, count, body):
    A("s_mov_b32 s%d, 0" % S_I)
    A(name + ":")
    body()
    A("s_add_u32 s%d, s%d, 1" % (S_I, S_I))
    A("s_cmp_lt_u32 s%d, %d" % (S_I, count))
    A("s_cbranch_scc1 " + name)
def split(lines, n):
    return [lines[(len(lines) * i) // n:(len(lines) * (i + 1)) // n] for i in range(n)]
class BarAsm(Asm):
    on = False
    def __call__(self, txt):
        Asm.__call__(self, txt)
        if self.on and txt.strip() == "s_barrier":
            self.on = False
            stampv(self)
            self.on = True
class Buf:
    def __init__(self): self.lines = []
    def __call__(self, t):
        for l in t.split("\n"):
            if l.strip(): self.lines.append(l.strip())
    def comment(self, t): pass

V_LANE, V_L16 = 1, 2
V_T = 3
V_XO1, V_WO1 = 14, 16
V_XO2, V_WO2 = 17, 21
V_XA, V_WA = 24, 28
V_NONCE = 29
V_TCH = 30
V_F = 32
V_ACC1 = 96
V_ACC2 = 96
SLOT = 40960
NSLOT = 4
NTOUCH = 3
class RA:
    XR, WR = 144, 148

def x_dma_offsets(A, dst, n_instr, rowbase_wave):
    t0, t1, t2 = V_T, V_T + 1, V_T + 2
    for n in range(n_instr):
        A("v_lshrrev_b32 v%d, 3, v%d" % (t0, V_LANE))
        A("s_mul_i32 s%d, s%d, %d" % (S_T0, S_WAVE, rowbase_wave))
        A("s_add_u32 s%d, s%d, %d" % (S_T0, S_T0, 8 * n))
        A("v_add_u32 v%d, s%d, v%d" % (t0, S_T0, t0))
        A("v_lshrrev_b32 v%d, 1, v%d" % (t1, t0))
        A("v_and_b32 v%d, 7, v%d" % (t1, t1))
        A("v_and_b32 v%d, 7, v%d" % (t2, V_LANE))
        A("v_xor_b32 v%d, v%d, v%d" % (t1, t1, t2))
        A("v_lshlrev_b32 v%d, 4, v%d" % (t1, t1))
        A("v_lshlrev_b32 v%d, 10, v%d" % (t0, t0))
        A("v_add_u32 v%d, v%d, v%d" % (dst + n, t0, t1))

def x_read_addrs(A, s_rowtile):
    t0, t1, t2 = V_T, V_T + 1, V_T + 2
    A("v_and_b32 v%d, 31, v%d" % (t0, V_LANE))
    A("s_lshl_b32 s%d, s%d, 5" % (S_T0, s_rowtile))
    A("v_add_u32 v%d, s%d, v%d" % (t0, S_T0, t0))
    A("v_lshrrev_b32 v%d, 1, v%d" % (t1, t0))
    A("v_and_b32 v%d, 7, v%d" % (t1, t1))
    A("v_lshrrev_b32 v%d, 5, v%d" % (t2, V_LANE))
    A("v_xor_b32 v%d, v%d, v%d" % (t1, t1, t2))
    A("v_lshlrev_b32 v%d, 7, v%d" % (t0, t0))
    for s_ in range(4):
        A("v_xor_b32 v%d, %d, v%d" % (t2, 2 * s_, t1))
        A("v_lshlrev_b32 v%d, 4, v%d" % (t2, t2))
        A("v_add_u32 v%d, v%d, v%d" % (V_XA + s_, t0, t2))

def adv_slot(A, sreg):
    A("s_add_u32 s%d, s%d, %d" % (sreg, sreg, SLOT))
    A("s_cmp_eq_u32 s%d, %d" % (sreg, NSLOT * SLOT))
    A("s_cselect_b32 s%d, 0, s%d" % (sreg, sreg))

def dma_lines(m0base, m0add, voff, srdn, soff, imm=0):
    return ["s_add_u32 m0, s%d, %d" % (m0base, m0add), "s_nop 0",
            "buffer_load_dwordx4 v%d, s[%d:%d], s%d offen%s lds" % (voff, srdn, srdn + 3, soff, (" offset:%d" % imm) if imm else "")]

def issue_group_merged(A, typ, lines):
    B = Buf(); issue_group(B, typ)
    blocks, cur = [], []
    for l in B.lines:
        cur.append(l)
        if l.startswith("buffer_load"): blocks.append(cur); cur = []
    parts = split(lines, len(blocks))
    for b, p in zip(blocks, parts):
        emit(A, b); emit(A, p)
    emit(A, cur)

def issue_group(A, typ):
    if typ == 1:
        emit(A, ["s_lshl_b32 s%d, s%d, 7" % (S_GX, S_KC1), "s_add_u32 s%d, s%d, s%d" % (S_GX, S_GX, S_XB1),
              "s_mul_i32 s%d, s%d, %d" % (S_GW0, S_KC1, 64 * 3072), "s_add_u32 s%d, s%d, s%d" % (S_GW0, S_GW0, S_WB1),
              "s_add_u32 s%d, s%d, %d" % (S_GW1, S_GW0, 8 * 3072),
              "s_add_u32 s%d, s%d, s%d" % (S_GM, S_SLI, S_WX1),
              "s_add_u32 s%d, s%d, 1" % (S_KC1, S_KC1), "s_and_b32 s%d, s%d, 7" % (S_KC1, S_KC1)])
        for n in range(2): emit(A, dma_lines(S_GM, n * 1024, V_XO1 + n, S_AX, S_GX))
        for t in range(3):
            for n in range(2):
                emit(A, dma_lines(S_GM, 8192 + t * 8192 + n * 1024 - t * 1024, V_WO1, S_B1, S_GW0 if n == 0 else S_GW1, t * 1024))
    else:
        emit(A, ["s_lshl_b32 s%d, s%d, 7" % (S_GX, S_KC2), "s_add_u32 s%d, s%d, s%d" % (S_GX, S_GX, S_XB2),
              "s_mul_i32 s%d, s%d, %d" % (S_GW0, S_KC2, 64 * 2752), "s_add_u32 s%d, s%d, s%d" % (S_GW0, S_GW0, S_WB2),
              "s_add_u32 s%d, s%d, s%d" % (S_GM, S_SLI, S_WX2),
              "s_add_u32 s%d, s%d, s%d" % (S_GM2, S_SLI, S_WW2),
              "s_add_u32 s%d, s%d, 1" % (S_KC2, S_KC2), "s_and_b32 s%d, s%d, 7" % (S_KC2, S_KC2)])
        for n in range(4): emit(A, dma_lines(S_GM, n * 1024, V_XO2 + n, S_AX, S_GX))
        for mat in range(2):
            for e in range(3):
                emit(A, dma_lines(S_GM2, mat * 12288 + e * 1024, V_WO2 + e, S_B2 if mat == 0 else S_B3, S_GW0))
    adv_slot(A, S_SLI)

def set_read_addrs(A):
    for s_ in range(4):
        A("v_add_u32 v%d, s%d, v%d" % (RA.XR + s_, S_SLR, V_XA + s_))
    A("v_add_u32 v%d, s%d, v%d" % (RA.WR, S_SLR, V_WA))

def interleave(A, ms, rs):
    n = len(ms); k = 0
    for i, m in enumerate(ms):
        A(m)
        cnt = (len(rs) * (i + 1)) // n - (len(rs) * i) // n
        for _ in range(cnt):
            A(rs[k]); k += 1

def p1_read_list(s_, F):
    L = ["ds_read_b128 %s, v%d" % (vr(F, 4), RA.XR + s_)]
    for t in range(3):
        for q in range(2):
            L.append("ds_read_b64_tr_b16 %s, v%d offset:%d" % (vr(F + 4 + 4 * t + 2 * q, 2), RA.WR, t * 8192 + s_ * 2048 + q * 512))
    return L
A_ACC1 = 0
def p1_mfma_list(F):
    return [mfma(ar(A_ACC1, 16), vr(F + 4, 4), vr(F, 4), ar(A_ACC1, 16)),
            mfma(ar(A_ACC1 + 16, 16), vr(F + 8, 4), vr(F, 4), ar(A_ACC1 + 16, 16)),
            mfma(ar(A_ACC1 + 32, 16), vr(F, 4), vr(F + 12, 4), ar(A_ACC1 + 32, 16))]
def p1_chunk(A):
    for s_ in range(4):
        if Cfg.ptouch and s_ == 0: w_touch(A, 0, "g")
        if Cfg.ptouch and s_ == 2: w_touch(A, 1, "u")
        if s_ == 2:
            A("s_barrier")
            adv_slot(A, S_SLR)
            set_read_addrs(A)
        A("s_waitcnt lgkmcnt(7)")
        interleave(A, p1_mfma_list(V_F + 16 * s_), p1_read_list((s_ + 2) & 3, V_F + 16 * ((s_ + 2) & 3)))

def setup_ids(A):
    A("s_and_b32 s%d, s2, 7" % S_T0)
    A("s_lshr_b32 s%d, s2, 3" % S_T1)
    if not Cfg.map2:
        A("s_lshr_b32 s%d, s%d, 1" % (S_RB1, S_T0))
        A("s_lshl_b32 s%d, s%d, 3" % (S_RB1, S_RB1))
        A("s_and_b32 s%d, s%d, 7" % (S_T2, S_T1))
        A("s_add_u32 s%d, s%d, s%d" % (S_RB1, S_RB1, S_T2))
        A("s_and_b32 s%d, s%d, 1" % (S_CG1, S_T0))
        A("s_lshl_b32 s%d, s%d, 2" % (S_CG1, S_CG1))
        A("s_lshr_b32 s%d, s%d, 3" % (S_T2, S_T1))
        A("s_add_u32 s%d, s%d, s%d" % (S_CG1, S_CG1, S_T2))
        A("s_lshl_b32 s%d, s%d, 1" % (S_T2, S_T2))
        A("s_add_u32 s%d, s%d, s%d" % (S_KC1, S_T1, S_T2))
        A("s_and_b32 s%d, s%d, 7" % (S_KC1, S_KC1))
    else:
        A("s_lshr_b32 s%d, s%d, 2" % (S_RB1, S_T0))
        A("s_lshl_b32 s%d, s%d, 4" % (S_RB1, S_RB1))
        A("s_and_b32 s%d, s%d, 15" % (S_T2, S_T1))
        A("s_add_u32 s%d, s%d, s%d" % (S_RB1, S_RB1, S_T2))
        A("s_and_b32 s%d, s%d, 3" % (S_CG1, S_T0))
        A("s_lshl_b32 s%d, s%d, 1" % (S_CG1, S_CG1))
        A("s_lshr_b32 s%d, s%d, 4" % (S_T2, S_T1))
        A("s_add_u32 s%d, s%d, s%d" % (S_CG1, S_CG1, S_T2))
        A("s_lshl_b32 s%d, s%d, 2" % (S_T2, S_T2))
        A("s_add_u32 s%d, s%d, s%d" % (S_KC1, S_T1, S_T2))
        A("s_and_b32 s%d, s%d, 7" % (S_KC1, S_KC1))
    A("s_lshl_b32 s%d, s%d, 16" % (S_XB1, S_RB1))
    A("s_lshl_b32 s%d, s%d, 7" % (S_WB1, S_CG1))
    A("s_lshl_b32 s%d, s%d, 11" % (S_WX1, S_WAVE))
    if not Cfg.map2:
        A("s_lshr_b32 s%d, s%d, 1" % (S_RB2, S_T0))
        A("s_lshl_b32 s%d, s%d, 2" % (S_RB2, S_RB2))
        A("s_and_b32 s%d, s%d, 3" % (S_T2, S_T1))
        A("s_add_u32 s%d, s%d, s%d" % (S_RB2, S_RB2, S_T2))
        A("s_and_b32 s%d, s%d, 1" % (S_CG2, S_T0))
        A("s_lshl_b32 s%d, s%d, 3" % (S_CG2, S_CG2))
        A("s_lshr_b32 s%d, s%d, 2" % (S_T3, S_T1))
        A("s_add_u32 s%d, s%d, s%d" % (S_CG2, S_CG2, S_T3))
        A("s_lshl_b32 s%d, s%d, 1" % (S_T2, S_T2))
        A("s_add_u32 s%d, s%d, s%d" % (S_KC2, S_T3, S_T2))
        A("s_and_b32 s%d, s%d, 7" % (S_KC2, S_KC2))
    else:
        A("s_lshr_b32 s%d, s%d, 2" % (S_RB2, S_T0))
        A("s_lshl_b32 s%d, s%d, 3" % (S_RB2, S_RB2))
        A("s_and_b32 s%d, s%d, 7" % (S_T2, S_T1))
        A("s_add_u32 s%d, s%d, s%d" % (S_RB2, S_RB2, S_T2))
        A("s_and_b32 s%d, s%d, 3" % (S_CG2, S_T0))
        A("s_lshl_b32 s%d, s%d, 2" % (S_CG2, S_CG2))
        A("s_lshr_b32 s%d, s%d, 3" % (S_T3, S_T1))
        A("s_add_u32 s%d, s%d, s%d" % (S_CG2, S_CG2, S_T3))
        A("s_lshl_b32 s%d, s%d, 1" % (S_T3, S_T3))
        A("s_add_u32 s%d, s%d, s%d" % (S_KC2, S_T2, S_T3))
        A("s_and_b32 s%d, s%d, 7" % (S_KC2, S_KC2))
    A("s_lshl_b32 s%d, s%d, 17" % (S_XB2, S_RB2))
    A("s_mul_i32 s%d, s%d, 192" % (S_WB2, S_CG2))
    A("s_lshl_b32 s%d, s%d, 12" % (S_WX2, S_WAVE))
    A("s_mul_i32 s%d, s%d, 3072" % (S_WW2, S_WAVE))
    A("s_add_u32 s%d, s%d, 16384" % (S_WW2, S_WW2))
    A("s_lshl_b32 s%d, s%d, 2" % (S_HEAD, S_T0))
    A("s_and_b32 s%d, s%d, 3" % (S_T2, S_T1))
    A("s_add_u32 s%d, s%d, s%d" % (S_HEAD, S_HEAD, S_T2))
    A("s_lshr_b32 s%d, s%d, 2" % (S_QB, S_T1))

def w_read_base(A, rowbytes, swz):
    t0, t1 = V_T, V_T + 1
    A("v_and_b32 v%d, 15, v%d" % (t0, V_LANE))
    A("v_lshrrev_b32 v%d, 2, v%d" % (t0, t0))
    A("v_lshrrev_b32 v%d, 5, v%d" % (t1, V_LANE))
    A("v_lshlrev_b32 v%d, 3, v%d" % (t1, t1))
    A("v_add_u32 v%d, v%d, v%d" % (t1, t1, t0))
    A("v_mul_u32_u24 v%d, %d, v%d" % (t1, rowbytes, t1))
    if swz:
        A("v_lshrrev_b32 v%d, 1, v%d" % (t0, t0))
        A("s_and_b32 s%d, s%d, 1" % (S_T2, S_WAVE))
        A("v_xor_b32 v%d, s%d, v%d" % (t0, S_T2, t0))
        A("v_lshlrev_b32 v%d, 6, v%d" % (t0, t0))
        A("v_add_u32 v%d, v%d, v%d" % (t1, t1, t0))
    A("v_lshrrev_b32 v%d, 4, v%d" % (t0, V_LANE))
    A("v_and_b32 v%d, 1, v%d" % (t0, t0))
    A("v_lshlrev_b32 v%d, 5, v%d" % (t0, t0))
    A("v_add_u32 v%d, v%d, v%d" % (t1, t1, t0))
    A("v_and_b32 v%d, 3, v%d" % (t0, V_LANE))
    A("v_lshlrev_b32 v%d, 3, v%d" % (t0, t0))
    A("v_add_u32 v%d, v%d, v%d" % (t1, t1, t0))
    if swz: A("v_add_u32 v%d, 8192, v%d" % (V_WA, t1))
    else: A("v_mov_b32 v%d, v%d" % (V_WA, t1))

def prologue(A):
    A("s_cmp_ge_u32 s2, 256")
    A("s_cbranch_scc1 K_END")
    if Cfg.ct0:
        A("s_getpc_b64 s[%d:%d]" % (S_T2, S_T3))
        A("CODE_REF0:")
        A("s_lshr_b32 s%d, s2, 3" % S_T0)
        A("v_lshrrev_b32 v%d, 5, v0" % V_T)
        A("s_lshl_b32 s%d, s%d, 4" % (S_T0, S_T0))
        A("s_sub_u32 s%d, s%d, CODE_REF0 - %s_kernel" % (S_T2, S_T2, NAME))
        A("v_add_u32 v%d, s%d, v%d" % (V_T, S_T0, V_T))
        A("s_subb_u32 s%d, s%d, 0" % (S_T3, S_T3))
        A("v_lshlrev_b32 v%d, 7, v%d" % (V_T, V_T))
        A("v_min_u32 v%d, CODE_BYTES - 4, v%d" % (V_T, V_T))
        A("global_load_dword v%d, v%d, s[%d:%d]" % (V_TCH, V_T, S_T2, S_T3))
    A("s_load_dwordx16 s[%d:%d], s[0:1], 0" % (S_PTR, S_PTR + 15))
    A("s_load_dwordx4 s[%d:%d], s[0:1], 64" % (S_PTR + 16, S_PTR + 19))
    A("s_load_dwordx2 s[%d:%d], s[0:1], 80" % (S_PTR + 20, S_PTR + 21))
    A("v_lshrrev_b32 v%d, 6, v0" % V_T)
    A("v_and_b32 v%d, 63, v0" % V_LANE)
    A("v_readfirstlane_b32 s%d, v%d" % (S_W8, V_T))
    A("v_lshlrev_b32 v%d, 4, v%d" % (V_L16, V_LANE))
    A("s_nop 0")
    A("s_and_b32 s%d, s%d, 3" % (S_WAVE, S_W8))
    setup_ids(A)

def publish_nonce(A):
    A("s_cmp_lg_u32 s2, 0")
    A("s_cbranch_scc1 NONCE_SKIP")
    A("s_cmp_lg_u32 s%d, 0" % S_W8)
    A("s_cbranch_scc1 NONCE_SKIP")
    A("s_memrealtime s[%d:%d]" % (S_T0, S_T1))
    A("s_waitcnt lgkmcnt(0)")
    A("s_or_b32 s%d, s%d, 1" % (S_T0, S_T0))
    A("v_mov_b32 v%d, s%d" % (V_T, S_T0))
    A("v_mov_b32 v%d, 0" % (V_T + 1))
    A("s_mov_b64 exec, 1")
    A("global_store_dword v%d, v%d, s[%d:%d] sc1" % (V_T + 1, V_T, P_DBG, P_DBG + 1))
    A("s_mov_b64 exec, -1")
    A("NONCE_SKIP:")

def get_nonce(A, tag):
    A("s_mov_b32 s%d, 0" % S_SPIN)
    A("v_mov_b32 v%d, 0" % (V_T + 1))
    A("NONCE_L%s:" % tag)
    A("global_load_dword v%d, v%d, s[%d:%d] sc1" % (V_T, V_T + 1, P_DBG, P_DBG + 1))
    A("s_waitcnt vmcnt(0)")
    A("v_readfirstlane_b32 s%d, v%d" % (S_NONCE, V_T))
    A("s_add_u32 s%d, s%d, 1" % (S_SPIN, S_SPIN))
    A("s_cmp_gt_u32 s%d, 400000" % S_SPIN)
    A("s_cbranch_scc1 NONCE_D%s" % tag)
    A("s_cmp_eq_u32 s%d, 0" % S_NONCE)
    A("s_cbranch_scc1 NONCE_L%s" % tag)
    A("NONCE_D%s:" % tag)

def store_flag(A, s_off):
    A("v_mov_b32 v%d, s%d" % (V_T, S_NONCE))
    A("v_mov_b32 v%d, 0" % (V_T + 1))
    A("s_mov_b64 exec, 1")
    A("buffer_store_dword v%d, v%d, s[%d:%d], s%d offen sc1" % (V_T, V_T + 1, S_WS, S_WS + 3, s_off))
    A("s_mov_b64 exec, -1")

def set_flag(A, tag, base, s_line, s_idx):
    A("s_cmp_lg_u32 s%d, 0" % S_W8)
    A("s_cbranch_scc1 FLAG_SKIP%s" % tag)
    A("s_lshl_b32 s%d, s%d, 7" % (S_T0, s_line))
    A("s_lshl_b32 s%d, s%d, 2" % (S_T1, s_idx))
    A("s_add_u32 s%d, s%d, s%d" % (S_T0, S_T0, S_T1))
    A("s_add_u32 s%d, s%d, 0x%x" % (S_T0, S_T0, base))
    store_flag(A, S_T0)
    A("FLAG_SKIP%s:" % tag)

def poll_flags(A, tag, base, s_line, shift=0, n=32):
    t0, t1 = V_T, V_T + 1
    A("s_lshr_b32 s%d, s%d, %d" % (S_T0, s_line, shift))
    A("s_lshl_b32 s%d, s%d, %d" % (S_T0, S_T0, 7 if n == 32 else 8))
    A("s_add_u32 s%d, s%d, 0x%x" % (S_T0, S_T0, base))
    A("v_and_b32 v%d, %d, v%d" % (t1, n - 1, V_LANE))
    A("v_lshlrev_b32 v%d, 2, v%d" % (t1, t1))
    A("s_mov_b32 s%d, 0" % S_SPIN)
    A("POLL_L%s:" % tag)
    A("buffer_load_dword v%d, v%d, s[%d:%d], s%d offen sc1" % (t0, t1, S_WS, S_WS + 3, S_T0))
    A("s_waitcnt vmcnt(0)")
    A("v_cmp_ne_u32 vcc, s%d, v%d" % (S_NONCE, t0))
    A("s_add_u32 s%d, s%d, 1" % (S_SPIN, S_SPIN))
    A("s_cmp_gt_u32 s%d, 400000" % S_SPIN)
    A("s_cbranch_scc1 POLL_D%s" % tag)
    A("s_cmp_eq_u64 vcc, 0")
    A("s_cbranch_scc1 POLL_D%s" % tag)
    A("s_sleep 2")
    A("s_branch POLL_L%s" % tag)
    A("POLL_D%s:" % tag)

def touches(A):
    t0 = V_T
    A("s_getpc_b64 s[%d:%d]" % (S_T2, S_T3))
    A("CODE_REF:")
    A("s_sub_u32 s%d, s%d, CODE_REF - %s_kernel" % (S_T2, S_T2, NAME))
    A("s_subb_u32 s%d, s%d, 0" % (S_T3, S_T3))
    A("s_lshr_b32 s%d, s2, 3" % S_T0)
    A("s_lshl_b32 s%d, s%d, 2" % (S_T0, S_T0))
    A("s_add_u32 s%d, s%d, s%d" % (S_T0, S_T0, S_WAVE))
    A("s_lshl_b32 s%d, s%d, 9" % (S_T0, S_T0))
    A("v_and_b32 v%d, 3, v%d" % (t0, V_LANE))
    A("v_lshlrev_b32 v%d, 7, v%d" % (t0, t0))
    A("v_add_u32 v%d, s%d, v%d" % (t0, S_T0, t0))
    A("v_min_u32 v%d, CODE_BYTES - 4, v%d" % (t0, t0))
    A("global_load_dword v%d, v%d, s[%d:%d]" % (V_TCH, t0, S_T2, S_T3))

S_TOFF = 47
def w_touch_addr(A):
    t0, t1, t2 = V_T, V_T + 1, V_T + 2
    A("s_lshr_b32 s%d, s2, 3" % S_T0)
    A("s_lshl_b32 s%d, s%d, 2" % (S_T0, S_T0))
    A("s_add_u32 s%d, s%d, s%d" % (S_T0, S_T0, S_WAVE))
    A("s_lshl_b32 s%d, s%d, 6" % (S_T0, S_T0))
    A("v_add_u32 v%d, s%d, v%d" % (t0, S_T0, V_LANE))
    A("v_mul_u32_u24 v%d, 20165, v%d" % (t1, t0))
    A("v_lshrrev_b32 v%d, 18, v%d" % (t1, t1))
    A("v_mul_u32_u24 v%d, 13, v%d" % (t2, t1))
    A("v_sub_u32 v%d, v%d, v%d" % (t2, t0, t2))
    A("v_mul_u32_u24 v%d, 2752, v%d" % (t1, t1))
    A("v_lshlrev_b32 v%d, 7, v%d" % (t2, t2))
    A("v_add_u32 v%d, v%d, v%d" % (31, t1, t2))
    A("s_and_b32 s%d, s2, 1" % S_T0)
    A("s_mul_i32 s%d, s%d, 1536" % (S_TOFF, S_T0))

def w_touch(A, which, tag):
    A("s_cmp_lg_u32 s%d, %d" % (S_I, Cfg.ptouch[which]))
    A("s_cbranch_scc1 PT_%s" % tag)
    srdn = S_B2 if which == 0 else S_B3
    A("buffer_load_dword v29, v31, s[%d:%d], s%d offen" % (srdn, srdn + 3, S_TOFF))
    A("PT_%s:" % tag)

def w_touches(A):
    pass

def p2_dma_setup(A):
    t0, t1, t2 = V_T, V_T + 1, V_T + 2
    x_dma_offsets(A, V_XO2, 4, 32)
    for e in range(3):
        A("v_add_u32 v%d, %d, v%d" % (t0, 64 * e, V_LANE))
        A("v_mul_u32_u24 v%d, 171, v%d" % (t1, t0))
        A("v_lshrrev_b32 v%d, 11, v%d" % (t1, t1))
        A("v_mul_u32_u24 v%d, 12, v%d" % (t2, t1))
        A("v_sub_u32 v%d, v%d, v%d" % (t2, t0, t2))
        A("s_lshl_b32 s%d, s%d, 4" % (S_T0, S_WAVE))
        A("v_add_u32 v%d, s%d, v%d" % (t1, S_T0, t1))
        A("v_mul_u32_u24 v%d, 2752, v%d" % (t1, t1))
        A("v_lshlrev_b32 v%d, 4, v%d" % (t2, t2))
        A("v_add_u32 v%d, v%d, v%d" % (V_WO2 + e, t1, t2))

def all_srds(A):
    A("s_waitcnt lgkmcnt(0)")
    srd(A, S_AX, P_AX, 2048 * 1024)
    srd(A, S_B1, P_WQKV, 512 * 3072)
    srd(A, S_B2, P_WG, 512 * 2752)
    srd(A, S_B3, P_WU, 512 * 2752)
    srd(A, S_WS, P_WS, WS_SIZE)

def role_b(A):
    A.comment("==== B waves: P1 loader ====")
    t0, t1, t2 = V_T, V_T + 1, V_T + 2
    x_dma_offsets(A, V_XO1, 2, 16)
    A("v_lshrrev_b32 v%d, 3, v%d" % (t0, V_LANE))
    A("s_lshl_b32 s%d, s%d, 4" % (S_T0, S_WAVE))
    A("v_add_u32 v%d, s%d, v%d" % (t0, S_T0, t0))
    A("v_mul_u32_u24 v%d, 3072, v%d" % (t0, t0))
    A("v_lshrrev_b32 v%d, 4, v%d" % (t1, V_LANE))
    A("v_and_b32 v%d, 1, v%d" % (t1, t1))
    A("v_lshlrev_b32 v%d, 2, v%d" % (t1, t1))
    A("v_and_b32 v%d, 7, v%d" % (t2, V_LANE))
    A("v_xor_b32 v%d, v%d, v%d" % (t1, t1, t2))
    A("v_lshlrev_b32 v%d, 4, v%d" % (t1, t1))
    A("v_add_u32 v%d, v%d, v%d" % (V_WO1, t0, t1))
    all_srds(A)
    A("s_mov_b32 s%d, 0" % S_SLI)
    loop(A, "LD_PRO", 2, lambda: issue_group(A, 1))
    nt = 0
    if Cfg.btouch:
        w_touch_addr(A)
        A("buffer_load_dword v30, v31, s[%d:%d], s%d offen" % (S_B2, S_B2 + 3, S_TOFF))
        A("buffer_load_dword v30, v31, s[%d:%d], s%d offen" % (S_B3, S_B3 + 3, S_TOFF))
        nt = 2
    p2_dma_setup(A)
    x_read_addrs(A, S_WAVE)
    w_read_base(A, 192, False)
    tail_setup(A)
    stamp(A, 1)
    A("s_waitcnt vmcnt(%d)" % (8 + nt)); A("s_barrier")
    stamp(A, 2)
    issue_group(A, 1)
    if not Cfg.ct0: touches(A)
    A("s_waitcnt vmcnt(%d)" % ((8 if Cfg.ct0 else 9) + nt)); A("s_barrier")
    issue_group(A, 1)
    def la():
        A("s_waitcnt vmcnt(8)"); A("s_barrier"); issue_group(A, 1)
    loop(A, "LD_A", 4, la)
    A("v_mov_b32 v%d, 0" % (V_T + 2))
    A("global_load_dword v%d, v%d, s[%d:%d] sc1" % (V_NONCE, V_T + 2, P_DBG, P_DBG + 1))
    A("s_cmp_eq_u32 s%d, 15" % S_CG2)
    A("s_cbranch_scc1 B_GATE")
    A("s_waitcnt vmcnt(9)"); A("s_barrier"); issue_group(A, 2)
    A("s_waitcnt vmcnt(10)"); A("s_barrier"); issue_group(A, 2)
    A("s_waitcnt vmcnt(10)"); A("s_barrier")
    stamp(A, 3)
    nonce_check(A, "b1")
    p2(A)
    tail_srds(A)
    if Cfg.bz: A("s_barrier")
    A("s_branch B_C1")
    A("B_GATE:")
    A("s_waitcnt vmcnt(9)"); A("s_barrier")
    A("s_waitcnt vmcnt(0)"); A("s_barrier")
    A("s_barrier")
    nonce_check(A, "b2")
    tail_srds(A)
    if Cfg.bz: A("s_barrier")
    gate(A)
    A("B_C1:")
    A("s_setprio 3")
    stamp(A, 5)
    A("s_mov_b32 s%d, 0" % S_SPIN)
    s1_flag_load(A)
    attn_pre_valu(A)
    A("s_waitcnt vmcnt(0)")
    s1_check(A, "c")
    stamp(A, 6)
    attn_pre_loads(A)
    p2_epilogue(A, [k_item(i) for i in range(4)] + [v_item(i) for i in range(4)], [v_item(i) for i in range(4, 8)] + [k_item(i) for i in range(4, 8)])
    A("s_waitcnt vmcnt(0)")
    A("s_lshl_b32 s%d, s%d, 1" % (S_T0, S_RB2))
    A("s_lshr_b32 s%d, s%d, 1" % (S_T1, S_WAVE))
    A("s_add_u32 s%d, s%d, s%d" % (S_T0, S_T0, S_T1))
    A("s_lshl_b32 s%d, s%d, 7" % (S_T0, S_T0))
    A("s_lshl_b32 s%d, s%d, 1" % (S_T1, S_CG2))
    A("s_and_b32 s%d, s%d, 1" % (S_T2, S_WAVE))
    A("s_add_u32 s%d, s%d, s%d" % (S_T1, S_T1, S_T2))
    A("s_lshl_b32 s%d, s%d, 2" % (S_T1, S_T1))
    A("s_add_u32 s%d, s%d, s%d" % (S_T0, S_T0, S_T1))
    A("s_add_u32 s%d, s%d, 0x%x" % (S_T0, S_T0, WS_F2))
    store_flag(A, S_T0)
    bound(A)
    A("s_setprio %d" % Cfg.prio_b)
    if "sv" in Cfg.exp: A("v_mov_b32 v40, v%d" % SV.reg)

V_F1 = 14
def s1_addr(A):
    A("s_lshr_b32 s%d, s%d, 2" % (S_T0, S_HEAD))
    A("s_lshl_b32 s%d, s%d, 9" % (S_T0, S_T0))
    A("s_add_u32 s%d, s%d, 0x%x" % (S_T0, S_T0, WS_F1))
    A("v_lshlrev_b32 v%d, 3, v%d" % (V_T + 2, V_LANE))

def s1_flag_load(A):
    s1_addr(A)
    A("buffer_load_dwordx2 %s, v%d, s[%d:%d], s%d offen sc1" % (vr(V_F1, 2), V_T + 2, S_WS, S_WS + 3, S_T0))

def s1_check(A, tag):
    A("S1_CK%s:" % tag)
    A("v_cmp_ne_u32 vcc, s%d, v%d" % (S_NONCE, V_F1))
    A("v_cmp_ne_u32 s[%d:%d], s%d, v%d" % (S_T2, S_T3, S_NONCE, V_F1 + 1))
    A("s_nop 3")
    A("s_or_b64 vcc, vcc, s[%d:%d]" % (S_T2, S_T3))
    A("s_cmp_eq_u64 vcc, 0")
    A("s_cbranch_scc1 S1_OK%s" % tag)
    A("s_add_u32 s%d, s%d, 1" % (S_SPIN, S_SPIN))
    A("s_cmp_gt_u32 s%d, 400000" % S_SPIN)
    A("s_cbranch_scc1 S1_OK%s" % tag)
    A("s_sleep 2")
    s1_flag_load(A)
    A("s_waitcnt vmcnt(0)")
    A("s_branch S1_CK%s" % tag)
    A("S1_OK%s:" % tag)

def s1_poll(A, tag):
    A("s_mov_b32 s%d, 0" % S_SPIN)
    s1_flag_load(A)
    A("s_waitcnt vmcnt(0)")
    s1_check(A, tag)

def s1_set(A):
    A("s_lshl_b32 s%d, s%d, 5" % (S_T0, S_CG1))
    A("s_add_u32 s%d, s%d, s%d" % (S_T0, S_T0, S_RB1))
    A("s_lshl_b32 s%d, s%d, 2" % (S_T0, S_T0))
    A("s_add_u32 s%d, s%d, s%d" % (S_T0, S_T0, S_WAVE))
    A("s_lshl_b32 s%d, s%d, 2" % (S_T0, S_T0))
    A("s_add_u32 s%d, s%d, 0x%x" % (S_T0, S_T0, WS_F1))
    store_flag(A, S_T0)

def o_sentinels(A):
    for r in range(4): A("v_mov_b32 v%d, -1" % (32 + r))
    A("s_lshl_b32 s%d, s%d, 3" % (S_T0, S_QB))
    A("s_lshl_b32 s%d, s%d, 1" % (S_T1, S_WAVE))
    A("s_add_u32 s%d, s%d, s%d" % (S_T0, S_T0, S_T1))
    A("s_lshl_b32 s%d, s%d, 5" % (S_T0, S_T0))
    A("s_add_u32 s%d, s%d, s%d" % (S_T0, S_T0, S_HEAD))
    A("s_lshl_b32 s%d, s%d, 10" % (S_T0, S_T0))
    A("s_add_u32 s%d, s%d, 0x%x" % (S_T0, S_T0, WS_OF))
    A("s_add_u32 s%d, s%d, 32768" % (S_T1, S_T0))
    A("buffer_store_dwordx4 %s, v%d, s[%d:%d], s%d offen%s" % (vr(32, 4), V_L16, S_WS, S_WS + 3, S_T0, SC))
    A("buffer_store_dwordx4 %s, v%d, s[%d:%d], s%d offen%s" % (vr(32, 4), V_L16, S_WS, S_WS + 3, S_T1, SC))
    A("s_nop 1")

def role_a(A):
    A.comment("==== A waves: P1 compute ====")
    RA.XR, RA.WR = 144, 148
    A("s_lshr_b32 s%d, s%d, 1" % (S_T1, S_WAVE))
    x_read_addrs(A, S_T1)
    w_read_base(A, 128, True)
    for r in range(48):
        A("v_accvgpr_write_b32 a%d, 0" % (A_ACC1 + r))
    A("s_mov_b32 s%d, 0" % S_SLR)
    set_read_addrs(A)
    p2_dma_setup(A)
    all_srds(A)
    publish_nonce(A)
    tail_setup(A)
    g0 = 13 if Cfg.trans == 'v3' else 10
    A("s_add_u32 s%d, s%d, %d" % (S_KC2, S_KC2, g0 - 8))
    A("s_and_b32 s%d, s%d, 7" % (S_KC2, S_KC2))
    A("s_mov_b32 s%d, %d" % (S_SLI, (g0 % 4) * SLOT))
    if Cfg.ptouch: w_touch_addr(A)
    if Cfg.dp: o_sentinels(A)
    if "touch" in Cfg.exp: w_touches(A)
    stamp(A, 1)
    A("s_barrier")
    stamp(A, 2)
    emit(A, p1_read_list(0, V_F)); emit(A, p1_read_list(1, V_F + 16))
    loop(A, "P1_L", 8, lambda: p1_chunk(A))
    A("s_waitcnt lgkmcnt(0)")
    stamp(A, 3)
    A("v_mov_b32 v%d, 0" % (V_T + 2))
    A("global_load_dword v%d, v%d, s[%d:%d] sc1" % (V_NONCE, V_T + 2, P_DBG, P_DBG + 1))
    E = Buf(); p1_epilogue(E)
    L = E.lines
    A("s_cmp_eq_u32 s%d, 15" % S_CG2)
    A("s_cbranch_scc1 A_GATE")
    n1 = 40; n2 = [k_ for k_, l_ in enumerate(L) if "MARK" in l_][0]
    nm = [k_ for k_, l_ in enumerate(L) if "MARK" in l_][0]
    body, tail = L[:nm], L[nm:]
    if Cfg.trans == 'v3':
        n1 = len(body) * 1 // 2
        A("s_nop 7")
        emit(A, body[:n1])
        A("s_barrier")
        emit(A, body[n1:])
        emit(A, tail)
        A("s_barrier")
        A("s_waitcnt vmcnt(0)")
        stamp(A, 4)
        nonce_check(A, "a1")
        s1_set(A)
        A("s_barrier")
        issue_group(A, 2)
        A("s_barrier")
        issue_group(A, 2)
        A("s_waitcnt vmcnt(10)"); A("s_barrier")
    else:
        if Cfg.m1b is None:
            n1, n2 = len(body) * 2 // 7, len(body) * 5 // 7
        else:
            n1, n2 = int(len(body) * Cfg.m1b), len(body)
        B1 = Buf(); issue_group_merged(B1, 2, body[:n1])
        B2 = Buf(); issue_group_merged(B2, 2, body[n1:n2])
        if Cfg.m1b is not None: B2.lines += tail
        last = max(k_ for k_, l_ in enumerate(B1.lines) if l_.endswith(" lds"))
        newer = sum(1 for l_ in B1.lines[last + 1:] + B2.lines if l_.startswith("buffer_"))
        emit(A, B1.lines)
        A("s_barrier")
        emit(A, B2.lines)
        A("s_waitcnt vmcnt(%d)" % newer)
        A("s_barrier")
        if Cfg.m1b is None:
            emit(A, body[n2:])
            emit(A, tail)
        issue_group(A, 2)
        A("s_waitcnt vmcnt(10)")
        stamp(A, 4)
        nonce_check(A, "a1")
        s1_set(A)
        A("s_barrier")
        issue_group(A, 2)
        A("s_waitcnt vmcnt(10)"); A("s_barrier"); issue_group(A, 2)
        A("s_waitcnt vmcnt(10)"); A("s_barrier")
    A("s_mov_b32 s%d, 0" % S_SPIN)
    if Cfg.early == 13:
        s1_flag_load(A)
        issue_group(A, 2)
        A("s_waitcnt vmcnt(10)"); A("s_barrier")
        s1_check(A, "l")
        attn_loads_pre(A)
        for i in range(3):
            emit(A, k_item(i)); emit(A, v_item(i))
        A("s_waitcnt vmcnt(12)"); A("s_barrier")
        for i in range(3, 8):
            emit(A, k_item(i)); emit(A, v_item(i))
    else:
        issue_group(A, 2)
        A("s_waitcnt vmcnt(10)"); A("s_barrier")
        s1_flag_load(A)
        attn_pre_valu(A)
        A("s_waitcnt vmcnt(0)"); A("s_barrier")
        s1_check(A, "l")
        attn_pre_loads(A)
        for i in range(8):
            emit(A, k_item(i)); emit(A, v_item(i))
    tail_srds(A)
    if Cfg.bz: A("s_barrier")
    A("s_waitcnt vmcnt(0)")
    bound(A)
    if Cfg.bz: A("s_barrier")
    A("s_branch A_DONE")
    A("A_GATE:")
    A("s_nop 7")
    emit(A, [l.replace("LRX", "LRX") for l in L])
    A("s_waitcnt vmcnt(0)")
    nonce_check(A, "a2")
    s1_set(A)
    if Cfg.bz: A("s_barrier")
    s1_poll(A, "lg")
    attn_loads_pre(A)
    for i in range(8):
        emit(A, k_item(i)); emit(A, v_item(i))
    tail_srds(A)
    A("s_waitcnt vmcnt(0)")
    bound(A)
    A("A_DONE:")
    stamp(A, 5)
    stamp(A, 6)
    if "sv" in Cfg.exp: A("v_mov_b32 v40, v%d" % SV.reg)

def lane_reduce(A, rs, ts, op32, op):
    n = len(rs)
    def pad(k):
        if k > 0: A("s_nop %d" % (k - 1))
    for r, t in zip(rs, ts): A("v_mov_b32 v%d, v%d" % (t, r))
    pad(max(0, 2 - (n - 1)))
    for r, t in zip(rs, ts): A("v_permlane32_swap_b32 v%d, v%d" % (r, t))
    pad(1)
    for r, t in zip(rs, ts): A("%s v%d, v%d, v%d" % (op32, r, r, t))
    for r, t in zip(rs, ts): A("v_mov_b32 v%d, v%d" % (t, r))
    pad(max(0, 2 - (n - 1)))
    for r, t in zip(rs, ts): A("v_permlane16_swap_b32 v%d, v%d" % (r, t))
    pad(1)
    for r, t in zip(rs, ts): A("%s v%d, v%d, v%d" % (op, r, r, t))
    for sh in (8, 4, 2, 1):
        pad(max(0, 2 - (n - 1)))
        for r in rs: A("%s_dpp v%d, v%d, v%d row_ror:%d row_mask:0xf bank_mask:0xf" % (op, r, r, r, sh))

S_E0, S_E1, S_E2, S_E3 = 28, 29, 30, 31
def p1_epilogue(A):
    TA, TB, TC, TD = 32, 33, 34, 35
    PA, PB = 36, 40
    VADDR = 48
    N = [44, 45, 46, 47]
    A("s_and_b32 s%d, s%d, 1" % (S_E0, S_WAVE))
    A("s_lshl_b32 s%d, s%d, 1" % (S_E0, S_E0))
    A("s_lshl_b32 s%d, s%d, 2" % (S_E1, S_CG1))
    A("s_add_u32 s%d, s%d, s%d" % (S_E0, S_E0, S_E1))
    A("s_lshr_b32 s%d, s%d, 1" % (S_E1, S_WAVE))
    A("s_lshl_b32 s%d, s%d, 1" % (S_E2, S_RB1))
    A("s_add_u32 s%d, s%d, s%d" % (S_E1, S_E1, S_E2))
    A("s_lshl_b32 s%d, s%d, 16" % (S_E2, S_E0))
    A("s_lshl_b32 s%d, s%d, 10" % (S_E3, S_E1))
    A("s_add_u32 s%d, s%d, s%d" % (S_E2, S_E2, S_E3))
    A("v_lshrrev_b32 v%d, 4, v%d" % (TA, V_LANE))
    A("v_and_b32 v%d, 1, v%d" % (TA, TA))
    A("v_lshlrev_b32 v%d, 16, v%d" % (TA, TA))
    A("v_lshrrev_b32 v%d, 5, v%d" % (TB, V_LANE))
    A("v_lshlrev_b32 v%d, 8, v%d" % (TB, TB))
    A("v_add_u32 v%d, v%d, v%d" % (TA, TA, TB))
    A("v_and_b32 v%d, 15, v%d" % (TB, V_LANE))
    A("v_lshlrev_b32 v%d, 4, v%d" % (TB, TB))
    A("v_add_u32 v%d, v%d, v%d" % (VADDR, TA, TB))
    A("s_mov_b32 s%d, 0x%x" % (S_C, f32bits(QSCALE)))
    k = [0]
    def head_part(acc, scale, nrm, addr, soff_base, imm):
        P = PA if k[0] % 2 == 0 else PB; k[0] += 1
        for p in range(4):
            a_, b_ = (TA, TB) if p % 2 == 0 else (TC, TD)
            A("v_accvgpr_read_b32 v%d, a%d" % (a_, acc + 2 * p))
            A("v_accvgpr_read_b32 v%d, a%d" % (b_, acc + 2 * p + 1))
            if scale:
                A("v_mul_f32 v%d, s%d, v%d" % (a_, S_C, a_))
                A("v_mul_f32 v%d, s%d, v%d" % (b_, S_C, b_))
            A("v_cvt_pk_bf16_f32 v%d, v%d, v%d" % (P + p, a_, b_))
        A("s_add_u32 s%d, s%d, 0x%x" % (S_E3, S_E2, soff_base))
        A("buffer_store_dwordx4 %s, v%d, s[%d:%d], s%d offen%s%s" % (vr(P, 4), addr, S_WS, S_WS + 3, S_E3, (" offset:%d" % imm) if imm else "", SC))
        if nrm is not None:
            for p in range(4):
                A("v_dot2_f32_bf16 v%d, v%d, v%d, %s" % (nrm, P + p, P + p, "0" if p == 0 else "v%d" % nrm))
    head_part(A_ACC1 + 16, False, N[2], V_L16, WS_KF, 0)
    head_part(A_ACC1 + 24, False, N[3], V_L16, WS_KF + 65536, 0)
    head_part(A_ACC1 + 32, False, None, VADDR, WS_VF, 0)
    head_part(A_ACC1 + 40, False, None, VADDR, WS_VF, 512)
    head_part(A_ACC1 + 0, True, N[0], V_L16, WS_QF, 0)
    head_part(A_ACC1 + 8, True, N[1], V_L16, WS_QF + 65536, 0)
    A("s_nop 2")
    A("s_nop 0 ; MARK")
    lane_reduce(A, N, [TA, TB, TC, TD], "v_add_f32", "v_max_f32")
    A("s_lshl_b32 s%d, s%d, 8" % (S_E2, S_E0))
    A("s_lshl_b32 s%d, s%d, 2" % (S_E3, S_E1))
    A("s_add_u32 s%d, s%d, s%d" % (S_E2, S_E2, S_E3))
    A("s_add_u32 s%d, s%d, 0x%x" % (S_E2, S_E2, WS_NQ))
    A("v_mov_b32 v%d, 0" % TA)
    A("s_add_u32 s%d, s%d, 0x%x" % (S_E3, S_E2, WS_NK - WS_NQ))
    A("s_mov_b64 exec, 1")
    A("buffer_store_dword v%d, v%d, s[%d:%d], s%d offen%s" % (N[0], TA, S_WS, S_WS + 3, S_E2, SC))
    A("buffer_store_dword v%d, v%d, s[%d:%d], s%d offen offset:256%s" % (N[1], TA, S_WS, S_WS + 3, S_E2, SC))
    A("buffer_store_dword v%d, v%d, s[%d:%d], s%d offen%s" % (N[2], TA, S_WS, S_WS + 3, S_E3, SC))
    A("buffer_store_dword v%d, v%d, s[%d:%d], s%d offen offset:256%s" % (N[3], TA, S_WS, S_WS + 3, S_E3, SC))
    A("s_mov_b64 exec, -1")

def gate(A):
    A.comment("gate: 32 rows per wave")
    S_GS = 44
    srd(A, S_GS, P_GW, 1024)
    GW = 160; G = 32
    N = list(range(164, 172)); T = list(range(172, 180))
    A("buffer_load_dwordx4 %s, v%d, s[%d:%d], 0 offen" % (vr(GW, 4), V_L16, S_GS, S_GS + 3))
    A("s_lshl_b32 s%d, s%d, 7" % (S_T0, S_RB2))
    A("s_lshl_b32 s%d, s%d, 5" % (S_T1, S_WAVE))
    A("s_add_u32 s%d, s%d, s%d" % (S_T0, S_T0, S_T1))
    A("s_lshl_b32 s%d, s%d, 10" % (S_T1, S_T0))
    for r in range(32):
        A("buffer_load_dwordx4 %s, v%d, s[%d:%d], s%d offen offset:%d" % (vr(G + 4 * r, 4), V_L16, S_AX, S_AX + 3, S_T1, (r & 3) * 1024))
        if (r & 3) == 3: A("s_add_u32 s%d, s%d, 4096" % (S_T1, S_T1))
    A("s_mov_b32 s%d, 0x%x" % (S_C, f32bits(-1.4426950408889634)))
    A("s_lshl_b32 s%d, s%d, 2" % (S_T1, S_T0))
    A("s_add_u32 s%d, s%d, 0x%x" % (S_T1, S_T1, WS_G))
    A("v_mov_b32 v%d, 0" % V_T)
    for b in range(4):
        A("s_waitcnt vmcnt(%d)" % (24 - 8 * b + 8 * b))
        for p in range(4):
            for x in range(8):
                A("v_dot2_f32_bf16 v%d, v%d, v%d, %s" % (N[x], G + 32 * b + 4 * x + p, GW + p, "0" if p == 0 else "v%d" % N[x]))
        A("s_nop 2")
        lane_reduce(A, N, T, "v_add_f32", "v_add_f32")
        for x in range(8): A("v_mul_f32 v%d, s%d, v%d" % (N[x], S_C, N[x]))
        for x in range(8): A("v_exp_f32 v%d, v%d" % (N[x], N[x]))
        for x in range(8): A("v_add_f32 v%d, 1.0, v%d" % (N[x], N[x]))
        for x in range(8): A("v_rcp_f32 v%d, v%d" % (N[x], N[x]))
        A("s_mov_b64 exec, 1")
        for x in range(8):
            A("buffer_store_dword v%d, v%d, s[%d:%d], s%d offen offset:%d%s" % (N[x], V_T, S_WS, S_WS + 3, S_T1, 32 * b + 4 * x, SC))
        A("s_mov_b64 exec, -1")
        A("s_nop 1")

P2_X0, P2_X1, P2_W = 32, 36, 40
def p2_read_list(hs):
    s_, mat = hs >> 1, hs & 1
    L = []
    if mat == 0:
        L.append("ds_read_b128 %s, v%d" % (vr(P2_X0 if (s_ & 1) == 0 else P2_X1, 4), RA.XR + s_))
    F = P2_W + 12 * (hs & 3)
    for u in range(3):
        for q in range(2):
            L.append("ds_read_b64_tr_b16 %s, v%d offset:%d" % (vr(F + 4 * u + 2 * q, 2), RA.WR, 16384 + mat * 12288 + s_ * 3072 + q * 768 + u * 64))
    return L
def p2_mfma_list(hs, zero=False):
    s_, mat = hs >> 1, hs & 1
    X = P2_X0 if (s_ & 1) == 0 else P2_X1
    F = P2_W + 12 * (hs & 3)
    return [mfma(vr(V_ACC2 + 48 * mat + 16 * u, 16), vr(F + 4 * u, 4), vr(X, 4), "0" if zero else vr(V_ACC2 + 48 * mat + 16 * u, 16)) for u in range(3)]
def group_blocks(typ):
    B = Buf(); issue_group(B, typ)
    blocks, cur = [], []
    for l in B.lines:
        cur.append(l)
        if l.startswith("buffer_load"): blocks.append(cur); cur = []
    blocks[-1] = blocks[-1] + cur
    return blocks

def p2_chunk(A, vm=None, zero=False, nobar=False, dma0=False, dma1=False):
    gaps = [[] for _ in range(24)]
    for half_, on in ((0, dma0), (1, dma1)):
        if on:
            for k, b in enumerate(group_blocks(2)): gaps[12 * half_ + k] = b
    for hs in range(8):
        if hs == 4 and not nobar:
            if vm is not None: A("s_waitcnt vmcnt(%d)" % vm)
            A("s_barrier")
        if hs == 6:
            adv_slot(A, S_SLR)
            set_read_addrs(A)
        A("s_waitcnt lgkmcnt(%d)" % (7 if ((hs + 1) & 1) == 0 else 6))
        ms = p2_mfma_list(hs, zero and hs < 2); rs = p2_read_list((hs + 2) & 7)
        k = 0
        for i, m in enumerate(ms):
            A(m)
            emit(A, gaps[3 * hs + i])
            cnt = (len(rs) * (i + 1)) // 3 - (len(rs) * i) // 3
            for _ in range(cnt):
                A(rs[k]); k += 1

def p2(A):
    A.comment("==== P2: FFN up (B waves) ====")
    RA.XR, RA.WR = 88, 92
    A("s_mov_b32 s%d, 0" % S_SLR)
    set_read_addrs(A)
    emit(A, p2_read_list(0)); emit(A, p2_read_list(1))
    if Cfg.trans == 'v3':
        p2_chunk(A, vm=10, zero=True, dma0=True, dma1=True)
        p2_chunk(A, vm=10, dma1=True)
        p2_chunk(A, vm=10)
        p2_chunk(A, vm=0)
        n = 3
    else:
        p2_chunk(A, vm=0, zero=True)
        n = 6
    if Cfg.bz:
        loop(A, "P2_L", n + 1, lambda: p2_chunk(A))
    else:
        loop(A, "P2_L", n, lambda: p2_chunk(A))
        p2_chunk(A, nobar=True)
    A("s_waitcnt lgkmcnt(0)")

def p2_epilogue(A, items_a, items_b):
    A.comment("P2 epilogue: GEGLU (+ interleaved attention loads)")
    c1 = -2.0 * 0.7978845608028654 * 1.4426950408889634
    c2 = c1 * 0.044715
    A("s_mov_b32 s%d, 0x%x" % (S_C, f32bits(c2)))
    A("s_mov_b32 s%d, 0x%x" % (S_C + 1, f32bits(c2)))
    A("s_mov_b32 s%d, 1.0" % (S_C + 2))
    A("s_mov_b32 s%d, 1.0" % (S_C + 3))
    C1 = 40
    A("v_mov_b32 v%d, 0x%x" % (C1, f32bits(c1)))
    A("v_mov_b32 v%d, 0x%x" % (C1 + 1, f32bits(c1)))
    A("s_lshl_b32 s%d, s%d, 2" % (S_T0, S_RB2))
    A("s_add_u32 s%d, s%d, s%d" % (S_T0, S_T0, S_WAVE))
    A("s_mul_i32 s%d, s%d, 86" % (S_T0, S_T0))
    A("s_mul_i32 s%d, s%d, 6" % (S_T1, S_CG2))
    A("s_add_u32 s%d, s%d, s%d" % (S_T0, S_T0, S_T1))
    A("s_lshl_b32 s%d, s%d, 10" % (S_T0, S_T0))
    A("s_add_u32 s%d, s%d, 0x%x" % (S_T0, S_T0, WS_HF))
    A("s_cmp_eq_u32 s%d, 15" % S_CG2)
    A("s_cselect_b32 s%d, 0x40000000, s%d" % (S_T0, S_T0))
    T = 32
    pa = split(items_a, 16); pb = split(items_b, 32)
    slots = pa + pb
    blk = [0]
    def slot():
        for it in slots[blk[0]]: emit(A, it)
        blk[0] += 1
    for u in range(3):
        G = V_ACC2 + 16 * u; U = V_ACC2 + 48 + 16 * u
        for grp in range(2):
            prs = [G + 8 * grp + 2 * i for i in range(4)]
            tm = [T + 2 * i for i in range(4)]
            for g, t in zip(prs, tm): A("v_pk_mul_f32 %s, %s, %s" % (vr(t, 2), vr(g, 2), vr(g, 2)))
            slot()
            for g, t in zip(prs, tm): A("v_pk_fma_f32 %s, %s, %s, %s" % (vr(t, 2), vr(t, 2), sr(S_C, 2), vr(C1, 2)))
            slot()
            for g, t in zip(prs, tm): A("v_pk_mul_f32 %s, %s, %s" % (vr(t, 2), vr(t, 2), vr(g, 2)))
            slot()
            for g, t in zip(prs, tm):
                A("v_exp_f32 v%d, v%d" % (t, t)); A("v_exp_f32 v%d, v%d" % (t + 1, t + 1))
            slot()
            for g, t in zip(prs, tm): A("v_pk_add_f32 %s, %s, %s" % (vr(t, 2), vr(t, 2), sr(S_C + 2, 2)))
            slot()
            for g, t in zip(prs, tm):
                A("v_rcp_f32 v%d, v%d" % (t, t)); A("v_rcp_f32 v%d, v%d" % (t + 1, t + 1))
            slot()
            for g, t in zip(prs, tm): A("v_pk_mul_f32 %s, %s, %s" % (vr(g, 2), vr(g, 2), vr(U + (g - G), 2)))
            slot()
            for g, t in zip(prs, tm): A("v_pk_mul_f32 %s, %s, %s" % (vr(t, 2), vr(t, 2), vr(g, 2)))
            P = 48 + 4 * grp + 8 * (u & 1)
            for i, t in enumerate(tm): A("v_cvt_pk_bf16_f32 v%d, v%d, v%d" % (P + i, t, t + 1))
            A("buffer_store_dwordx4 %s, v%d, s[%d:%d], s%d offen offset:%d%s" % (vr(P, 4), V_L16, S_WS, S_WS + 3, S_T0, grp * 1024, SC))
            slot()
        A("s_add_u32 s%d, s%d, 2048" % (S_T0, S_T0))
        if u == 0:
            A("s_cmp_eq_u32 s%d, 14" % S_CG2)
            A("s_cselect_b32 s%d, 0x40000000, s%d" % (S_T0, S_T0))

V_FL, V_DO, V_RA, V_FLG, V_VOFF, V_MXA = 6, 7, 8, 10, 12, 13
V_NRM = 14
V_S = [16, 32]
V_C = 48
V_P = 64
V_Q, V_QN = 72, 76
V_K = 80
V_O = 112
V_ACCB = 128
V_ACT = 160
V_WF = 176
A_V = 0
OSLOT = 2304
L_OB = 0
L_W = 73728
L_MX = L_W + 65536
NT = 8
V_FL4 = 0

def tile(A, t, extra=None, oinit=False):
    S = V_S[t & 1]; Sp = V_S[(t + 1) & 1]
    e = lambda i: "v_exp_f32 v%d, v%d" % (S + i, S + i)
    c = lambda j: "v_cvt_pk_bf16_f32 v%d, v%d, v%d" % (V_P + j, S + 2 * j, S + 2 * j + 1)
    c7p = "v_cvt_pk_bf16_f32 v%d, v%d, v%d" % (V_P + 7, Sp + 14, Sp + 15)
    tp = (t - 1) % NT
    pvb = mfma(vr(V_O, 16), ar(A_V + 4 * (2 * tp + 1), 4), vr(V_P + 4, 4), vr(V_O, 16))
    pva = mfma(vr(V_O, 16), ar(A_V + 4 * (2 * t), 4), vr(V_P, 4), "0" if (t == 0 and not oinit) else vr(V_O, 16))
    tn = (t + 1) % NT
    qk = mfma(vr(Sp, 16), vr(V_K + 4 * tn, 4), vr(V_Q, 4), vr(V_C, 16))
    seq = [e(0), c7p, e(1), e(2), pvb, c(0), e(3), e(4), c(1), qk, e(5), e(6), c(2), e(7), e(8), c(3), e(9), e(10), None if oinit else pva,
           c(4), e(11), e(12), c(5), "X", e(13), e(14), c(6), e(15), "END"]
    extra = extra or {}
    for i, ins in enumerate(seq):
        for l in extra.get(i, []): A(l)
        if ins == "X":
            for l in extra.get("x", []): A(l)
        elif ins == "END":
            if oinit:
                A("WAITDS:OI")
                A(pva)
        elif ins is not None:
            A(ins)

def flush_lines(slot):
    o = slot * OSLOT
    return ["ds_write_b128 v%d, %s offset:%d" % (V_FL, vr(V_O, 4), o),
            "ds_write_b128 v%d, %s offset:%d" % (V_FL, vr(V_O + 4, 4), o + 1024),
            "ds_write_b32 v%d, v%d offset:%d" % (V_FL4, V_O + 8, o + 2048)]
def oinit_lines(slot):
    o = slot * OSLOT
    return ["ds_read_b128 %s, v%d offset:%d" % (vr(V_O, 4), V_FL, o),
            "ds_read_b128 %s, v%d offset:%d" % (vr(V_O + 4, 4), V_FL, o + 1024),
            "ds_read_b32 v%d, v%d offset:%d" % (V_O + 8, V_FL4, o + 2048)]

S_KO, S_VO = S_GX, S_GW0
def attn_pre_valu(A):
    t0, t1 = V_T, V_T + 1
    A("s_lshl_b32 s%d, s%d, 16" % (S_T0, S_HEAD))
    A("s_lshl_b32 s%d, s%d, 13" % (S_T1, S_QB))
    A("s_add_u32 s%d, s%d, s%d" % (S_QOFF, S_T0, S_T1))
    A("s_lshr_b32 s%d, s%d, 2" % (S_T1, S_W8))
    A("s_lshl_b32 s%d, s%d, 12" % (S_T1, S_T1))
    A("s_add_u32 s%d, s%d, s%d" % (S_QOFF, S_QOFF, S_T1))
    A("s_add_u32 s%d, s%d, 0x%x" % (S_QOFF, S_QOFF, WS_QF))
    A("s_lshl_b32 s%d, s%d, 14" % (S_T1, S_WAVE))
    A("s_add_u32 s%d, s%d, s%d" % (S_T1, S_T1, S_T0))
    A("s_add_u32 s%d, s%d, 0x%x" % (S_KO, S_T1, WS_KF))
    A("s_add_u32 s%d, s%d, 0x%x" % (S_VO, S_T1, WS_VF))
    Z = V_QN
    for r in range(4): A("v_mov_b32 v%d, 0" % (Z + r))
    if Cfg.zrows:
        A("v_and_b32 v%d, 31, v%d" % (t1, V_LANE))
        A("v_cmp_eq_u32 vcc, 16, v%d" % t1)
        A("v_mov_b32 v%d, 0x3f803f80" % (t1))
        A("s_nop 1")
        A("v_cndmask_b32 v%d, 0, v%d, vcc" % (t0, t1))
    else:
        A("v_mov_b32 v%d, 0x3f803f80" % (t0))
    A("s_nop 0")
    for r in range(16): A("v_accvgpr_write_b32 a%d, v%d" % (A_V + r, t0))
    A("s_nop 1")
    for g in range(1, 4):
        A(mfma(ar(A_V + 16 * g, 16), vr(Z, 4), vr(Z, 4), ar(A_V, 16)))
    A("v_lshrrev_b32 v%d, 5, v%d" % (t0, V_LANE))
    A("v_lshlrev_b32 v%d, 8, v%d" % (t0, t0))
    A("v_and_b32 v%d, 15, v%d" % (t1, V_LANE))
    A("v_lshlrev_b32 v%d, 4, v%d" % (t1, t1))
    A("v_add_u32 v%d, v%d, v%d" % (V_VOFF, t0, t1))
    A("s_mov_b32 s%d, 0x0000ffff" % S_EXM)
    A("s_mov_b32 s%d, 0x0000ffff" % (S_EXM + 1))
    A("s_nop 7")

def attn_pre_loads(A):
    t0, t1 = V_T, V_T + 1
    A("v_lshlrev_b32 v%d, 2, v%d" % (t0, V_LANE))
    A("s_lshl_b32 s%d, s%d, 8" % (S_T0, S_HEAD))
    A("s_add_u32 s%d, s%d, 0x%x" % (S_T1, S_T0, WS_NK))
    A("buffer_load_dword v%d, v%d, s[%d:%d], s%d offen%s" % (V_NRM, t0, S_WS, S_WS + 3, S_T1, SC))
    A("v_and_b32 v%d, 7, v%d" % (t1, V_LANE))
    A("v_lshlrev_b32 v%d, 2, v%d" % (t1, t1))
    A("s_lshl_b32 s%d, s%d, 5" % (S_T2, S_QB))
    A("s_add_u32 s%d, s%d, s%d" % (S_T1, S_T0, S_T2))
    A("s_add_u32 s%d, s%d, 0x%x" % (S_T1, S_T1, WS_NQ))
    A("buffer_load_dword v%d, v%d, s[%d:%d], s%d offen%s" % (V_NRM + 1, t1, S_WS, S_WS + 3, S_T1, SC))
    A("buffer_load_dwordx4 %s, v%d, s[%d:%d], s%d offen%s" % (vr(V_Q, 4), V_L16, S_WS, S_WS + 3, S_QOFF, SC))

def attn_loads_pre(A):
    attn_pre_valu(A)
    attn_pre_loads(A)

def k_item(i):
    it = ["buffer_load_dwordx4 %s, v%d, s[%d:%d], s%d offen offset:%d%s" % (vr(V_K + 4 * i, 4), V_L16, S_WS, S_WS + 3, S_KO, (i & 3) * 1024, SC)]
    if i == 3: it.append("s_add_u32 s%d, s%d, 4096" % (S_KO, S_KO))
    return it
def v_item(i):
    it = ["s_mov_b64 exec, s[%d:%d]" % (S_EXM, S_EXM + 1)]
    for g in (2 * i, 2 * i + 1):
        it.append("buffer_load_dwordx4 %s, v%d, s[%d:%d], s%d offen offset:%d%s" % (ar(A_V + 4 * g, 4), V_VOFF, S_WS, S_WS + 3, S_VO, (g & 7) * 512, SC))
    it.append("s_mov_b64 exec, -1")
    if i == 3: it.append("s_add_u32 s%d, s%d, 4096" % (S_VO, S_VO))
    return it

def bound(A):
    M = V_NRM
    lane_reduce(A, [M, M + 1], [V_T, V_T + 1], "v_max_f32", "v_max_f32")
    A("v_mul_f32 v%d, v%d, v%d" % (M, M, M + 1))
    A("v_sqrt_f32 v%d, v%d" % (M, M))
    A("v_mov_b32 v%d, 0x42400000" % (M + 1))
    A("v_cmp_nle_f32 vcc, v%d, v%d" % (M, M + 1))
    A("v_sub_f32 v%d, 0, v%d" % (M, M))
    A("s_nop 1")
    A("s_cmp_lg_u64 vcc, 0")
    A("s_cselect_b32 s%d, 1, 0" % S_SLOW)
    for r in range(16): A("v_mov_b32 v%d, v%d" % (V_C + r, M))

def slow_set_c(A, tag, T, qi):
    A("s_cmp_eq_u32 s%d, 0" % S_SLOW)
    A("s_cbranch_scc1 SLOWC_%s" % tag)
    for kg in range(4):
        A("ds_read_b32 v%d, v%d offset:%d" % (T + kg, V_MXA, kg * 1024 + qi * 128))
    A("s_waitcnt lgkmcnt(0)")
    for kg in range(1, 4):
        A("v_max_f32 v%d, v%d, v%d" % (T, T, T + kg))
    A("v_sub_f32 v%d, 0, v%d" % (T, T))
    A("s_nop 7")
    for r in range(16): A("v_mov_b32 v%d, v%d" % (V_C + r, T))
    A("s_nop 1")
    A("SLOWC_%s:" % tag)

def slow_prepass(A):
    A("s_cmp_eq_u32 s%d, 0" % S_SLOW)
    A("s_cbranch_scc1 SLOWP_END")
    if not Cfg.bz: A("s_barrier")
    S0 = V_S[0]; MX = V_S[1]; AD = V_S[1] + 6
    A("v_and_b32 v%d, 31, v%d" % (AD, V_LANE))
    A("v_lshlrev_b32 v%d, 2, v%d" % (AD, AD))
    A("s_lshr_b32 s%d, s%d, 2" % (S_T0, S_W8))
    A("s_lshl_b32 s%d, s%d, 9" % (S_T0, S_T0))
    A("s_add_u32 s%d, s%d, %d" % (S_T0, S_T0, L_MX))
    A("v_add_u32 v%d, s%d, v%d" % (V_MXA, S_T0, AD))
    A("s_lshl_b32 s%d, s%d, 10" % (S_T0, S_WAVE))
    A("v_add_u32 v%d, s%d, v%d" % (AD, S_T0, V_MXA))
    for q in range(4): A("v_mov_b32 v%d, 0xff800000" % (MX + q))
    A("s_sub_u32 s%d, s%d, 4096" % (S_T3, S_KO))
    A("s_mov_b32 s%d, 0" % S_I)
    A("SLOWP_H:")
    for t in range(NT):
        A("s_add_u32 s%d, s%d, %d" % (S_T2, S_T3, t * 1024))
        A("buffer_load_dwordx4 %s, v%d, s[%d:%d], s%d offen%s" % (vr(V_K + 4 * t, 4), V_L16, S_WS, S_WS + 3, S_T2, SC))
    for q in range(4):
        A("s_add_u32 s%d, s%d, %d" % (S_T2, S_QOFF, q * 1024))
        A("buffer_load_dwordx4 %s, v%d, s[%d:%d], s%d offen%s" % (vr(V_QN, 4), V_L16, S_WS, S_WS + 3, S_T2, SC))
        A("s_waitcnt vmcnt(0)")
        for t in range(NT):
            A(mfma(vr(S0, 16), vr(V_K + 4 * t, 4), vr(V_QN, 4), "0"))
            A("s_nop 15")
            for r in range(0, 16, 2):
                A("v_max3_f32 v%d, v%d, v%d, v%d" % (MX + q, MX + q, S0 + r, S0 + r + 1))
            A("s_nop 1")
    A("s_add_u32 s%d, s%d, 8192" % (S_T3, S_T3))
    A("s_add_u32 s%d, s%d, 1" % (S_I, S_I))
    A("s_cmp_lt_u32 s%d, 2" % S_I)
    A("s_cbranch_scc1 SLOWP_H")
    for q in range(4):
        A("v_mov_b32 v%d, v%d" % (MX + 4, MX + q))
        A("s_nop 1")
        A("v_permlane32_swap_b32 v%d, v%d" % (MX + q, MX + 4))
        A("s_nop 1")
        A("v_max_f32 v%d, v%d, v%d" % (MX + q, MX + q, MX + 4))
        A("ds_write_b32 v%d, v%d offset:%d" % (AD, MX + q, q * 128))
    A("s_sub_u32 s%d, s%d, 4096" % (S_T3, S_KO))
    for t in range(NT):
        A("s_add_u32 s%d, s%d, %d" % (S_T2, S_T3, t * 1024))
        A("buffer_load_dwordx4 %s, v%d, s[%d:%d], s%d offen%s" % (vr(V_K + 4 * t, 4), V_L16, S_WS, S_WS + 3, S_T2, SC))
    A("s_waitcnt vmcnt(0) lgkmcnt(0)")
    A("s_barrier")
    slow_set_c(A, "P", V_S[1] + 8, 0)
    A("SLOWP_END:")

S_HSRD = 8
S_WD = 12
S_OUT = 16
def tail_setup(A):
    t0, t1, t2 = V_T, V_T + 1, V_T + 2
    A("s_and_b32 s%d, s2, 7" % S_T0)
    A("s_lshr_b32 s%d, s2, 3" % S_T1)
    A("s_lshl_b32 s%d, s%d, 2" % (S_RB3, S_T0))
    A("s_and_b32 s%d, s%d, 3" % (S_T2, S_T1))
    A("s_add_u32 s%d, s%d, s%d" % (S_RB3, S_RB3, S_T2))
    A("s_lshr_b32 s%d, s%d, 2" % (S_CB3, S_T1))
    A("v_lshrrev_b32 v%d, 3, v%d" % (t0, V_LANE))
    A("v_lshlrev_b32 v%d, 10, v%d" % (t0, t0))
    A("v_lshrrev_b32 v%d, 4, v%d" % (t1, V_LANE))
    A("v_and_b32 v%d, 1, v%d" % (t1, t1))
    A("v_lshlrev_b32 v%d, 2, v%d" % (t1, t1))
    A("v_and_b32 v%d, 7, v%d" % (t2, V_LANE))
    A("v_xor_b32 v%d, v%d, v%d" % (t1, t1, t2))
    A("v_lshlrev_b32 v%d, 4, v%d" % (t1, t1))
    A("v_add_u32 v%d, v%d, v%d" % (V_DO, t0, t1))
    A("s_lshl_b32 s%d, s%d, 13" % (S_LB, S_W8))
    A("s_add_u32 s%d, s%d, %d" % (S_LB, S_LB, L_W))
    A("v_and_b32 v%d, 15, v%d" % (t0, V_LANE))
    A("v_lshrrev_b32 v%d, 2, v%d" % (t0, t0))
    A("v_lshrrev_b32 v%d, 5, v%d" % (t1, V_LANE))
    A("v_lshlrev_b32 v%d, 2, v%d" % (t1, t1))
    A("v_add_u32 v%d, v%d, v%d" % (t1, t1, t0))
    A("v_lshlrev_b32 v%d, 7, v%d" % (t1, t1))
    A("v_lshrrev_b32 v%d, 1, v%d" % (t0, t0))
    A("v_lshlrev_b32 v%d, 6, v%d" % (t0, t0))
    A("v_add_u32 v%d, v%d, v%d" % (t1, t1, t0))
    A("v_lshrrev_b32 v%d, 4, v%d" % (t0, V_LANE))
    A("v_and_b32 v%d, 1, v%d" % (t0, t0))
    A("v_lshlrev_b32 v%d, 5, v%d" % (t0, t0))
    A("v_add_u32 v%d, v%d, v%d" % (t1, t1, t0))
    A("v_and_b32 v%d, 3, v%d" % (t0, V_LANE))
    A("v_lshlrev_b32 v%d, 3, v%d" % (t0, t0))
    A("v_add_u32 v%d, v%d, v%d" % (t1, t1, t0))
    A("v_add_u32 v%d, s%d, v%d" % (V_RA, S_LB, t1))
    A("v_xor_b32 v%d, 64, v%d" % (V_RA + 1, V_RA))
    A("s_lshl_b32 s%d, s%d, 1" % (S_T0, S_RB3))
    A("s_and_b32 s%d, s%d, 1" % (S_T1, S_W8))
    A("s_add_u32 s%d, s%d, s%d" % (S_T0, S_T0, S_T1))
    A("s_mul_i32 s%d, s%d, 86" % (S_T0, S_T0))
    A("s_lshr_b32 s%d, s%d, 1" % (S_T1, S_W8))
    A("s_mul_i32 s%d, s%d, 24" % (S_T1, S_T1))
    A("s_add_u32 s%d, s%d, s%d" % (S_T0, S_T0, S_T1))
    A("s_lshl_b32 s%d, s%d, 10" % (S_AO, S_T0))
    A("s_lshl_b32 s%d, s%d, 14" % (S_WO0, S_T1))
    A("s_lshl_b32 s%d, s%d, 7" % (S_T2, S_CB3))
    A("s_add_u32 s%d, s%d, s%d" % (S_WO0, S_WO0, S_T2))
    A("s_add_u32 s%d, s%d, 8192" % (S_WO1, S_WO0))
    A("s_lshl_b32 s%d, s%d, 7" % (S_FA, S_RB3))
    A("s_add_u32 s%d, s%d, 0x%x" % (S_FA, S_FA, WS_F2))
    A("v_and_b32 v%d, 31, v%d" % (V_FLG + 1, V_LANE))
    A("v_lshlrev_b32 v%d, 2, v%d" % (V_FLG + 1, V_FLG + 1))
    A("s_lshl_b32 s%d, s%d, 3" % (S_T0, S_WAVE))
    A("s_lshr_b32 s%d, s%d, 2" % (S_T1, S_W8))
    A("s_lshl_b32 s%d, s%d, 2" % (S_T1, S_T1))
    A("s_add_u32 s%d, s%d, s%d" % (S_T0, S_T0, S_T1))
    A("s_mul_i32 s%d, s%d, %d" % (S_T0, S_T0, OSLOT))
    A("v_add_u32 v%d, s%d, v%d" % (V_FL, S_T0, V_L16))
    A("v_lshlrev_b32 v%d, 2, v%d" % (V_FL4, V_LANE))
    A("v_add_u32 v%d, s%d, v%d" % (V_FL4, S_T0, V_FL4))

def tail_srds(A):
    srd(A, S_HSRD, P_WS, HF_BYTES, add=WS_HF)
    srd(A, S_WD, P_WD, 1376 * 1024)
    srd(A, S_OUT, P_OUT, 2048 * 1024)

def sh_load(slot):
    a = ["buffer_load_dwordx4 %s, v%d, s[%d:%d], s%d offen%s" % (vr(V_ACT + 4 * slot, 4), V_L16, S_HSRD, S_HSRD + 3, S_AO, SC),
         "s_add_u32 s%d, s%d, 1024" % (S_AO, S_AO)]
    b = ["s_add_u32 m0, s%d, %d" % (S_LB, slot * 2048), "s_nop 0",
         "buffer_load_dwordx4 v%d, s[%d:%d], s%d offen lds" % (V_DO, S_WD, S_WD + 3, S_WO0), "s_add_u32 s%d, s%d, 16384" % (S_WO0, S_WO0)]
    c = ["s_add_u32 m0, s%d, %d" % (S_LB, slot * 2048 + 1024), "s_nop 0",
         "buffer_load_dwordx4 v%d, s[%d:%d], s%d offen lds" % (V_DO, S_WD, S_WD + 3, S_WO1), "s_add_u32 s%d, s%d, 16384" % (S_WO1, S_WO1)]
    return a, b, c

def w_reads(slot, F):
    return ["ds_read_b64_tr_b16 %s, v%d offset:%d" % (vr(F + 4 * u + 2 * q, 2), V_RA + u, slot * 2048 + q * 1024) for u in range(2) for q in range(2)]

class Track:
    def __init__(self): self.vm = []; self.ds = []
    def resolve(self, A, lines):
        for l in lines:
            if l.startswith("VM:") or l.startswith("DS:"):
                tag, ins = l[3:].split("|", 1)
                (self.vm if l[0] == "V" else self.ds).append(tag); A(ins)
            elif l.startswith("WAITVM:") or l.startswith("WAITDS:"):
                ops = self.vm if l[4] == "V" else self.ds
                tag = l[7:]
                idx = max([k for k, t in enumerate(ops) if t == tag])
                n = len(ops) - 1 - idx
                if l[4] == "V": A("s_waitcnt vmcnt(%d)" % min(n, 63))
                else: A("s_waitcnt lgkmcnt(%d)" % min(n, 15))
            elif l.startswith("NT|"):
                A(l[3:])
            else:
                assert not (l.startswith("buffer_") or l.startswith("ds_") or l.startswith("global_")), l
                A(l)

def vmtag(tag, lines):
    return [("VM:%s|%s" % (tag, l)) if l.startswith("buffer_") else (("DS:%s|%s" % (tag, l)) if l.startswith("ds_") else l) for l in lines]

T_CHECK = 20
T_FIRST = 24
NSTEP = 24
def tau(s): return T_FIRST + (5 * s) // 3

def attn_all(B):
    X1, X2 = 13, 23
    ex = [dict() for _ in range(64)]
    def add(T, k, lines): ex[T].setdefault(k, []).extend(lines)
    if not Cfg.bz: add(16, 2, ["s_barrier"])
    if Cfg.prio_t is not None: add(Cfg.prio_t, 0, ["s_setprio 0"])
    add(T_CHECK - 2, 6, ["VM:F|buffer_load_dword v%d, v%d, s[%d:%d], s%d offen sc1" % (V_FLG, V_FLG + 1, S_WS, S_WS + 3, S_FA)])
    add(T_CHECK, 2, ["WAITVM:F", "v_cmp_ne_u32 vcc, s%d, v%d" % (S_NONCE, V_FLG), "s_nop 3", "s_and_b32 vcc_lo, vcc_lo, 0x3fffffff", "s_and_b32 vcc_hi, vcc_hi, 0x3fffffff",
                     "s_cmp_eq_u64 vcc, 0", "s_cbranch_scc1 S2_OK", "s_call_b64 s[0:1], S2_SPIN", "S2_OK:"])
    if Cfg.wtouch:
        add(2, 6, ["s_lshr_b32 s%d, s2, 3" % S_T0, "s_lshl_b32 s%d, s%d, 3" % (S_T0, S_T0), "s_add_u32 s%d, s%d, s%d" % (S_T0, S_T0, S_W8),
                   "s_mul_i32 s%d, s%d, %d" % (S_T1, S_T0, 43 * 128), "v_min_u32 v%d, 42, v%d" % (V_T, V_LANE), "v_lshlrev_b32 v%d, 7, v%d" % (V_T, V_T),
                   "VM:TD|buffer_load_dword v%d, v%d, s[%d:%d], s%d offen" % (V_T + 1, V_T, S_WD, S_WD + 3, S_T1)])
        Bs = Buf(); srd(Bs, 44, P_WO, 512 * 1024)
        add(4, 6, Bs.lines + ["s_lshr_b32 s%d, s2, 3" % S_T0, "s_lshl_b32 s%d, s%d, 3" % (S_T0, S_T0), "s_add_u32 s%d, s%d, s%d" % (S_T0, S_T0, S_W8),
                   "s_lshl_b32 s%d, s%d, 11" % (S_T1, S_T0), "v_and_b32 v%d, 15, v%d" % (V_T, V_LANE), "v_lshlrev_b32 v%d, 7, v%d" % (V_T, V_T),
                   "VM:TO|buffer_load_dword v%d, v%d, s[44:47], s%d offen" % (V_T + 2, V_T, S_T1)])
    if Cfg.t2 or Cfg.dp2:
        Bs = Buf(); srd(Bs, 44, P_WO, 512 * 1024)
        tl = list(Bs.lines)
        if Cfg.t2touch:
            tl += ["s_lshr_b32 s%d, s2, 3" % S_T0, "s_lshl_b32 s%d, s%d, 3" % (S_T0, S_T0), "s_add_u32 s%d, s%d, s%d" % (S_T0, S_T0, S_W8),
                   "s_lshl_b32 s%d, s%d, 11" % (S_T1, S_T0), "v_and_b32 v%d, 15, v%d" % (V_T, V_LANE), "v_lshlrev_b32 v%d, 7, v%d" % (V_T, V_T),
                   "VM:TO|buffer_load_dword v%d, v%d, s[44:47], s%d offen" % (V_T + 2, V_T, S_T1)]
        add(10, 6, tl)
        if Cfg.t2: add(47, 6, ["VM:FG|buffer_load_dword v%d, v%d, s[%d:%d], s%d offen sc1" % (V_FLG, V_FLG + 1, S_WS, S_WS + 3, S_FA)])
        if Cfg.t2: add(53, 2, ["WAITVM:FG", "v_cmp_ne_u32 vcc, s%d, v%d" % (S_NONCE, V_FLG), "s_nop 3",
                    "s_cmp_eq_u64 vcc, 0", "s_cbranch_scc1 FG_OK", "s_call_b64 s[0:1], FG_SPIN", "FG_OK:",
                    "v_and_b32 v%d, 31, v%d" % (V_T, V_LANE), "v_lshlrev_b32 v%d, 2, v%d" % (V_T, V_T),
                    "s_lshl_b32 s%d, s%d, 1" % (S_T0, S_RB3), "s_and_b32 s%d, s%d, 1" % (S_T1, S_W8), "s_add_u32 s%d, s%d, s%d" % (S_T0, S_T0, S_T1),
                    "s_lshl_b32 s%d, s%d, 7" % (S_T0, S_T0), "s_add_u32 s%d, s%d, 0x%x" % (S_T0, S_T0, WS_G),
                    "VM:G|buffer_load_dword v%d, v%d, s[%d:%d], s%d offen%s" % (V_G, V_T, S_WS, S_WS + 3, S_T0, SC)])
        add(58, 2, ["s_lshl_b32 s%d, s%d, 16" % (S_WO0, S_W8), "s_lshl_b32 s%d, s%d, 7" % (S_T1, S_CB3), "s_add_u32 s%d, s%d, s%d" % (S_WO0, S_WO0, S_T1),
                    "s_add_u32 s%d, s%d, 8192" % (S_WO1, S_WO0)])
        for i_, T_ in enumerate((58, 60, 61, 63)):
            add(T_, 7, ["s_add_u32 m0, s%d, %d" % (S_LB, i_ * 2048), "s_nop 0",
                        "VM:WO|buffer_load_dwordx4 v%d, s[44:47], s%d offen lds" % (V_DO, S_WO0), "s_add_u32 s%d, s%d, 16384" % (S_WO0, S_WO0)])
            add(T_, 12, ["s_add_u32 m0, s%d, %d" % (S_LB, i_ * 2048 + 1024), "s_nop 0",
                         "VM:WO|buffer_load_dwordx4 v%d, s[44:47], s%d offen lds" % (V_DO, S_WO1), "s_add_u32 s%d, s%d, 16384" % (S_WO1, S_WO1)])
    if Cfg.dp:
        add(46, 2, ["s_lshl_b32 s%d, s%d, 9" % (S_T0, S_W8), "s_add_u32 s%d, s%d, 0x%x" % (S_T0, S_T0, WS_F1),
                    "v_lshlrev_b32 v%d, 3, v%d" % (V_T, V_LANE),
                    "VM:FA|buffer_load_dwordx2 %s, v%d, s[%d:%d], s%d offen sc1" % (vr(V_T + 1, 2), V_T, S_WS, S_WS + 3, S_T0)])
        add(47, 6, ["VM:FG|buffer_load_dword v%d, v%d, s[%d:%d], s%d offen sc1" % (V_FLG, V_FLG + 1, S_WS, S_WS + 3, S_FA)])
        add(53, 2, ["WAITVM:FG", "v_cmp_ne_u32 vcc, s%d, v%d" % (S_NONCE, V_T + 1), "v_cmp_ne_u32 s[%d:%d], s%d, v%d" % (S_T2, S_T3, S_NONCE, V_T + 2),
                    "s_nop 3", "s_or_b64 vcc, vcc, s[%d:%d]" % (S_T2, S_T3),
                    "v_cmp_ne_u32 s[%d:%d], s%d, v%d" % (S_T2, S_T3, S_NONCE, V_FLG), "s_nop 3", "s_or_b64 vcc, vcc, s[%d:%d]" % (S_T2, S_T3),
                    "s_cmp_eq_u64 vcc, 0", "s_cbranch_scc1 FA_OK", "s_call_b64 s[0:1], FA_SPIN", "FA_OK:",
                    "v_and_b32 v%d, 31, v%d" % (V_T, V_LANE), "v_lshlrev_b32 v%d, 2, v%d" % (V_T, V_T),
                    "s_lshl_b32 s%d, s%d, 1" % (S_T0, S_RB3), "s_and_b32 s%d, s%d, 1" % (S_T1, S_W8), "s_add_u32 s%d, s%d, s%d" % (S_T0, S_T0, S_T1),
                    "s_lshl_b32 s%d, s%d, 7" % (S_T0, S_T0), "s_add_u32 s%d, s%d, 0x%x" % (S_T0, S_T0, WS_G),
                    "VM:G|buffer_load_dword v%d, v%d, s[%d:%d], s%d offen%s" % (V_G, V_T, S_WS, S_WS + 3, S_T0, SC)])
    used = {}
    for s_ in range(NSTEP if "nosh" not in Cfg.exp else 0):
        TL = (T_CHECK + 1 + s_) if s_ < 3 else tau(s_ - 3)
        a, b, c = sh_load(s_ & 3)
        if "nosalu" in Cfg.exp:
            a = [l for l in a if l.startswith("buffer")]; b = [l for l in b if l.startswith("buffer")]; c = [l for l in c if l.startswith("buffer")]
        if "novm" in Cfg.exp:
            a = ["VM:L%d|s_nop 0" % s_]; b = []; c = []
            add(TL, 20, a)
        else:
            add(TL, 6, vmtag("L%d" % s_, b)); add(TL, 11, vmtag("L%d" % s_, c)); add(TL, 20, vmtag("L%d" % s_, a))
        TR = tau(s_) - 1
        if "nods" in Cfg.exp:
            add(TR, 26, ["WAITVM:L%d" % s_, "DS:W%d|s_nop 0" % s_])
        else:
            add(TR, 26, ["WAITVM:L%d" % s_] + vmtag("W%d" % s_, w_reads(s_ & 3, V_WF + 8 * (s_ & 1))))
        for u in range(2):
            T = tau(s_) + u
            d = vr(V_ACCB + 16 * u, 16)
            m = mfma(d, vr(V_WF + 8 * (s_ & 1) + 4 * u, 4), vr(V_ACT + 4 * (s_ & 3), 4), d)
            if "nox" in Cfg.exp: m = "s_nop 0"
            if u == 0:
                add(T, X2, ["WAITDS:W%d" % s_, m]); used[(T, X2)] = 1
            else:
                pos = X1 if (T, X1) not in used and any(tau(k) == T for k in range(NSTEP)) else X2
                add(T, pos, [m]); used[(T, pos)] = 1
    for it in range(8):
        qi = it & 3
        for t in range(NT):
            T = 8 * it + t
            oinit = (it >= 4 and t == 0)
            if t == 0:
                if it > 0:
                    fl = vmtag("O", flush_lines((it - 1) & 3))
                    if oinit: fl = fl + vmtag("OI", oinit_lines(qi))
                    add(T, 17, fl)
                add(T, 2, ["s_add_u32 s%d, s%d, %d" % (S_T0, S_QOFF, ((it + 1) & 3) * 1024),
                           "VM:Q%d|buffer_load_dwordx4 %s, v%d, s[%d:%d], s%d offen%s" % (it, vr(V_QN, 4), V_L16, S_WS, S_WS + 3, S_T0, SC)])
            if it == 3:
                if t == 0: add(T, 3, ["s_add_u32 s%d, s%d, 4096" % (S_KO, S_KO)])
                kl = ["VM:K%d|buffer_load_dwordx4 %s, v%d, s[%d:%d], s%d offen offset:%d%s" % (t, vr(V_K + 4 * t, 4), V_L16, S_WS, S_WS + 3, S_KO, (t & 3) * 1024, SC)]
                if t == 3: kl.append("s_add_u32 s%d, s%d, 4096" % (S_KO, S_KO))
                add(T, 14, kl)
            if (it == 3 and t >= 1) or (it == 4 and t == 0):
                tv = (t - 1) % NT
                vl = []
                if tv == 0 or tv == 4: vl.append("s_add_u32 s%d, s%d, 4096" % (S_VO, S_VO))
                vl.append("s_mov_b64 exec, s[%d:%d]" % (S_EXM, S_EXM + 1))
                for gq in (2 * tv, 2 * tv + 1):
                    vl.append("VM:V%d|buffer_load_dwordx4 %s, v%d, s[%d:%d], s%d offen offset:%d%s" % (tv, ar(A_V + 4 * gq, 4), V_VOFF, S_WS, S_WS + 3, S_VO, (gq & 7) * 512, SC))
                vl.append("s_mov_b64 exec, -1")
                add(T, 7, vl)
            if it == 3 and t == 7: add(T, 8, ["WAITVM:K0"])
            if it == 4:
                if t < 7: add(T, 8, ["WAITVM:K%d" % (t + 1)])
                add(T, 16, ["WAITVM:V%d" % t])
            if t == 7:
                add(T, 1, ["WAITVM:Q%d" % it])
                add(T, 2, ["v_mov_b32 v%d, v%d" % (V_Q + r, V_QN + r) for r in range(4)])
                Bf = Buf(); slow_set_c(Bf, "I%d" % it, V_S[0], (it + 1) & 3)
                for l in Bf.lines:
                    B(("NT|" + l) if l.startswith("ds_") else l)
            e_ = dict(ex[T]);
            if X2 in e_: e_["x"] = e_.pop(X2)
            tile(B, t, e_, oinit)

def s2_spin(A):
    A("S2_SPIN:")
    A("s_mov_b32 s%d, 0" % S_SPIN)
    A("S2_SPIN_L:")
    A("buffer_load_dword v%d, v%d, s[%d:%d], s%d offen sc1" % (V_FLG, V_FLG + 1, S_WS, S_WS + 3, S_FA))
    A("s_waitcnt vmcnt(0)")
    A("v_cmp_ne_u32 vcc, s%d, v%d" % (S_NONCE, V_FLG))
    A("s_add_u32 s%d, s%d, 1" % (S_SPIN, S_SPIN))
    A("s_nop 3")
    A("s_and_b32 vcc_lo, vcc_lo, 0x3fffffff")
    A("s_and_b32 vcc_hi, vcc_hi, 0x3fffffff")
    A("s_cmp_gt_u32 s%d, 400000" % S_SPIN)
    A("s_cbranch_scc1 S2_SPIN_D")
    A("s_cmp_eq_u64 vcc, 0")
    A("s_cbranch_scc1 S2_SPIN_D")
    A("s_sleep 4")
    A("s_branch S2_SPIN_L")
    A("S2_SPIN_D:")
    A("s_setpc_b64 s[0:1]")

def fa_spin(A):
    A("FA_SPIN:")
    A("s_mov_b32 s%d, 0" % S_SPIN)
    A("FA_SPIN_L:")
    A("s_lshl_b32 s%d, s%d, 9" % (S_T0, S_W8))
    A("s_add_u32 s%d, s%d, 0x%x" % (S_T0, S_T0, WS_F1))
    A("v_lshlrev_b32 v%d, 3, v%d" % (V_T, V_LANE))
    A("buffer_load_dwordx2 %s, v%d, s[%d:%d], s%d offen sc1" % (vr(V_T + 1, 2), V_T, S_WS, S_WS + 3, S_T0))
    A("buffer_load_dword v%d, v%d, s[%d:%d], s%d offen sc1" % (V_FLG, V_FLG + 1, S_WS, S_WS + 3, S_FA))
    A("s_waitcnt vmcnt(0)")
    A("v_cmp_ne_u32 vcc, s%d, v%d" % (S_NONCE, V_T + 1))
    A("v_cmp_ne_u32 s[%d:%d], s%d, v%d" % (S_T2, S_T3, S_NONCE, V_T + 2))
    A("s_nop 3")
    A("s_or_b64 vcc, vcc, s[%d:%d]" % (S_T2, S_T3))
    A("v_cmp_ne_u32 s[%d:%d], s%d, v%d" % (S_T2, S_T3, S_NONCE, V_FLG))
    A("s_add_u32 s%d, s%d, 1" % (S_SPIN, S_SPIN))
    A("s_nop 3")
    A("s_or_b64 vcc, vcc, s[%d:%d]" % (S_T2, S_T3))
    A("s_cmp_gt_u32 s%d, 400000" % S_SPIN)
    A("s_cbranch_scc1 FA_SPIN_D")
    A("s_cmp_eq_u64 vcc, 0")
    A("s_cbranch_scc1 FA_SPIN_D")
    A("s_sleep 4")
    A("s_branch FA_SPIN_L")
    A("FA_SPIN_D:")
    A("s_setpc_b64 s[0:1]")

def fg_spin(A):
    A("FG_SPIN:")
    A("s_mov_b32 s%d, 0" % S_SPIN)
    A("FG_SPIN_L:")
    A("buffer_load_dword v%d, v%d, s[%d:%d], s%d offen sc1" % (V_FLG, V_FLG + 1, S_WS, S_WS + 3, S_FA))
    A("s_waitcnt vmcnt(0)")
    A("v_cmp_ne_u32 vcc, s%d, v%d" % (S_NONCE, V_FLG))
    A("s_add_u32 s%d, s%d, 1" % (S_SPIN, S_SPIN))
    A("s_nop 3")
    A("s_cmp_gt_u32 s%d, 400000" % S_SPIN)
    A("s_cbranch_scc1 FG_SPIN_D")
    A("s_cmp_eq_u64 vcc, 0")
    A("s_cbranch_scc1 FG_SPIN_D")
    A("s_sleep 4")
    A("s_branch FG_SPIN_L")
    A("FG_SPIN_D:")
    A("s_setpc_b64 s[0:1]")

def tail_t2(A):
    attn_epilogue(A)
    A("s_waitcnt vmcnt(0)")
    A("s_lshl_b32 s%d, s%d, 2" % (S_T0, S_QB))
    A("s_lshr_b32 s%d, s%d, 1" % (S_T1, S_W8))
    A("s_add_u32 s%d, s%d, s%d" % (S_T0, S_T0, S_T1))
    A("s_lshl_b32 s%d, s%d, 8" % (S_T0, S_T0))
    A("s_lshl_b32 s%d, s%d, 1" % (S_T1, S_HEAD))
    A("s_and_b32 s%d, s%d, 1" % (S_T2, S_W8))
    A("s_add_u32 s%d, s%d, s%d" % (S_T1, S_T1, S_T2))
    A("s_lshl_b32 s%d, s%d, 2" % (S_T1, S_T1))
    A("s_add_u32 s%d, s%d, s%d" % (S_T0, S_T0, S_T1))
    A("s_add_u32 s%d, s%d, 0x%x" % (S_T0, S_T0, WS_F3))
    store_flag(A, S_T0)
    stamp(A, 10)
    A("s_barrier")
    for i in range(8):
        emit(A, w_reads(i, V_WF8 + 8 * i))
        if i % 3 == 2: A("s_waitcnt lgkmcnt(0)")
    A("v_sub_f32 v%d, 1.0, v%d" % (V_G + 1, V_G))
    for r in range(32):
        A("v_mul_f32 v%d, v%d, v%d" % (V_ACCB + r, V_G + 1, V_ACCB + r))
    A("s_waitcnt lgkmcnt(0)")
    A("s_cmp_lg_u32 s%d, 0" % S_W8)
    A("s_cbranch_scc1 S3_SKIP")
    poll_flags(A, "3", WS_F3, S_RB3, 0, 64)
    A("S3_SKIP:")
    A("s_barrier")
    stamp(A, 11)
    outproj(A)

def o_loads(A):
    for i in range(8):
        A("buffer_load_dwordx4 %s, v%d, s[%d:%d], s%d offen offset:%d%s" % (vr(V_ACT8 + 4 * i, 4), V_L16, S_WS, S_WS + 3, S_AO if i < 4 else S_WO0, (i & 3) * 1024, SC))

def tail_dp(A):
    attn_epilogue(A)
    A("s_lshl_b32 s%d, s%d, 1" % (S_T0, S_RB3))
    A("s_and_b32 s%d, s%d, 1" % (S_T1, S_W8))
    A("s_add_u32 s%d, s%d, s%d" % (S_T0, S_T0, S_T1))
    A("s_lshl_b32 s%d, s%d, 15" % (S_AO, S_T0))
    A("s_lshr_b32 s%d, s%d, 1" % (S_T1, S_W8))
    A("s_lshl_b32 s%d, s%d, 13" % (S_T1, S_T1))
    A("s_add_u32 s%d, s%d, s%d" % (S_AO, S_AO, S_T1))
    A("s_add_u32 s%d, s%d, 0x%x" % (S_AO, S_AO, WS_OF))
    A("s_add_u32 s%d, s%d, 4096" % (S_WO0, S_AO))
    o_loads(A)
    A("s_waitcnt vmcnt(9)")
    stamp(A, 10)
    A("s_barrier")
    for i in range(8):
        emit(A, w_reads(i, V_WF8 + 8 * i))
        if i % 3 == 2: A("s_waitcnt lgkmcnt(0)")
    A("v_sub_f32 v%d, 1.0, v%d" % (V_G + 1, V_G))
    for r in range(32):
        A("v_mul_f32 v%d, v%d, v%d" % (V_ACCB + r, V_G + 1, V_ACCB + r))
    A("s_waitcnt lgkmcnt(0)")
    A("s_barrier")
    A("s_mov_b32 s%d, 0" % S_SPIN)
    A("O_POLL:")
    A("s_waitcnt vmcnt(0)")
    T = 16
    for i in range(8):
        b = V_ACT8 + 4 * i
        A("v_max3_u32 v%d, v%d, v%d, v%d" % (T + i, b, b + 1, b + 2))
    for i in range(8):
        A("v_max_u32 v%d, v%d, v%d" % (T + i, T + i, V_ACT8 + 4 * i + 3))
    A("v_max3_u32 v%d, v%d, v%d, v%d" % (T, T, T + 1, T + 2))
    A("v_max3_u32 v%d, v%d, v%d, v%d" % (T + 3, T + 3, T + 4, T + 5))
    A("v_max3_u32 v%d, v%d, v%d, v%d" % (T, T, T + 6, T + 7))
    A("v_max_u32 v%d, v%d, v%d" % (T, T, T + 3))
    A("v_cmp_eq_u32 vcc, -1, v%d" % T)
    A("s_add_u32 s%d, s%d, 1" % (S_SPIN, S_SPIN))
    A("s_nop 3")
    A("s_cmp_eq_u64 vcc, 0")
    A("s_cbranch_scc1 O_OK")
    A("s_cmp_gt_u32 s%d, 400000" % S_SPIN)
    A("s_cbranch_scc1 O_OK")
    A("s_sleep %d" % Cfg.dpsleep)
    if Cfg.dplight:
        A("O_LIGHT:")
        A("v_lshrrev_b32 v%d, 3, v%d" % (T + 8, V_LANE))
        A("v_lshlrev_b32 v%d, 10, v%d" % (T + 8, T + 8))
        A("v_and_b32 v%d, 7, v%d" % (T + 9, V_LANE))
        A("v_lshlrev_b32 v%d, 7, v%d" % (T + 9, T + 9))
        A("v_add_u32 v%d, v%d, v%d" % (T + 8, T + 8, T + 9))
        A("buffer_load_dword v%d, v%d, s[%d:%d], s%d offen%s" % (T + 9, T + 8, S_WS, S_WS + 3, S_AO, SC))
        A("s_waitcnt vmcnt(0)")
        A("v_cmp_eq_u32 vcc, -1, v%d" % (T + 9))
        A("s_add_u32 s%d, s%d, 1" % (S_SPIN, S_SPIN))
        A("s_nop 3")
        A("s_cmp_eq_u64 vcc, 0")
        A("s_cbranch_scc1 O_RELOAD")
        A("s_cmp_gt_u32 s%d, 400000" % S_SPIN)
        A("s_cbranch_scc1 O_RELOAD")
        A("s_sleep %d" % Cfg.dpsleep)
        A("s_branch O_LIGHT")
        A("O_RELOAD:")
    o_loads(A)
    A("s_branch O_POLL")
    A("O_OK:")
    stamp(A, 11)
    for i in range(8):
        for u in range(2):
            d = vr(V_ACCA + 16 * u, 16)
            A(mfma(d, vr(V_WF8 + 8 * i + 4 * u, 4), vr(V_ACT8 + 4 * i, 4), "0" if i == 0 else d))

def attn_epilogue(A):
    t0 = V_T
    R = 16
    A("s_mul_i32 s%d, s%d, %d" % (S_T0, S_W8, OSLOT))
    A("v_add_u32 v%d, s%d, v%d" % (t0, S_T0, V_L16))
    A("v_lshlrev_b32 v%d, 2, v%d" % (t0 + 1, V_LANE))
    A("v_add_u32 v%d, s%d, v%d" % (t0 + 1, S_T0, t0 + 1))
    for kg in range(4):
        b = R + 12 * kg
        A("ds_read_b128 %s, v%d offset:%d" % (vr(b, 4), t0, kg * 8 * OSLOT))
        A("ds_read_b128 %s, v%d offset:%d" % (vr(b + 4, 4), t0, kg * 8 * OSLOT + 1024))
        A("ds_read_b32 v%d, v%d offset:%d" % (b + 8, t0 + 1, kg * 8 * OSLOT + 2048))
    A("s_lshl_b32 s%d, s%d, 3" % (S_T0, S_QB))
    A("s_add_u32 s%d, s%d, s%d" % (S_T0, S_T0, S_W8))
    A("s_lshl_b32 s%d, s%d, 5" % (S_T0, S_T0))
    A("s_add_u32 s%d, s%d, s%d" % (S_T0, S_T0, S_HEAD))
    A("s_lshl_b32 s%d, s%d, 10" % (S_T0, S_T0))
    A("s_add_u32 s%d, s%d, 0x%x" % (S_T0, S_T0, WS_OF))
    A("s_waitcnt lgkmcnt(0)")
    for r in range(9):
        A("v_add_f32 v%d, v%d, v%d" % (R + r, R + r, R + 12 + r))
        A("v_add_f32 v%d, v%d, v%d" % (R + 24 + r, R + 24 + r, R + 36 + r))
    for r in range(9):
        A("v_add_f32 v%d, v%d, v%d" % (R + r, R + r, R + 24 + r))
    if Cfg.zrows:
        A("v_mov_b32 v%d, v%d" % (R + 9, R + 8))
        A("s_nop 1")
        A("v_permlane32_swap_b32 v%d, v%d" % (R + 8, R + 9))
        A("s_nop 1")
    A("v_rcp_f32 v%d, v%d" % (R + 8, R + 8))
    A("s_nop 0")
    for r in range(8):
        A("v_mul_f32 v%d, v%d, v%d" % (R + r, R + r, R + 8))
    P = 64
    for p in range(4):
        A("v_cvt_pk_bf16_f32 v%d, v%d, v%d" % (P + p, R + 2 * p, R + 2 * p + 1))
    A("buffer_store_dwordx4 %s, v%d, s[%d:%d], s%d offen%s" % (vr(P, 4), V_L16, S_WS, S_WS + 3, S_T0, SC))

V_WF8 = 32
V_ACT8 = 96
V_ACCA = 160
V_G = 14
def outproj_prefetch(A):
    srd(A, S_WD, P_WO, 512 * 1024)
    A("s_lshl_b32 s%d, s%d, 16" % (S_WO0, S_W8))
    A("s_lshl_b32 s%d, s%d, 7" % (S_T1, S_CB3))
    A("s_add_u32 s%d, s%d, s%d" % (S_WO0, S_WO0, S_T1))
    A("s_add_u32 s%d, s%d, 8192" % (S_WO1, S_WO0))
    for i in range(4):
        A("s_add_u32 m0, s%d, %d" % (S_LB, i * 2048)); A("s_nop 0")
        A("buffer_load_dwordx4 v%d, s[%d:%d], s%d offen lds" % (V_DO, S_WD, S_WD + 3, S_WO0))
        A("s_add_u32 m0, s%d, %d" % (S_LB, i * 2048 + 1024)); A("s_add_u32 s%d, s%d, 16384" % (S_WO0, S_WO0))
        A("buffer_load_dwordx4 v%d, s[%d:%d], s%d offen lds" % (V_DO, S_WD, S_WD + 3, S_WO1))
        A("s_add_u32 s%d, s%d, 16384" % (S_WO1, S_WO1))
    A("s_and_b32 s%d, s%d, 1" % (S_T1, S_W8))
    A("s_lshl_b32 s%d, s%d, 13" % (S_T1, S_T1))
    A("v_subrev_u32 v%d, s%d, v%d" % (V_RA, S_T1, V_RA))
    A("v_subrev_u32 v%d, s%d, v%d" % (V_RA + 1, S_T1, V_RA + 1))

def outproj(A):
    A("s_lshl_b32 s%d, s%d, 1" % (S_T0, S_RB3))
    A("s_and_b32 s%d, s%d, 1" % (S_T1, S_W8))
    A("s_add_u32 s%d, s%d, s%d" % (S_T0, S_T0, S_T1))
    A("s_lshl_b32 s%d, s%d, 15" % (S_AO, S_T0))
    A("s_lshr_b32 s%d, s%d, 1" % (S_T1, S_W8))
    A("s_lshl_b32 s%d, s%d, 13" % (S_T1, S_T1))
    A("s_add_u32 s%d, s%d, s%d" % (S_AO, S_AO, S_T1))
    A("s_add_u32 s%d, s%d, 0x%x" % (S_AO, S_AO, WS_OF))
    for i in range(8):
        if i == 4: A("s_add_u32 s%d, s%d, 4096" % (S_AO, S_AO))
        A("buffer_load_dwordx4 %s, v%d, s[%d:%d], s%d offen offset:%d%s" % (vr(V_ACT8 + 4 * i, 4), V_L16, S_WS, S_WS + 3, S_AO, (i & 3) * 1024, SC))
    for i in range(8):
        A("s_waitcnt vmcnt(%d)" % (7 - i))
        for u in range(2):
            d = vr(V_ACCA + 16 * u, 16)
            A(mfma(d, vr(V_WF8 + 8 * i + 4 * u, 4), vr(V_ACT8 + 4 * i, 4), "0" if i == 0 else d))

def final(A):
    t0, t1 = V_T, V_T + 1
    A("s_lshl_b32 s%d, s%d, 13" % (S_T0, S_W8))
    A("s_nop 7")
    A("s_nop 3")
    for r in range(32):
        A("v_fmac_f32 v%d, v%d, v%d" % (V_ACCB + r, V_G, V_ACCA + r))
    A("s_lshl_b32 s%d, s%d, 13" % (S_T0, S_W8))
    A("s_add_u32 s%d, s%d, %d" % (S_T0, S_T0, L_W))
    A("v_add_u32 v%d, s%d, v%d" % (t0, S_T0, V_L16))
    for u in range(2):
        for q in range(4):
            A("ds_write_b128 v%d, %s offset:%d" % (t0, vr(V_ACCB + 16 * u + 4 * q, 4), u * 4096 + q * 1024))
    A("s_waitcnt lgkmcnt(0)")
    A("s_barrier")
    A("s_and_b32 s%d, s%d, 1" % (S_T0, S_W8))
    A("s_lshl_b32 s%d, s%d, 13" % (S_T0, S_T0))
    A("s_lshr_b32 s%d, s%d, 1" % (S_T1, S_W8))
    A("s_and_b32 s%d, s%d, 1" % (S_T1, S_T1))
    A("s_lshl_b32 s%d, s%d, 12" % (S_T2, S_T1))
    A("s_add_u32 s%d, s%d, s%d" % (S_T0, S_T0, S_T2))
    A("s_lshr_b32 s%d, s%d, 2" % (S_T2, S_W8))
    A("s_lshl_b32 s%d, s%d, 11" % (S_T3, S_T2))
    A("s_add_u32 s%d, s%d, s%d" % (S_T0, S_T0, S_T3))
    A("s_add_u32 s%d, s%d, %d" % (S_T0, S_T0, L_W))
    A("v_add_u32 v%d, s%d, v%d" % (t0, S_T0, V_L16))
    R = 32
    for kq in range(4):
        for q in range(2):
            A("ds_read_b128 %s, v%d offset:%d" % (vr(R + 8 * kq + 4 * q, 4), t0, kq * 16384 + q * 1024))
    A("v_and_b32 v%d, 31, v%d" % (t1, V_LANE))
    A("v_lshlrev_b32 v%d, 10, v%d" % (t1, t1))
    A("v_lshrrev_b32 v%d, 5, v%d" % (t0 + 2, V_LANE))
    A("v_lshlrev_b32 v%d, 4, v%d" % (t0 + 2, t0 + 2))
    A("v_add_u32 v%d, v%d, v%d" % (t1, t1, t0 + 2))
    A("s_lshl_b32 s%d, s%d, 16" % (S_T0, S_RB3))
    A("s_and_b32 s%d, s%d, 1" % (S_T3, S_W8))
    A("s_lshl_b32 s%d, s%d, 15" % (S_T3, S_T3))
    A("s_add_u32 s%d, s%d, s%d" % (S_T0, S_T0, S_T3))
    A("s_lshl_b32 s%d, s%d, 7" % (S_T3, S_CB3))
    A("s_add_u32 s%d, s%d, s%d" % (S_T0, S_T0, S_T3))
    A("s_lshl_b32 s%d, s%d, 6" % (S_T1, S_T1))
    A("s_add_u32 s%d, s%d, s%d" % (S_T0, S_T0, S_T1))
    A("s_lshl_b32 s%d, s%d, 5" % (S_T2, S_T2))
    A("s_add_u32 s%d, s%d, s%d" % (S_T0, S_T0, S_T2))
    A("s_waitcnt lgkmcnt(0)")
    for r in range(8):
        A("v_add_f32 v%d, v%d, v%d" % (R + r, R + r, R + 8 + r))
        A("v_add_f32 v%d, v%d, v%d" % (R + 16 + r, R + 16 + r, R + 24 + r))
    for r in range(8):
        A("v_add_f32 v%d, v%d, v%d" % (R + r, R + r, R + 16 + r))
    P = 64
    for p in range(4):
        A("v_cvt_pk_bf16_f32 v%d, v%d, v%d" % (P + p, R + 2 * p, R + 2 * p + 1))
    A("s_nop 1")
    A("v_permlane32_swap_b32 v%d, v%d" % (P, P + 2))
    A("v_permlane32_swap_b32 v%d, v%d" % (P + 1, P + 3))
    A("buffer_store_dwordx4 %s, v%d, s[%d:%d], s%d offen%s" % (vr(P, 4), t1, S_OUT, S_OUT + 3, S_T0, Cfg.outmod))

def nonce_check(A, tag):
    A("v_readfirstlane_b32 s%d, v%d" % (S_NONCE, V_NONCE))
    A("s_nop 3")
    A("s_cmp_lg_u32 s%d, 0" % S_NONCE)
    A("s_cbranch_scc1 NONCE_OK%s" % tag)
    get_nonce(A, tag)
    A("NONCE_OK%s:" % tag)

def zero_ob(A):
    t0 = V_T
    for r in range(4): A("v_mov_b32 v%d, 0" % (32 + r))
    A("s_mul_i32 s%d, s%d, 4608" % (S_T0, S_WAVE))
    A("v_add_u32 v%d, s%d, v%d" % (t0, S_T0, V_L16))
    for k in range(4):
        A("ds_write_b128 v%d, %s offset:%d" % (t0, vr(32, 4), L_OB + k * 1024))
    A("s_mov_b64 exec, 0xffffffff")
    A("ds_write_b128 v%d, %s offset:%d" % (t0, vr(32, 4), L_OB + 4096))
    A("s_mov_b64 exec, -1")
    A("s_waitcnt lgkmcnt(0)")

def attn_setup_common(A):
    slow_prepass(A)
    for r in range(16): A("v_mov_b32 v%d, 0" % (V_S[1] + r))
    for r in range(8): A("v_mov_b32 v%d, 0" % (V_P + r))
    Z = V_QN
    for r in range(4): A("v_mov_b32 v%d, 0" % (Z + r))
    A("s_nop 1")
    A(mfma(vr(V_ACCB, 16), vr(Z, 4), vr(Z, 4), "0"))
    A(mfma(vr(V_ACCB + 16, 16), vr(Z, 4), vr(Z, 4), "0"))
    A(mfma(vr(V_O, 16), vr(Z, 4), vr(Z, 4), "0"))
    A(mfma(vr(V_S[0], 16), vr(V_K, 4), vr(V_Q, 4), vr(V_C, 16)))
    A("s_nop 15")

def build():
    A = BarAsm()
    prologue(A)
    if "sv" in Cfg.exp:
        A("s_mov_b32 s%d, 0" % S_SVI)
        A("v_mov_b32 v13, 0")
        SV.reg = 13
        stampv(A)
        A.on = True
    rstamp(A, S_R0)
    stamp(A, 0)
    A("s_cmp_ge_u32 s%d, 4" % S_W8)
    A("s_cbranch_scc1 K_B")
    role_a(A)
    A("s_branch K_ATT")
    A("K_B:")
    role_b(A)
    A("K_ATT:")
    A.on = False
    SV.reg = 40
    stampv(A)
    stampv_flush(A)
    stamp(A, 7)
    attn_setup_common(A)
    stamp(A, 8)
    B = Buf()
    attn_all(B)
    Track().resolve(A, B.lines)
    A("s_nop 0")
    A("v_cvt_pk_bf16_f32 v%d, v%d, v%d" % (V_P + 7, V_S[1] + 14, V_S[1] + 15))
    if Cfg.t2 or Cfg.dp2:
        A("s_waitcnt lgkmcnt(0)")
        A("s_nop 0")
        A(mfma(vr(V_O, 16), ar(A_V + 4 * 15, 4), vr(V_P + 4, 4), vr(V_O, 16)))
        A("s_and_b32 s%d, s%d, 1" % (S_T1, S_W8))
        A("s_lshl_b32 s%d, s%d, 13" % (S_T1, S_T1))
        A("v_subrev_u32 v%d, s%d, v%d" % (V_RA, S_T1, V_RA))
        A("v_subrev_u32 v%d, s%d, v%d" % (V_RA + 1, S_T1, V_RA + 1))
        A("s_nop 7")
    else:
        A("s_waitcnt vmcnt(0) lgkmcnt(0)")
        A("s_nop 0")
        A(mfma(vr(V_O, 16), ar(A_V + 4 * 15, 4), vr(V_P + 4, 4), vr(V_O, 16)))
        outproj_prefetch(A)
    emit(A, flush_lines(3))
    A("s_waitcnt lgkmcnt(0)")
    stamp(A, 9)
    A("s_barrier")
    if Cfg.dp:
        tail_dp(A)
    elif Cfg.t2:
        tail_t2(A)
    else:
        attn_epilogue(A)
        A("s_waitcnt vmcnt(0)")
        A("s_lshl_b32 s%d, s%d, 2" % (S_T0, S_QB))
        A("s_lshr_b32 s%d, s%d, 1" % (S_T1, S_W8))
        A("s_add_u32 s%d, s%d, s%d" % (S_T0, S_T0, S_T1))
        A("s_lshl_b32 s%d, s%d, 8" % (S_T0, S_T0))
        A("s_lshl_b32 s%d, s%d, 1" % (S_T1, S_HEAD))
        A("s_and_b32 s%d, s%d, 1" % (S_T2, S_W8))
        A("s_add_u32 s%d, s%d, s%d" % (S_T1, S_T1, S_T2))
        A("s_lshl_b32 s%d, s%d, 2" % (S_T1, S_T1))
        A("s_add_u32 s%d, s%d, s%d" % (S_T0, S_T0, S_T1))
        A("s_add_u32 s%d, s%d, 0x%x" % (S_T0, S_T0, WS_F3))
        store_flag(A, S_T0)
        stamp(A, 10)
        A("s_barrier")
        poll_flags(A, "2g", WS_F2, S_RB3, 0)
        A("v_and_b32 v%d, 31, v%d" % (V_T, V_LANE))
        A("v_lshlrev_b32 v%d, 2, v%d" % (V_T, V_T))
        A("s_lshl_b32 s%d, s%d, 1" % (S_T0, S_RB3))
        A("s_and_b32 s%d, s%d, 1" % (S_T1, S_W8))
        A("s_add_u32 s%d, s%d, s%d" % (S_T0, S_T0, S_T1))
        A("s_lshl_b32 s%d, s%d, 7" % (S_T0, S_T0))
        A("s_add_u32 s%d, s%d, 0x%x" % (S_T0, S_T0, WS_G))
        A("buffer_load_dword v%d, v%d, s[%d:%d], s%d offen%s" % (V_G, V_T, S_WS, S_WS + 3, S_T0, SC))
        for i in range(8):
            emit(A, w_reads(i, V_WF8 + 8 * i))
            if i % 3 == 2: A("s_waitcnt lgkmcnt(0)")
        A("s_waitcnt lgkmcnt(0)")
        A("s_waitcnt vmcnt(0)")
        A("v_sub_f32 v%d, 1.0, v%d" % (V_G + 1, V_G))
        for r in range(32):
            A("v_mul_f32 v%d, v%d, v%d" % (V_ACCB + r, V_G + 1, V_ACCB + r))
        A("s_cmp_lg_u32 s%d, 0" % S_W8)
        A("s_cbranch_scc1 S3_SKIP")
        poll_flags(A, "3", WS_F3, S_RB3, 0, 64)
        A("S3_SKIP:")
        A("s_barrier")
        stamp(A, 11)
        outproj(A)
    final(A)
    stamp(A, 12)
    rstamp(A, S_R1)
    stamp_flush(A, 13)
    if not Cfg.noendwait: A("s_waitcnt vmcnt(0)")
    A("K_END:")
    A("s_endpgm")
    s2_spin(A)
    if Cfg.dp: fa_spin(A)
    if Cfg.t2: fg_spin(A)
    return A.text()

def write(fn, stamps=False):
    Cfg.stamps = stamps
    body = build()
    t, d = kernel_text(NAME + "_kernel", body, vgpr=192, agpr=64)
    t += "K_CODE_END:\n.set CODE_BYTES, K_CODE_END - %s_kernel\n" % NAME
    txt = file_text([(None, 256, 512, 163840)], [(t, d)])
    open(fn, "w").write(txt)
    return txt

def variant(name, stamps=False, **kw):
    old = {k: getattr(Cfg, k) for k in kw}
    for k, v_ in kw.items(): setattr(Cfg, k, v_)
    txt = write(name, stamps)
    for k, v_ in old.items(): setattr(Cfg, k, v_)
    return txt

if __name__ == "__main__":
    import hazard, sys
    if len(sys.argv) > 1:
        for e in sys.argv[1:]:
            Cfg.exp = set(e.split("+"))
            Cfg.prio_b = 1 if "pb1" in Cfg.exp else 0
            write("mk10_x_%s.s" % e, True)
        sys.exit(0)
    for st in (False, True):
        txt = write("mk10_st.s" if st else "mk10.s", st)
        hazard.check(txt)
```

```python
from gen import *
import struct

WS_QF = 0x0000000
WS_KF = 0x0200000
WS_VF = 0x0400000
WS_OF = 0x0600000
WS_HF = 0x0800000
HF_BYTES = 64 * 86 * 1024
WS_NQ = 0x0E00000
WS_NK = 0x0E02000
WS_G  = 0x0E04000
WS_F1 = 0x0E10000
WS_F2 = 0x0E11000
WS_F3 = 0x0E13000
WS_ST = 0x1700000
WS_SIZE = 0x1800000
QSCALE = 0.25 * 1.4426950408889634
def f32bits(x): return struct.unpack("<I", struct.pack("<f", x))[0]

class Cfg:
    stamps = False
    exp = set()
    prio_b = 1
    prio_t = 28
    dp = False
    slg = 24
    sother = 8
    s3sleep = 2
    s2sleep = 4
    tlbw = False
    tlb = 0
    ord2 = False
    gfirst = False
    wmod1 = ''
    wmod2 = ''
    xmod = ''
    n22 = True
    qalt = True
    bt5 = None
    flagfirst = False
    bdown = False
    bd_depth = 6
    bd_prio = 1
    coop = 0
    noendwait = True
    outmod = ''
    dp2 = False
    dpsleep = 1
    dplight = False
    t2 = True
    t2touch = True
    m1b = 0.3
    map2 = False
    btouch = False
    ptouch = None
    zrows = True
    ct0 = True
    wtouch = False
    trans = 'm1'
    bz = True
    early = 13
SC = " sc1"

S_AX, S_B1, S_B2, S_B3, S_WS = 4, 8, 12, 16, 20
S_W8, S_WAVE = 24, 25
S_RB1, S_CG1, S_KC1, S_XB1, S_WB1, S_WX1 = 26, 27, 28, 29, 30, 31
S_RB2, S_CG2, S_KC2, S_XB2, S_WB2, S_WX2, S_WW2 = 32, 33, 34, 35, 36, 37, 38
S_I, S_SLI, S_SLR = 39, 40, 41
S_GX, S_GW0, S_GW1, S_GM, S_GM2 = 42, 43, 44, 45, 46
S_T0, S_T1, S_T2, S_T3 = 48, 49, 50, 51
S_C = 52
S_NONCE = 56
S_HEAD, S_QB, S_QOFF, S_SLOW = 57, 58, 59, 60
S_SPIN = 61
S_EXM = 62
S_PTR = 64
P_AX, P_WQKV, P_WO, P_BX, P_WG, P_WU, P_WD, P_GW, P_OUT, P_DBG, P_WS = [S_PTR + 2 * i for i in range(11)]
S_ST = 86
S_R0, S_R1 = 39 + 62, 3
S_RB3, S_CB3, S_LB, S_AO, S_WO0, S_WO1, S_FA = 70, 71, 66, 72, 73, 74, 75
S_HF = 8

def srd(A, d, p, nbytes, add=0):
    if add:
        A("s_add_u32 s%d, s%d, 0x%x" % (d, p, add))
        A("s_addc_u32 s%d, s%d, 0" % (d + 1, p + 1))
    else:
        A("s_mov_b32 s%d, s%d" % (d, p))
        A("s_mov_b32 s%d, s%d" % (d + 1, p + 1))
    A("s_mov_b32 s%d, 0x%x" % (d + 2, nbytes))
    A("s_mov_b32 s%d, 0x00020000" % (d + 3))

def stamp(A, idx):
    if not Cfg.stamps: return
    if "miss" in Cfg.exp and idx in (11, 12): return
    A("s_memtime s[%d:%d]" % (S_ST, S_ST + 1))
    A("s_waitcnt lgkmcnt(0)")
    A("s_mov_b32 s%d, s%d" % (S_ST + 2 + idx, S_ST))
V_STV = 10
class SV: reg = 10
def stampv(A, idx=None):
    if "sv" not in Cfg.exp: return
    A("s_memtime s[%d:%d]" % (S_ST, S_ST + 1))
    A("s_waitcnt lgkmcnt(0)")
    if idx is None:
        A("v_cmp_eq_u32 vcc, s%d, v%d" % (S_SVI, V_LANE))
        A("v_mov_b32 v%d, s%d" % (V_T + 1, S_ST))
        A("s_add_u32 s%d, s%d, 1" % (S_SVI, S_SVI))
        A("s_nop 1")
        A("v_cndmask_b32 v%d, v%d, v%d, vcc" % (SV.reg, SV.reg, V_T + 1))
def stampv_flush(A):
    if "sv" not in Cfg.exp: return
    A("s_lshl_b32 s%d, s2, 3" % (S_ST + 1))
    A("s_add_u32 s%d, s%d, s%d" % (S_ST + 1, S_ST + 1, S_W8))
    A("s_lshl_b32 s%d, s%d, 8" % (S_ST + 1, S_ST + 1))
    A("s_add_u32 s%d, s%d, 0x%x" % (S_ST + 1, S_ST + 1, WS_ST + 0x80000))
    A("v_lshlrev_b32 v%d, 2, v%d" % (V_T, V_LANE))
    A("buffer_store_dword v%d, v%d, s[%d:%d], s%d offen" % (40, V_T, S_WS, S_WS + 3, S_ST + 1))
S_SVI = 100
def rstamp(A, sreg):
    if not Cfg.stamps: return
    A("s_memrealtime s[%d:%d]" % (S_ST, S_ST + 1))
    A("s_waitcnt lgkmcnt(0)")
    A("s_mov_b32 s%d, s%d" % (sreg, S_ST))
def stamp_flush(A, n):
    if not Cfg.stamps: return
    A("s_lshl_b32 s%d, s2, 3" % (S_ST + 1))
    A("s_add_u32 s%d, s%d, s%d" % (S_ST + 1, S_ST + 1, S_W8))
    A("s_lshl_b32 s%d, s%d, 7" % (S_ST + 1, S_ST + 1))
    A("s_add_u32 s%d, s%d, 0x%x" % (S_ST + 1, S_ST + 1, WS_ST))
    A("v_mov_b32 v11, 0")
    A("s_mov_b64 exec, 1")
    for i in range(n):
        A("v_mov_b32 v10, s%d" % (S_ST + 2 + i))
        A("buffer_store_dword v10, v11, s[%d:%d], s%d offen offset:%d" % (S_WS, S_WS + 3, S_ST + 1, 4 * i))
    A("v_mov_b32 v10, s%d" % S_R0)
    A("buffer_store_dword v10, v11, s[%d:%d], s%d offen offset:%d" % (S_WS, S_WS + 3, S_ST + 1, 4 * 14))
    A("v_mov_b32 v10, s%d" % S_R1)
    A("buffer_store_dword v10, v11, s[%d:%d], s%d offen offset:%d" % (S_WS, S_WS + 3, S_ST + 1, 4 * 15))
    A("s_mov_b64 exec, -1")

def emit(A, lines):
    for l in lines: A(l)
def mfma(d, a_, b_, c):
    return "v_mfma_f32_32x32x16_bf16 %s, %s, %s, %s" % (d, a_, b_, c)
def loop(A, name, count, body):
    A("s_mov_b32 s%d, 0" % S_I)
    A(name + ":")
    body()
    A("s_add_u32 s%d, s%d, 1" % (S_I, S_I))
    A("s_cmp_lt_u32 s%d, %d" % (S_I, count))
    A("s_cbranch_scc1 " + name)
def split(lines, n):
    return [lines[(len(lines) * i) // n:(len(lines) * (i + 1)) // n] for i in range(n)]
class BarAsm(Asm):
    on = False
    def __call__(self, txt):
        Asm.__call__(self, txt)
        if self.on and txt.strip() == "s_barrier":
            self.on = False
            stampv(self)
            self.on = True
class Buf:
    def __init__(self): self.lines = []
    def __call__(self, t):
        for l in t.split("\n"):
            if l.strip(): self.lines.append(l.strip())
    def comment(self, t): pass

V_LANE, V_L16 = 1, 2
V_T = 3
V_XO1, V_WO1 = 14, 16
V_XO2, V_WO2 = 17, 21
V_XA, V_WA = 24, 28
V_NONCE = 29
V_TCH = 30
V_F = 32
V_ACC1 = 96
V_ACC2 = 96
SLOT = 40960
NSLOT = 4
NTOUCH = 3
class RA:
    XR, WR = 144, 148

def x_dma_offsets(A, dst, n_instr, rowbase_wave):
    t0, t1, t2 = V_T, V_T + 1, V_T + 2
    for n in range(n_instr):
        A("v_lshrrev_b32 v%d, 3, v%d" % (t0, V_LANE))
        A("s_mul_i32 s%d, s%d, %d" % (S_T0, S_WAVE, rowbase_wave))
        A("s_add_u32 s%d, s%d, %d" % (S_T0, S_T0, 8 * n))
        A("v_add_u32 v%d, s%d, v%d" % (t0, S_T0, t0))
        A("v_lshrrev_b32 v%d, 1, v%d" % (t1, t0))
        A("v_and_b32 v%d, 7, v%d" % (t1, t1))
        A("v_and_b32 v%d, 7, v%d" % (t2, V_LANE))
        A("v_xor_b32 v%d, v%d, v%d" % (t1, t1, t2))
        A("v_lshlrev_b32 v%d, 4, v%d" % (t1, t1))
        A("v_lshlrev_b32 v%d, 10, v%d" % (t0, t0))
        A("v_add_u32 v%d, v%d, v%d" % (dst + n, t0, t1))

def x_read_addrs(A, s_rowtile):
    t0, t1, t2 = V_T, V_T + 1, V_T + 2
    A("v_and_b32 v%d, 31, v%d" % (t0, V_LANE))
    A("s_lshl_b32 s%d, s%d, 5" % (S_T0, s_rowtile))
    A("v_add_u32 v%d, s%d, v%d" % (t0, S_T0, t0))
    A("v_lshrrev_b32 v%d, 1, v%d" % (t1, t0))
    A("v_and_b32 v%d, 7, v%d" % (t1, t1))
    A("v_lshrrev_b32 v%d, 5, v%d" % (t2, V_LANE))
    A("v_xor_b32 v%d, v%d, v%d" % (t1, t1, t2))
    A("v_lshlrev_b32 v%d, 7, v%d" % (t0, t0))
    for s_ in range(4):
        A("v_xor_b32 v%d, %d, v%d" % (t2, 2 * s_, t1))
        A("v_lshlrev_b32 v%d, 4, v%d" % (t2, t2))
        A("v_add_u32 v%d, v%d, v%d" % (V_XA + s_, t0, t2))

def adv_slot(A, sreg):
    A("s_add_u32 s%d, s%d, %d" % (sreg, sreg, SLOT))
    A("s_cmp_eq_u32 s%d, %d" % (sreg, NSLOT * SLOT))
    A("s_cselect_b32 s%d, 0, s%d" % (sreg, sreg))

def dma_lines(m0base, m0add, voff, srdn, soff, imm=0):
    mod = {S_AX: Cfg.xmod, S_B1: Cfg.wmod1, S_B2: Cfg.wmod2, S_B3: Cfg.wmod2}.get(srdn, "")
    return ["s_add_u32 m0, s%d, %d" % (m0base, m0add), "s_nop 0",
            "buffer_load_dwordx4 v%d, s[%d:%d], s%d offen%s%s lds" % (voff, srdn, srdn + 3, soff, (" offset:%d" % imm) if imm else "", mod)]

def issue_group_merged(A, typ, lines):
    B = Buf(); issue_group(B, typ)
    blocks, cur = [], []
    for l in B.lines:
        cur.append(l)
        if l.startswith("buffer_load"): blocks.append(cur); cur = []
    parts = split(lines, len(blocks))
    for b, p in zip(blocks, parts):
        emit(A, b); emit(A, p)
    emit(A, cur)

def issue_group(A, typ):
    if typ == 1:
        emit(A, ["s_lshl_b32 s%d, s%d, 7" % (S_GX, S_KC1), "s_add_u32 s%d, s%d, s%d" % (S_GX, S_GX, S_XB1),
              "s_mul_i32 s%d, s%d, %d" % (S_GW0, S_KC1, 64 * 3072), "s_add_u32 s%d, s%d, s%d" % (S_GW0, S_GW0, S_WB1),
              "s_add_u32 s%d, s%d, %d" % (S_GW1, S_GW0, 8 * 3072),
              "s_add_u32 s%d, s%d, s%d" % (S_GM, S_SLI, S_WX1),
              "s_add_u32 s%d, s%d, 1" % (S_KC1, S_KC1), "s_and_b32 s%d, s%d, 7" % (S_KC1, S_KC1)])
        for n in range(2): emit(A, dma_lines(S_GM, n * 1024, V_XO1 + n, S_AX, S_GX))
        for t in range(3):
            for n in range(2):
                emit(A, dma_lines(S_GM, 8192 + t * 8192 + n * 1024 - t * 1024, V_WO1, S_B1, S_GW0 if n == 0 else S_GW1, t * 1024))
    else:
        emit(A, ["s_lshl_b32 s%d, s%d, 7" % (S_GX, S_KC2), "s_add_u32 s%d, s%d, s%d" % (S_GX, S_GX, S_XB2),
              "s_mul_i32 s%d, s%d, %d" % (S_GW0, S_KC2, 64 * 2752), "s_add_u32 s%d, s%d, s%d" % (S_GW0, S_GW0, S_WB2),
              "s_add_u32 s%d, s%d, s%d" % (S_GM, S_SLI, S_WX2),
              "s_add_u32 s%d, s%d, s%d" % (S_GM2, S_SLI, S_WW2),
              "s_add_u32 s%d, s%d, 1" % (S_KC2, S_KC2), "s_and_b32 s%d, s%d, 7" % (S_KC2, S_KC2)])
        for n in range(4): emit(A, dma_lines(S_GM, n * 1024, V_XO2 + n, S_AX, S_GX))
        for mat in range(2):
            for e in range(3):
                emit(A, dma_lines(S_GM2, mat * 12288 + e * 1024, V_WO2 + e, S_B2 if mat == 0 else S_B3, S_GW0))
    adv_slot(A, S_SLI)

def set_read_addrs(A):
    for s_ in range(4):
        A("v_add_u32 v%d, s%d, v%d" % (RA.XR + s_, S_SLR, V_XA + s_))
    A("v_add_u32 v%d, s%d, v%d" % (RA.WR, S_SLR, V_WA))

def interleave(A, ms, rs):
    n = len(ms); k = 0
    for i, m in enumerate(ms):
        A(m)
        cnt = (len(rs) * (i + 1)) // n - (len(rs) * i) // n
        for _ in range(cnt):
            A(rs[k]); k += 1

def p1_read_list(s_, F):
    L = ["ds_read_b128 %s, v%d" % (vr(F, 4), RA.XR + s_)]
    for t in range(3):
        for q in range(2):
            L.append("ds_read_b64_tr_b16 %s, v%d offset:%d" % (vr(F + 4 + 4 * t + 2 * q, 2), RA.WR, t * 8192 + s_ * 2048 + q * 512))
    return L
A_ACC1 = 0
def p1_mfma_list(F):
    return [mfma(ar(A_ACC1, 16), vr(F + 4, 4), vr(F, 4), ar(A_ACC1, 16)),
            mfma(ar(A_ACC1 + 16, 16), vr(F + 8, 4), vr(F, 4), ar(A_ACC1 + 16, 16)),
            mfma(ar(A_ACC1 + 32, 16), vr(F, 4), vr(F + 12, 4), ar(A_ACC1 + 32, 16))]
def p1_chunk(A):
    for s_ in range(4):
        if Cfg.ptouch and s_ == 0: w_touch(A, 0, "g")
        if Cfg.ptouch and s_ == 2: w_touch(A, 1, "u")
        if s_ == 2:
            A("s_barrier")
            adv_slot(A, S_SLR)
            set_read_addrs(A)
        A("s_waitcnt lgkmcnt(7)")
        interleave(A, p1_mfma_list(V_F + 16 * s_), p1_read_list((s_ + 2) & 3, V_F + 16 * ((s_ + 2) & 3)))

def setup_ids(A):
    A("s_and_b32 s%d, s2, 7" % S_T0)
    A("s_lshr_b32 s%d, s2, 3" % S_T1)
    if not Cfg.map2:
        A("s_lshr_b32 s%d, s%d, 1" % (S_RB1, S_T0))
        A("s_lshl_b32 s%d, s%d, 3" % (S_RB1, S_RB1))
        A("s_and_b32 s%d, s%d, 7" % (S_T2, S_T1))
        A("s_add_u32 s%d, s%d, s%d" % (S_RB1, S_RB1, S_T2))
        A("s_and_b32 s%d, s%d, 1" % (S_CG1, S_T0))
        A("s_lshl_b32 s%d, s%d, 2" % (S_CG1, S_CG1))
        A("s_lshr_b32 s%d, s%d, 3" % (S_T2, S_T1))
        A("s_add_u32 s%d, s%d, s%d" % (S_CG1, S_CG1, S_T2))
        A("s_lshl_b32 s%d, s%d, 1" % (S_T2, S_T2))
        A("s_add_u32 s%d, s%d, s%d" % (S_KC1, S_T1, S_T2))
        A("s_and_b32 s%d, s%d, 7" % (S_KC1, S_KC1))
    else:
        A("s_lshr_b32 s%d, s%d, 2" % (S_RB1, S_T0))
        A("s_lshl_b32 s%d, s%d, 4" % (S_RB1, S_RB1))
        A("s_and_b32 s%d, s%d, 15" % (S_T2, S_T1))
        A("s_add_u32 s%d, s%d, s%d" % (S_RB1, S_RB1, S_T2))
        A("s_and_b32 s%d, s%d, 3" % (S_CG1, S_T0))
        A("s_lshl_b32 s%d, s%d, 1" % (S_CG1, S_CG1))
        A("s_lshr_b32 s%d, s%d, 4" % (S_T2, S_T1))
        A("s_add_u32 s%d, s%d, s%d" % (S_CG1, S_CG1, S_T2))
        A("s_lshl_b32 s%d, s%d, 2" % (S_T2, S_T2))
        A("s_add_u32 s%d, s%d, s%d" % (S_KC1, S_T1, S_T2))
        A("s_and_b32 s%d, s%d, 7" % (S_KC1, S_KC1))
    A("s_lshl_b32 s%d, s%d, 16" % (S_XB1, S_RB1))
    A("s_lshl_b32 s%d, s%d, 7" % (S_WB1, S_CG1))
    A("s_lshl_b32 s%d, s%d, 11" % (S_WX1, S_WAVE))
    if not Cfg.map2:
        A("s_lshr_b32 s%d, s%d, 1" % (S_RB2, S_T0))
        A("s_lshl_b32 s%d, s%d, 2" % (S_RB2, S_RB2))
        A("s_and_b32 s%d, s%d, 3" % (S_T2, S_T1))
        A("s_add_u32 s%d, s%d, s%d" % (S_RB2, S_RB2, S_T2))
        A("s_and_b32 s%d, s%d, 1" % (S_CG2, S_T0))
        A("s_lshl_b32 s%d, s%d, 3" % (S_CG2, S_CG2))
        A("s_lshr_b32 s%d, s%d, 2" % (S_T3, S_T1))
        A("s_add_u32 s%d, s%d, s%d" % (S_CG2, S_CG2, S_T3))
        A("s_lshl_b32 s%d, s%d, 1" % (S_T2, S_T2))
        A("s_add_u32 s%d, s%d, s%d" % (S_KC2, S_T3, S_T2))
        A("s_and_b32 s%d, s%d, 7" % (S_KC2, S_KC2))
    else:
        A("s_lshr_b32 s%d, s%d, 2" % (S_RB2, S_T0))
        A("s_lshl_b32 s%d, s%d, 3" % (S_RB2, S_RB2))
        A("s_and_b32 s%d, s%d, 7" % (S_T2, S_T1))
        A("s_add_u32 s%d, s%d, s%d" % (S_RB2, S_RB2, S_T2))
        A("s_and_b32 s%d, s%d, 3" % (S_CG2, S_T0))
        A("s_lshl_b32 s%d, s%d, 2" % (S_CG2, S_CG2))
        A("s_lshr_b32 s%d, s%d, 3" % (S_T3, S_T1))
        A("s_add_u32 s%d, s%d, s%d" % (S_CG2, S_CG2, S_T3))
        A("s_lshl_b32 s%d, s%d, 1" % (S_T3, S_T3))
        A("s_add_u32 s%d, s%d, s%d" % (S_KC2, S_T2, S_T3))
        A("s_and_b32 s%d, s%d, 7" % (S_KC2, S_KC2))
    A("s_lshl_b32 s%d, s%d, 17" % (S_XB2, S_RB2))
    A("s_mul_i32 s%d, s%d, 192" % (S_WB2, S_CG2))
    A("s_lshl_b32 s%d, s%d, 12" % (S_WX2, S_WAVE))
    A("s_mul_i32 s%d, s%d, 3072" % (S_WW2, S_WAVE))
    A("s_add_u32 s%d, s%d, 16384" % (S_WW2, S_WW2))
    A("s_lshl_b32 s%d, s%d, 2" % (S_HEAD, S_T0))
    A("s_and_b32 s%d, s%d, 3" % (S_T2, S_T1))
    A("s_add_u32 s%d, s%d, s%d" % (S_HEAD, S_HEAD, S_T2))
    A("s_lshr_b32 s%d, s%d, 2" % (S_QB, S_T1))

def w_read_base(A, rowbytes, swz):
    t0, t1 = V_T, V_T + 1
    A("v_and_b32 v%d, 15, v%d" % (t0, V_LANE))
    A("v_lshrrev_b32 v%d, 2, v%d" % (t0, t0))
    A("v_lshrrev_b32 v%d, 5, v%d" % (t1, V_LANE))
    A("v_lshlrev_b32 v%d, 3, v%d" % (t1, t1))
    A("v_add_u32 v%d, v%d, v%d" % (t1, t1, t0))
    A("v_mul_u32_u24 v%d, %d, v%d" % (t1, rowbytes, t1))
    if swz:
        A("v_lshrrev_b32 v%d, 1, v%d" % (t0, t0))
        A("s_and_b32 s%d, s%d, 1" % (S_T2, S_WAVE))
        A("v_xor_b32 v%d, s%d, v%d" % (t0, S_T2, t0))
        A("v_lshlrev_b32 v%d, 6, v%d" % (t0, t0))
        A("v_add_u32 v%d, v%d, v%d" % (t1, t1, t0))
    A("v_lshrrev_b32 v%d, 4, v%d" % (t0, V_LANE))
    A("v_and_b32 v%d, 1, v%d" % (t0, t0))
    A("v_lshlrev_b32 v%d, 5, v%d" % (t0, t0))
    A("v_add_u32 v%d, v%d, v%d" % (t1, t1, t0))
    A("v_and_b32 v%d, 3, v%d" % (t0, V_LANE))
    A("v_lshlrev_b32 v%d, 3, v%d" % (t0, t0))
    A("v_add_u32 v%d, v%d, v%d" % (t1, t1, t0))
    if swz: A("v_add_u32 v%d, 8192, v%d" % (V_WA, t1))
    else: A("v_mov_b32 v%d, v%d" % (V_WA, t1))

def prologue(A):
    A("s_cmp_ge_u32 s2, 256")
    A("s_cbranch_scc1 K_END")
    if Cfg.ct0:
        A("s_getpc_b64 s[%d:%d]" % (S_T2, S_T3))
        A("CODE_REF0:")
        A("s_lshr_b32 s%d, s2, 3" % S_T0)
        A("v_lshrrev_b32 v%d, 5, v0" % V_T)
        A("s_lshl_b32 s%d, s%d, 4" % (S_T0, S_T0))
        A("s_sub_u32 s%d, s%d, CODE_REF0 - %s_kernel" % (S_T2, S_T2, NAME))
        A("v_add_u32 v%d, s%d, v%d" % (V_T, S_T0, V_T))
        A("s_subb_u32 s%d, s%d, 0" % (S_T3, S_T3))
        A("v_lshlrev_b32 v%d, 7, v%d" % (V_T, V_T))
        A("v_min_u32 v%d, CODE_BYTES - 4, v%d" % (V_T, V_T))
        A("global_load_dword v%d, v%d, s[%d:%d]" % (V_TCH, V_T, S_T2, S_T3))
    A("s_load_dwordx16 s[%d:%d], s[0:1], 0" % (S_PTR, S_PTR + 15))
    A("s_load_dwordx4 s[%d:%d], s[0:1], 64" % (S_PTR + 16, S_PTR + 19))
    A("s_load_dwordx2 s[%d:%d], s[0:1], 80" % (S_PTR + 20, S_PTR + 21))
    A("v_lshrrev_b32 v%d, 6, v0" % V_T)
    A("v_and_b32 v%d, 63, v0" % V_LANE)
    A("v_readfirstlane_b32 s%d, v%d" % (S_W8, V_T))
    A("v_lshlrev_b32 v%d, 4, v%d" % (V_L16, V_LANE))
    A("s_nop 0")
    A("s_and_b32 s%d, s%d, 3" % (S_WAVE, S_W8))
    setup_ids(A)

def publish_nonce(A):
    A("s_cmp_lg_u32 s2, 0")
    A("s_cbranch_scc1 NONCE_SKIP")
    A("s_cmp_lg_u32 s%d, 0" % S_W8)
    A("s_cbranch_scc1 NONCE_SKIP")
    A("s_memrealtime s[%d:%d]" % (S_T0, S_T1))
    A("s_waitcnt lgkmcnt(0)")
    A("s_or_b32 s%d, s%d, 1" % (S_T0, S_T0))
    A("v_mov_b32 v%d, s%d" % (V_T, S_T0))
    A("v_mov_b32 v%d, 0" % (V_T + 1))
    A("s_mov_b64 exec, 1")
    A("global_store_dword v%d, v%d, s[%d:%d] sc1" % (V_T + 1, V_T, P_DBG, P_DBG + 1))
    A("s_mov_b64 exec, -1")
    A("NONCE_SKIP:")

def get_nonce(A, tag):
    A("s_mov_b32 s%d, 0" % S_SPIN)
    A("v_mov_b32 v%d, 0" % (V_T + 1))
    A("NONCE_L%s:" % tag)
    A("global_load_dword v%d, v%d, s[%d:%d] sc1" % (V_T, V_T + 1, P_DBG, P_DBG + 1))
    A("s_waitcnt vmcnt(0)")
    A("v_readfirstlane_b32 s%d, v%d" % (S_NONCE, V_T))
    A("s_add_u32 s%d, s%d, 1" % (S_SPIN, S_SPIN))
    A("s_cmp_gt_u32 s%d, 400000" % S_SPIN)
    A("s_cbranch_scc1 NONCE_D%s" % tag)
    A("s_cmp_eq_u32 s%d, 0" % S_NONCE)
    A("s_cbranch_scc1 NONCE_L%s" % tag)
    A("NONCE_D%s:" % tag)

def store_flag(A, s_off):
    A("v_mov_b32 v%d, s%d" % (V_T, S_NONCE))
    A("v_mov_b32 v%d, 0" % (V_T + 1))
    A("s_mov_b64 exec, 1")
    A("buffer_store_dword v%d, v%d, s[%d:%d], s%d offen sc1" % (V_T, V_T + 1, S_WS, S_WS + 3, s_off))
    A("s_mov_b64 exec, -1")

def set_flag(A, tag, base, s_line, s_idx):
    A("s_cmp_lg_u32 s%d, 0" % S_W8)
    A("s_cbranch_scc1 FLAG_SKIP%s" % tag)
    A("s_lshl_b32 s%d, s%d, 7" % (S_T0, s_line))
    A("s_lshl_b32 s%d, s%d, 2" % (S_T1, s_idx))
    A("s_add_u32 s%d, s%d, s%d" % (S_T0, S_T0, S_T1))
    A("s_add_u32 s%d, s%d, 0x%x" % (S_T0, S_T0, base))
    store_flag(A, S_T0)
    A("FLAG_SKIP%s:" % tag)

def poll_flags(A, tag, base, s_line, shift=0, n=32):
    t0, t1 = V_T, V_T + 1
    A("s_lshr_b32 s%d, s%d, %d" % (S_T0, s_line, shift))
    A("s_lshl_b32 s%d, s%d, %d" % (S_T0, S_T0, 7 if n == 32 else 8))
    A("s_add_u32 s%d, s%d, 0x%x" % (S_T0, S_T0, base))
    A("v_and_b32 v%d, %d, v%d" % (t1, n - 1, V_LANE))
    A("v_lshlrev_b32 v%d, 2, v%d" % (t1, t1))
    A("s_mov_b32 s%d, 0" % S_SPIN)
    A("POLL_L%s:" % tag)
    A("buffer_load_dword v%d, v%d, s[%d:%d], s%d offen sc1" % (t0, t1, S_WS, S_WS + 3, S_T0))
    A("s_waitcnt vmcnt(0)")
    A("v_cmp_ne_u32 vcc, s%d, v%d" % (S_NONCE, t0))
    A("s_add_u32 s%d, s%d, 1" % (S_SPIN, S_SPIN))
    A("s_cmp_gt_u32 s%d, 400000" % S_SPIN)
    A("s_cbranch_scc1 POLL_D%s" % tag)
    A("s_cmp_eq_u64 vcc, 0")
    A("s_cbranch_scc1 POLL_D%s" % tag)
    A("s_sleep %d" % (Cfg.s3sleep if tag == "3" else 2))
    A("s_branch POLL_L%s" % tag)
    A("POLL_D%s:" % tag)

def touches(A):
    t0 = V_T
    A("s_getpc_b64 s[%d:%d]" % (S_T2, S_T3))
    A("CODE_REF:")
    A("s_sub_u32 s%d, s%d, CODE_REF - %s_kernel" % (S_T2, S_T2, NAME))
    A("s_subb_u32 s%d, s%d, 0" % (S_T3, S_T3))
    A("s_lshr_b32 s%d, s2, 3" % S_T0)
    A("s_lshl_b32 s%d, s%d, 2" % (S_T0, S_T0))
    A("s_add_u32 s%d, s%d, s%d" % (S_T0, S_T0, S_WAVE))
    A("s_lshl_b32 s%d, s%d, 9" % (S_T0, S_T0))
    A("v_and_b32 v%d, 3, v%d" % (t0, V_LANE))
    A("v_lshlrev_b32 v%d, 7, v%d" % (t0, t0))
    A("v_add_u32 v%d, s%d, v%d" % (t0, S_T0, t0))
    A("v_min_u32 v%d, CODE_BYTES - 4, v%d" % (t0, t0))
    A("global_load_dword v%d, v%d, s[%d:%d]" % (V_TCH, t0, S_T2, S_T3))

S_TOFF = 47
def w_touch_addr(A):
    t0, t1, t2 = V_T, V_T + 1, V_T + 2
    A("s_lshr_b32 s%d, s2, 3" % S_T0)
    A("s_lshl_b32 s%d, s%d, 2" % (S_T0, S_T0))
    A("s_add_u32 s%d, s%d, s%d" % (S_T0, S_T0, S_WAVE))
    A("s_lshl_b32 s%d, s%d, 6" % (S_T0, S_T0))
    A("v_add_u32 v%d, s%d, v%d" % (t0, S_T0, V_LANE))
    A("v_mul_u32_u24 v%d, 20165, v%d" % (t1, t0))
    A("v_lshrrev_b32 v%d, 18, v%d" % (t1, t1))
    A("v_mul_u32_u24 v%d, 13, v%d" % (t2, t1))
    A("v_sub_u32 v%d, v%d, v%d" % (t2, t0, t2))
    A("v_mul_u32_u24 v%d, 2752, v%d" % (t1, t1))
    A("v_lshlrev_b32 v%d, 7, v%d" % (t2, t2))
    A("v_add_u32 v%d, v%d, v%d" % (31, t1, t2))
    A("s_and_b32 s%d, s2, 1" % S_T0)
    A("s_mul_i32 s%d, s%d, 1536" % (S_TOFF, S_T0))

def w_touch(A, which, tag):
    A("s_cmp_lg_u32 s%d, %d" % (S_I, Cfg.ptouch[which]))
    A("s_cbranch_scc1 PT_%s" % tag)
    srdn = S_B2 if which == 0 else S_B3
    A("buffer_load_dword v29, v31, s[%d:%d], s%d offen" % (srdn, srdn + 3, S_TOFF))
    A("PT_%s:" % tag)

def w_touches(A):
    pass

def p2_dma_setup(A):
    t0, t1, t2 = V_T, V_T + 1, V_T + 2
    x_dma_offsets(A, V_XO2, 4, 32)
    for e in range(3):
        A("v_add_u32 v%d, %d, v%d" % (t0, 64 * e, V_LANE))
        A("v_mul_u32_u24 v%d, 171, v%d" % (t1, t0))
        A("v_lshrrev_b32 v%d, 11, v%d" % (t1, t1))
        A("v_mul_u32_u24 v%d, 12, v%d" % (t2, t1))
        A("v_sub_u32 v%d, v%d, v%d" % (t2, t0, t2))
        A("s_lshl_b32 s%d, s%d, 4" % (S_T0, S_WAVE))
        A("v_add_u32 v%d, s%d, v%d" % (t1, S_T0, t1))
        A("v_mul_u32_u24 v%d, 2752, v%d" % (t1, t1))
        A("v_lshlrev_b32 v%d, 4, v%d" % (t2, t2))
        A("v_add_u32 v%d, v%d, v%d" % (V_WO2 + e, t1, t2))

def coop_touches(A):
    t0, t1, t2 = V_T, V_T + 1, V_T + 2
    G = S_T3
    A("s_lshr_b32 s%d, s2, 3" % G)
    A("s_lshl_b32 s%d, s%d, 3" % (G, G))
    A("s_add_u32 s%d, s%d, s%d" % (G, G, S_W8))
    if Cfg.coop in (1, 2):
        A("s_lshl_b32 s%d, s%d, 11" % (S_T0, G))
        A("s_and_b32 s%d, s2, 7" % S_T1)
        A("s_lshr_b32 s%d, s%d, 1" % (S_T1, S_T1))
        A("s_lshl_b32 s%d, s%d, 19" % (S_T1, S_T1))
        A("s_add_u32 s%d, s%d, s%d" % (S_T0, S_T0, S_T1))
        A("v_min_u32 v%d, 15, v%d" % (t0, V_LANE))
        A("v_lshlrev_b32 v%d, 7, v%d" % (t0, t0))
        A("buffer_load_dword v30, v%d, s[%d:%d], s%d offen" % (t0, S_AX, S_AX + 3, S_T0))
        A("s_mul_i32 s%d, s%d, 24" % (S_T0, G))
        A("v_min_u32 v%d, 23, v%d" % (t0, V_LANE))
        A("v_add_u32 v%d, s%d, v%d" % (t0, S_T0, t0))
        A("v_mul_u32_u24 v%d, 5462, v%d" % (t1, t0))
        A("v_lshrrev_b32 v%d, 16, v%d" % (t1, t1))
        A("v_mul_u32_u24 v%d, 12, v%d" % (t2, t1))
        A("v_sub_u32 v%d, v%d, v%d" % (t2, t0, t2))
        A("v_mul_u32_u24 v%d, 3072, v%d" % (t1, t1))
        A("v_lshrrev_b32 v%d, 2, v%d" % (t0, t2))
        A("v_lshlrev_b32 v%d, 10, v%d" % (t0, t0))
        A("v_add_u32 v%d, v%d, v%d" % (t1, t1, t0))
        A("v_and_b32 v%d, 3, v%d" % (t2, t2))
        A("v_lshlrev_b32 v%d, 7, v%d" % (t2, t2))
        A("v_add_u32 v%d, v%d, v%d" % (t1, t1, t2))
        A("s_and_b32 s%d, s2, 1" % S_T0)
        A("s_lshl_b32 s%d, s%d, 9" % (S_T0, S_T0))
        A("buffer_load_dword v30, v%d, s[%d:%d], s%d offen" % (t1, S_B1, S_B1 + 3, S_T0))
    if Cfg.coop in (1, 3):
        A("s_mul_i32 s%d, s%d, 26" % (S_T0, G))
        A("v_min_u32 v%d, 25, v%d" % (t0, V_LANE))
        A("v_add_u32 v%d, s%d, v%d" % (t0, S_T0, t0))
        A("v_mul_u32_u24 v%d, 20165, v%d" % (t1, t0))
        A("v_lshrrev_b32 v%d, 18, v%d" % (t1, t1))
        A("v_mul_u32_u24 v%d, 13, v%d" % (t2, t1))
        A("v_sub_u32 v%d, v%d, v%d" % (t2, t0, t2))
        A("v_mul_u32_u24 v%d, 2752, v%d" % (t1, t1))
        A("v_lshlrev_b32 v%d, 7, v%d" % (t2, t2))
        A("v_add_u32 v%d, v%d, v%d" % (t1, t1, t2))
        A("s_and_b32 s%d, s2, 1" % S_T0)
        A("s_mul_i32 s%d, s%d, 1536" % (S_T0, S_T0))
        A("buffer_load_dword v30, v%d, s[%d:%d], s%d offen" % (t1, S_B2, S_B2 + 3, S_T0))
        A("buffer_load_dword v30, v%d, s[%d:%d], s%d offen" % (t1, S_B3, S_B3 + 3, S_T0))

def all_srds(A):
    A("s_waitcnt lgkmcnt(0)")
    srd(A, S_AX, P_AX, 2048 * 1024)
    srd(A, S_B1, P_WQKV, 512 * 3072)
    srd(A, S_B2, P_WG, 512 * 2752)
    srd(A, S_B3, P_WU, 512 * 2752)
    srd(A, S_WS, P_WS, WS_SIZE)
    if Cfg.coop: coop_touches(A)

def role_b(A):
    A.comment("==== B waves: P1 loader ====")
    t0, t1, t2 = V_T, V_T + 1, V_T + 2
    x_dma_offsets(A, V_XO1, 2, 16)
    A("v_lshrrev_b32 v%d, 3, v%d" % (t0, V_LANE))
    A("s_lshl_b32 s%d, s%d, 4" % (S_T0, S_WAVE))
    A("v_add_u32 v%d, s%d, v%d" % (t0, S_T0, t0))
    A("v_mul_u32_u24 v%d, 3072, v%d" % (t0, t0))
    A("v_lshrrev_b32 v%d, 4, v%d" % (t1, V_LANE))
    A("v_and_b32 v%d, 1, v%d" % (t1, t1))
    A("v_lshlrev_b32 v%d, 2, v%d" % (t1, t1))
    A("v_and_b32 v%d, 7, v%d" % (t2, V_LANE))
    A("v_xor_b32 v%d, v%d, v%d" % (t1, t1, t2))
    A("v_lshlrev_b32 v%d, 4, v%d" % (t1, t1))
    A("v_add_u32 v%d, v%d, v%d" % (V_WO1, t0, t1))
    all_srds(A)
    A("s_mov_b32 s%d, 0" % S_SLI)
    loop(A, "LD_PRO", 2, lambda: issue_group(A, 1))
    nt = 0
    if Cfg.btouch:
        w_touch_addr(A)
        A("buffer_load_dword v30, v31, s[%d:%d], s%d offen" % (S_B2, S_B2 + 3, S_TOFF))
        A("buffer_load_dword v30, v31, s[%d:%d], s%d offen" % (S_B3, S_B3 + 3, S_TOFF))
        nt = 2
    p2_dma_setup(A)
    x_read_addrs(A, S_WAVE)
    w_read_base(A, 192, False)
    tail_setup(A)
    stamp(A, 1)
    A("s_waitcnt vmcnt(%d)" % (8 + nt)); A("s_barrier")
    stamp(A, 2)
    issue_group(A, 1)
    if not Cfg.ct0: touches(A)
    A("s_waitcnt vmcnt(%d)" % ((8 if Cfg.ct0 else 9) + nt)); A("s_barrier")
    issue_group(A, 1)
    def la():
        A("s_waitcnt vmcnt(8)"); A("s_barrier"); issue_group(A, 1)
    loop(A, "LD_A", 4, la)
    A("v_mov_b32 v%d, 0" % (V_T + 2))
    A("global_load_dword v%d, v%d, s[%d:%d] sc1" % (V_NONCE, V_T + 2, P_DBG, P_DBG + 1))
    A("s_cmp_eq_u32 s%d, 15" % S_CG2)
    A("s_cbranch_scc1 B_GATE")
    def bt():
        A("buffer_load_dword v30, v31, s[%d:%d], s%d offen" % (S_B2, S_B2 + 3, S_TOFF))
        A("buffer_load_dword v30, v31, s[%d:%d], s%d offen" % (S_B3, S_B3 + 3, S_TOFF))
    if Cfg.bt5 == 5:
        w_touch_addr(A)
        A("s_waitcnt vmcnt(9)"); A("s_barrier"); issue_group(A, 2); bt()
        A("s_waitcnt vmcnt(12)"); A("s_barrier"); issue_group(A, 2)
        A("s_waitcnt vmcnt(12)"); A("s_barrier")
    elif Cfg.bt5 == 4:
        w_touch_addr(A)
        bt()
        A("s_waitcnt vmcnt(11)"); A("s_barrier"); issue_group(A, 2)
        A("s_waitcnt vmcnt(13)"); A("s_barrier"); issue_group(A, 2)
        A("s_waitcnt vmcnt(10)"); A("s_barrier")
    else:
        A("s_waitcnt vmcnt(9)"); A("s_barrier"); issue_group(A, 2)
        A("s_waitcnt vmcnt(10)"); A("s_barrier"); issue_group(A, 2)
        A("s_waitcnt vmcnt(10)"); A("s_barrier")
    stamp(A, 3)
    nonce_check(A, "b1")
    p2(A)
    tail_srds(A)
    if Cfg.bz: A("s_barrier")
    A("s_branch B_C1")
    A("B_GATE:")
    A("s_waitcnt vmcnt(9)"); A("s_barrier")
    A("s_waitcnt vmcnt(0)"); A("s_barrier")
    A("s_barrier")
    nonce_check(A, "b2")
    tail_srds(A)
    if Cfg.bz: A("s_barrier")
    gate(A)
    A("B_C1:")
    A("s_setprio 3")
    stamp(A, 5)
    if Cfg.gfirst:
        p2_epilogue(A, [], [])
        A("s_mov_b32 s%d, 0" % S_SPIN)
        s1_flag_load(A)
        attn_pre_valu(A)
        A("s_waitcnt vmcnt(0)")
    else:
        A("s_mov_b32 s%d, 0" % S_SPIN)
        s1_flag_load(A)
        attn_pre_valu(A)
        A("s_waitcnt vmcnt(0)")
        s1_check(A, "c")
        stamp(A, 6)
        attn_pre_loads(A)
        p2_epilogue(A, [k_item(i) for i in range(4)] + [v_item(i) for i in range(4)], [v_item(i) for i in range(4, 8)] + [k_item(i) for i in range(4, 8)])
        A("s_waitcnt vmcnt(0)")
    A("s_lshl_b32 s%d, s%d, 1" % (S_T0, S_RB2))
    A("s_lshr_b32 s%d, s%d, 1" % (S_T1, S_WAVE))
    A("s_add_u32 s%d, s%d, s%d" % (S_T0, S_T0, S_T1))
    A("s_lshl_b32 s%d, s%d, 7" % (S_T0, S_T0))
    A("s_lshl_b32 s%d, s%d, 1" % (S_T1, S_CG2))
    A("s_and_b32 s%d, s%d, 1" % (S_T2, S_WAVE))
    A("s_add_u32 s%d, s%d, s%d" % (S_T1, S_T1, S_T2))
    A("s_lshl_b32 s%d, s%d, 2" % (S_T1, S_T1))
    A("s_add_u32 s%d, s%d, s%d" % (S_T0, S_T0, S_T1))
    A("s_add_u32 s%d, s%d, 0x%x" % (S_T0, S_T0, WS_F2))
    store_flag(A, S_T0)
    if Cfg.gfirst:
        s1_check(A, "c")
        stamp(A, 6)
        attn_pre_loads(A)
        for i in range(8):
            emit(A, k_item(i)); emit(A, v_item(i))
        A("s_waitcnt vmcnt(0)")
    if Cfg.bdown:
        A("s_setprio %d" % Cfg.bd_prio)
        b_ffn_down(A)
    bound(A)
    A("s_setprio %d" % Cfg.prio_b)
    if "sv" in Cfg.exp: A("v_mov_b32 v40, v%d" % SV.reg)

V_F1 = 14
def s1_addr(A):
    A("s_lshr_b32 s%d, s%d, 2" % (S_T0, S_HEAD))
    A("s_lshl_b32 s%d, s%d, 9" % (S_T0, S_T0))
    A("s_add_u32 s%d, s%d, 0x%x" % (S_T0, S_T0, WS_F1))
    A("v_lshlrev_b32 v%d, 3, v%d" % (V_T + 2, V_LANE))

def s1_flag_load(A):
    s1_addr(A)
    A("buffer_load_dwordx2 %s, v%d, s[%d:%d], s%d offen sc1" % (vr(V_F1, 2), V_T + 2, S_WS, S_WS + 3, S_T0))

def s1_check(A, tag):
    A("S1_CK%s:" % tag)
    A("v_cmp_ne_u32 vcc, s%d, v%d" % (S_NONCE, V_F1))
    A("v_cmp_ne_u32 s[%d:%d], s%d, v%d" % (S_T2, S_T3, S_NONCE, V_F1 + 1))
    A("s_nop 3")
    A("s_or_b64 vcc, vcc, s[%d:%d]" % (S_T2, S_T3))
    if "miss" in Cfg.exp and tag == "l":
        A("s_cmp_eq_u64 vcc, 0")
        A("s_cbranch_scc1 MISS_SKIP")
        A("s_mov_b32 s%d, vcc_lo" % (S_ST + 2 + 11))
        A("s_mov_b32 s%d, vcc_hi" % (S_ST + 2 + 12))
        A("MISS_SKIP:")
    A("s_cmp_eq_u64 vcc, 0")
    A("s_cbranch_scc1 S1_OK%s" % tag)
    A("s_add_u32 s%d, s%d, 1" % (S_SPIN, S_SPIN))
    A("s_cmp_gt_u32 s%d, 400000" % S_SPIN)
    A("s_cbranch_scc1 S1_OK%s" % tag)
    A("s_sleep %d" % (Cfg.slg if tag == "lg" else Cfg.sother))
    s1_flag_load(A)
    A("s_waitcnt vmcnt(0)")
    A("s_branch S1_CK%s" % tag)
    A("S1_OK%s:" % tag)

def s1_poll(A, tag):
    A("s_mov_b32 s%d, 0" % S_SPIN)
    s1_flag_load(A)
    A("s_waitcnt vmcnt(0)")
    s1_check(A, tag)

def s1_set(A):
    A("s_lshl_b32 s%d, s%d, 5" % (S_T0, S_CG1))
    A("s_add_u32 s%d, s%d, s%d" % (S_T0, S_T0, S_RB1))
    A("s_lshl_b32 s%d, s%d, 2" % (S_T0, S_T0))
    A("s_add_u32 s%d, s%d, s%d" % (S_T0, S_T0, S_WAVE))
    A("s_lshl_b32 s%d, s%d, 2" % (S_T0, S_T0))
    A("s_add_u32 s%d, s%d, 0x%x" % (S_T0, S_T0, WS_F1))
    store_flag(A, S_T0)

def o_sentinels(A):
    for r in range(4): A("v_mov_b32 v%d, -1" % (32 + r))
    A("s_lshl_b32 s%d, s%d, 3" % (S_T0, S_QB))
    A("s_lshl_b32 s%d, s%d, 1" % (S_T1, S_WAVE))
    A("s_add_u32 s%d, s%d, s%d" % (S_T0, S_T0, S_T1))
    A("s_lshl_b32 s%d, s%d, 5" % (S_T0, S_T0))
    A("s_add_u32 s%d, s%d, s%d" % (S_T0, S_T0, S_HEAD))
    A("s_lshl_b32 s%d, s%d, 10" % (S_T0, S_T0))
    A("s_add_u32 s%d, s%d, 0x%x" % (S_T0, S_T0, WS_OF))
    A("s_add_u32 s%d, s%d, 32768" % (S_T1, S_T0))
    A("buffer_store_dwordx4 %s, v%d, s[%d:%d], s%d offen%s" % (vr(32, 4), V_L16, S_WS, S_WS + 3, S_T0, SC))
    A("buffer_store_dwordx4 %s, v%d, s[%d:%d], s%d offen%s" % (vr(32, 4), V_L16, S_WS, S_WS + 3, S_T1, SC))
    A("s_nop 1")

def tlb_warm(A):
    sh = Cfg.tlb
    t0 = V_T
    n_ws = (0x1000000 >> sh)
    A("s_lshl_b32 s%d, s%d, 6" % (S_T0, S_WAVE))
    A("v_add_u32 v%d, s%d, v%d" % (t0, S_T0, V_LANE))
    A("v_lshlrev_b32 v%d, %d, v%d" % (t0, sh, t0))
    A("s_cmp_ge_u32 s%d, 2" % S_WAVE)
    A("s_cbranch_scc1 TLB_B")
    A("v_min_u32 v%d, 0xfffffc, v%d" % (t0, t0))
    A("buffer_load_dword v30, v%d, s[%d:%d], 0 offen" % (t0, S_WS, S_WS + 3))
    A("s_branch TLB_D")
    A("TLB_B:")
    A("v_lshlrev_b32 v%d, %d, v%d" % (t0, sh, V_LANE))
    A("s_cmp_eq_u32 s%d, 3" % S_WAVE)
    A("s_cbranch_scc1 TLB_C")
    A("v_min_u32 v%d, %d, v%d" % (t0 + 1, 1376 * 1024 - 4, t0))
    A("global_load_dword v30, v%d, s[%d:%d]" % (t0 + 1, P_WD, P_WD + 1))
    A("v_min_u32 v%d, %d, v%d" % (t0 + 1, 512 * 1024 - 4, t0))
    A("global_load_dword v30, v%d, s[%d:%d]" % (t0 + 1, P_WO, P_WO + 1))
    A("s_branch TLB_D")
    A("TLB_C:")
    A("v_min_u32 v%d, %d, v%d" % (t0 + 1, 2048 * 1024 - 4, t0))
    A("global_load_dword v30, v%d, s[%d:%d]" % (t0 + 1, P_OUT, P_OUT + 1))
    if Cfg.tlbw:
        A("v_min_u32 v%d, %d, v%d" % (t0 + 1, 512 * 2752 - 4, t0))
        A("buffer_load_dword v30, v%d, s[%d:%d], 0 offen" % (t0 + 1, S_B2, S_B2 + 3))
        A("buffer_load_dword v30, v%d, s[%d:%d], 0 offen" % (t0 + 1, S_B3, S_B3 + 3))
    A("TLB_D:")

def role_a(A):
    A.comment("==== A waves: P1 compute ====")
    if Cfg.coop: all_srds(A)
    RA.XR, RA.WR = 144, 148
    A("s_lshr_b32 s%d, s%d, 1" % (S_T1, S_WAVE))
    x_read_addrs(A, S_T1)
    w_read_base(A, 128, True)
    for r in range(48):
        A("v_accvgpr_write_b32 a%d, 0" % (A_ACC1 + r))
    A("s_mov_b32 s%d, 0" % S_SLR)
    set_read_addrs(A)
    p2_dma_setup(A)
    if not Cfg.coop: all_srds(A)
    publish_nonce(A)
    tail_setup(A)
    g0 = 13 if Cfg.trans == 'v3' else 10
    A("s_add_u32 s%d, s%d, %d" % (S_KC2, S_KC2, g0 - 8))
    A("s_and_b32 s%d, s%d, 7" % (S_KC2, S_KC2))
    A("s_mov_b32 s%d, %d" % (S_SLI, (g0 % 4) * SLOT))
    if Cfg.tlb: tlb_warm(A)
    if Cfg.ptouch: w_touch_addr(A)
    if Cfg.dp: o_sentinels(A)
    if "touch" in Cfg.exp: w_touches(A)
    stamp(A, 1)
    A("s_barrier")
    stamp(A, 2)
    emit(A, p1_read_list(0, V_F)); emit(A, p1_read_list(1, V_F + 16))
    loop(A, "P1_L", 8, lambda: p1_chunk(A))
    A("s_waitcnt lgkmcnt(0)")
    stamp(A, 3)
    A("v_mov_b32 v%d, 0" % (V_T + 2))
    A("global_load_dword v%d, v%d, s[%d:%d] sc1" % (V_NONCE, V_T + 2, P_DBG, P_DBG + 1))
    E = Buf(); p1_epilogue(E)
    L = E.lines
    A("s_cmp_eq_u32 s%d, 15" % S_CG2)
    A("s_cbranch_scc1 A_GATE")
    n1 = 40; n2 = [k_ for k_, l_ in enumerate(L) if "MARK" in l_][0]
    nm = [k_ for k_, l_ in enumerate(L) if "MARK" in l_][0]
    body, tail = L[:nm], L[nm:]
    if Cfg.trans == 'v3':
        n1 = len(body) * 1 // 2
        A("s_nop 7")
        emit(A, body[:n1])
        A("s_barrier")
        emit(A, body[n1:])
        emit(A, tail)
        A("s_barrier")
        A("s_waitcnt vmcnt(0)")
        stamp(A, 4)
        nonce_check(A, "a1")
        s1_set(A)
        A("s_barrier")
        issue_group(A, 2)
        A("s_barrier")
        issue_group(A, 2)
        A("s_waitcnt vmcnt(10)"); A("s_barrier")
    else:
        if Cfg.m1b is None:
            n1, n2 = len(body) * 2 // 7, len(body) * 5 // 7
        else:
            n1, n2 = int(len(body) * Cfg.m1b), len(body)
        B1 = Buf(); issue_group_merged(B1, 2, body[:n1])
        B2 = Buf(); issue_group_merged(B2, 2, body[n1:n2])
        if Cfg.m1b is not None: B2.lines += tail
        last = max(k_ for k_, l_ in enumerate(B1.lines) if l_.endswith(" lds"))
        newer = sum(1 for l_ in B1.lines[last + 1:] + B2.lines if l_.startswith("buffer_"))
        emit(A, B1.lines)
        A("s_barrier")
        emit(A, B2.lines)
        A("s_waitcnt vmcnt(%d)" % newer)
        A("s_barrier")
        if Cfg.m1b is None:
            emit(A, body[n2:])
            emit(A, tail)
        if Cfg.flagfirst:
            A("s_waitcnt vmcnt(0)")
            stamp(A, 4)
            nonce_check(A, "a1")
            s1_set(A)
            issue_group(A, 2)
        else:
            issue_group(A, 2)
            A("s_waitcnt vmcnt(10)")
            stamp(A, 4)
            nonce_check(A, "a1")
            s1_set(A)
        A("s_barrier")
        issue_group(A, 2)
        A("s_waitcnt vmcnt(10)"); A("s_barrier"); issue_group(A, 2)
        A("s_waitcnt vmcnt(10)"); A("s_barrier")
    A("s_mov_b32 s%d, 0" % S_SPIN)
    if Cfg.early == 13:
        s1_flag_load(A)
        issue_group(A, 2)
        A("s_waitcnt vmcnt(10)"); A("s_barrier")
        stamp(A, 5)
        s1_check(A, "l")
        stamp(A, 6)
        attn_loads_pre(A)
        for i in range(3):
            emit(A, k_item(i)); emit(A, v_item(i))
        A("s_waitcnt vmcnt(12)"); A("s_barrier")
        for i in range(3, 8):
            emit(A, k_item(i)); emit(A, v_item(i))
    else:
        issue_group(A, 2)
        A("s_waitcnt vmcnt(10)"); A("s_barrier")
        s1_flag_load(A)
        attn_pre_valu(A)
        A("s_waitcnt vmcnt(0)"); A("s_barrier")
        s1_check(A, "l")
        attn_pre_loads(A)
        for i in range(8):
            emit(A, k_item(i)); emit(A, v_item(i))
    tail_srds(A)
    if Cfg.bz: A("s_barrier")
    A("s_waitcnt vmcnt(0)")
    bound(A)
    if Cfg.bz: A("s_barrier")
    A("s_branch A_DONE")
    A("A_GATE:")
    A("s_nop 7")
    emit(A, [l.replace("LRX", "LRX") for l in L])
    A("s_waitcnt vmcnt(0)")
    nonce_check(A, "a2")
    s1_set(A)
    if Cfg.bz: A("s_barrier")
    s1_poll(A, "lg")
    attn_loads_pre(A)
    for i in range(8):
        emit(A, k_item(i)); emit(A, v_item(i))
    tail_srds(A)
    A("s_waitcnt vmcnt(0)")
    bound(A)
    A("A_DONE:")
    if "sv" in Cfg.exp: A("v_mov_b32 v40, v%d" % SV.reg)

def lane_reduce(A, rs, ts, op32, op):
    n = len(rs)
    def pad(k):
        if k > 0: A("s_nop %d" % (k - 1))
    for r, t in zip(rs, ts): A("v_mov_b32 v%d, v%d" % (t, r))
    pad(max(0, 2 - (n - 1)))
    for r, t in zip(rs, ts): A("v_permlane32_swap_b32 v%d, v%d" % (r, t))
    pad(1)
    for r, t in zip(rs, ts): A("%s v%d, v%d, v%d" % (op32, r, r, t))
    for r, t in zip(rs, ts): A("v_mov_b32 v%d, v%d" % (t, r))
    pad(max(0, 2 - (n - 1)))
    for r, t in zip(rs, ts): A("v_permlane16_swap_b32 v%d, v%d" % (r, t))
    pad(1)
    for r, t in zip(rs, ts): A("%s v%d, v%d, v%d" % (op, r, r, t))
    for sh in (8, 4, 2, 1):
        pad(max(0, 2 - (n - 1)))
        for r in rs: A("%s_dpp v%d, v%d, v%d row_ror:%d row_mask:0xf bank_mask:0xf" % (op, r, r, r, sh))

S_E0, S_E1, S_E2, S_E3 = 28, 29, 30, 31
def p1_epilogue(A):
    TA, TB, TC, TD = 32, 33, 34, 35
    PA, PB = 36, 40
    VADDR = 48
    N = [44, 45, 46, 47]
    A("s_and_b32 s%d, s%d, 1" % (S_E0, S_WAVE))
    A("s_lshl_b32 s%d, s%d, 1" % (S_E0, S_E0))
    A("s_lshl_b32 s%d, s%d, 2" % (S_E1, S_CG1))
    A("s_add_u32 s%d, s%d, s%d" % (S_E0, S_E0, S_E1))
    A("s_lshr_b32 s%d, s%d, 1" % (S_E1, S_WAVE))
    A("s_lshl_b32 s%d, s%d, 1" % (S_E2, S_RB1))
    A("s_add_u32 s%d, s%d, s%d" % (S_E1, S_E1, S_E2))
    A("s_lshl_b32 s%d, s%d, 16" % (S_E2, S_E0))
    A("s_lshl_b32 s%d, s%d, 10" % (S_E3, S_E1))
    A("s_add_u32 s%d, s%d, s%d" % (S_E2, S_E2, S_E3))
    A("v_lshrrev_b32 v%d, 4, v%d" % (TA, V_LANE))
    A("v_and_b32 v%d, 1, v%d" % (TA, TA))
    A("v_lshlrev_b32 v%d, 16, v%d" % (TA, TA))
    A("v_lshrrev_b32 v%d, 5, v%d" % (TB, V_LANE))
    A("v_lshlrev_b32 v%d, 8, v%d" % (TB, TB))
    A("v_add_u32 v%d, v%d, v%d" % (TA, TA, TB))
    A("v_and_b32 v%d, 15, v%d" % (TB, V_LANE))
    A("v_lshlrev_b32 v%d, 4, v%d" % (TB, TB))
    A("v_add_u32 v%d, v%d, v%d" % (VADDR, TA, TB))
    A("s_mov_b32 s%d, 0x%x" % (S_C, f32bits(QSCALE)))
    k = [0]
    def head_part(acc, scale, nrm, addr, soff_base, imm):
        P = PA if k[0] % 2 == 0 else PB; k[0] += 1
        for p in range(4):
            a_, b_ = (TA, TB) if p % 2 == 0 else (TC, TD)
            A("v_accvgpr_read_b32 v%d, a%d" % (a_, acc + 2 * p))
            A("v_accvgpr_read_b32 v%d, a%d" % (b_, acc + 2 * p + 1))
            if scale:
                A("v_mul_f32 v%d, s%d, v%d" % (a_, S_C, a_))
                A("v_mul_f32 v%d, s%d, v%d" % (b_, S_C, b_))
            A("v_cvt_pk_bf16_f32 v%d, v%d, v%d" % (P + p, a_, b_))
        A("s_add_u32 s%d, s%d, 0x%x" % (S_E3, S_E2, soff_base))
        A("buffer_store_dwordx4 %s, v%d, s[%d:%d], s%d offen%s%s" % (vr(P, 4), addr, S_WS, S_WS + 3, S_E3, (" offset:%d" % imm) if imm else "", SC))
        if nrm is not None:
            for p in range(4):
                A("v_dot2_f32_bf16 v%d, v%d, v%d, %s" % (nrm, P + p, P + p, "0" if p == 0 else "v%d" % nrm))
    head_part(A_ACC1 + 16, False, N[2], V_L16, WS_KF, 0)
    head_part(A_ACC1 + 24, False, N[3], V_L16, WS_KF + 65536, 0)
    head_part(A_ACC1 + 32, False, None, VADDR, WS_VF, 0)
    head_part(A_ACC1 + 40, False, None, VADDR, WS_VF, 512)
    head_part(A_ACC1 + 0, True, N[0], V_L16, WS_QF, 0)
    head_part(A_ACC1 + 8, True, N[1], V_L16, WS_QF + 65536, 0)
    A("s_nop 2")
    A("s_nop 0 ; MARK")
    lane_reduce(A, N, [TA, TB, TC, TD], "v_add_f32", "v_max_f32")
    A("s_lshl_b32 s%d, s%d, 8" % (S_E2, S_E0))
    A("s_lshl_b32 s%d, s%d, 2" % (S_E3, S_E1))
    A("s_add_u32 s%d, s%d, s%d" % (S_E2, S_E2, S_E3))
    A("s_add_u32 s%d, s%d, 0x%x" % (S_E2, S_E2, WS_NQ))
    A("v_mov_b32 v%d, 0" % TA)
    A("s_add_u32 s%d, s%d, 0x%x" % (S_E3, S_E2, WS_NK - WS_NQ))
    A("s_mov_b64 exec, 1")
    A("buffer_store_dword v%d, v%d, s[%d:%d], s%d offen%s" % (N[0], TA, S_WS, S_WS + 3, S_E2, SC))
    A("buffer_store_dword v%d, v%d, s[%d:%d], s%d offen offset:256%s" % (N[1], TA, S_WS, S_WS + 3, S_E2, SC))
    A("buffer_store_dword v%d, v%d, s[%d:%d], s%d offen%s" % (N[2], TA, S_WS, S_WS + 3, S_E3, SC))
    A("buffer_store_dword v%d, v%d, s[%d:%d], s%d offen offset:256%s" % (N[3], TA, S_WS, S_WS + 3, S_E3, SC))
    A("s_mov_b64 exec, -1")

def gate(A):
    A.comment("gate: 32 rows per wave")
    S_GS = 44
    srd(A, S_GS, P_GW, 1024)
    GW = 160; G = 32
    N = list(range(164, 172)); T = list(range(172, 180))
    A("buffer_load_dwordx4 %s, v%d, s[%d:%d], 0 offen" % (vr(GW, 4), V_L16, S_GS, S_GS + 3))
    A("s_lshl_b32 s%d, s%d, 7" % (S_T0, S_RB2))
    A("s_lshl_b32 s%d, s%d, 5" % (S_T1, S_WAVE))
    A("s_add_u32 s%d, s%d, s%d" % (S_T0, S_T0, S_T1))
    A("s_lshl_b32 s%d, s%d, 10" % (S_T1, S_T0))
    for r in range(32):
        A("buffer_load_dwordx4 %s, v%d, s[%d:%d], s%d offen offset:%d" % (vr(G + 4 * r, 4), V_L16, S_AX, S_AX + 3, S_T1, (r & 3) * 1024))
        if (r & 3) == 3: A("s_add_u32 s%d, s%d, 4096" % (S_T1, S_T1))
    A("s_mov_b32 s%d, 0x%x" % (S_C, f32bits(-1.4426950408889634)))
    A("s_lshl_b32 s%d, s%d, 2" % (S_T1, S_T0))
    A("s_add_u32 s%d, s%d, 0x%x" % (S_T1, S_T1, WS_G))
    A("v_mov_b32 v%d, 0" % V_T)
    for b in range(4):
        A("s_waitcnt vmcnt(%d)" % (24 - 8 * b + 8 * b))
        for p in range(4):
            for x in range(8):
                A("v_dot2_f32_bf16 v%d, v%d, v%d, %s" % (N[x], G + 32 * b + 4 * x + p, GW + p, "0" if p == 0 else "v%d" % N[x]))
        A("s_nop 2")
        lane_reduce(A, N, T, "v_add_f32", "v_add_f32")
        for x in range(8): A("v_mul_f32 v%d, s%d, v%d" % (N[x], S_C, N[x]))
        for x in range(8): A("v_exp_f32 v%d, v%d" % (N[x], N[x]))
        for x in range(8): A("v_add_f32 v%d, 1.0, v%d" % (N[x], N[x]))
        for x in range(8): A("v_rcp_f32 v%d, v%d" % (N[x], N[x]))
        A("s_mov_b64 exec, 1")
        for x in range(8):
            A("buffer_store_dword v%d, v%d, s[%d:%d], s%d offen offset:%d%s" % (N[x], V_T, S_WS, S_WS + 3, S_T1, 32 * b + 4 * x, SC))
        A("s_mov_b64 exec, -1")
        A("s_nop 1")

P2_X0, P2_X1, P2_W = 32, 36, 40
def p2_read_list(hs):
    s_, mat = hs >> 1, hs & 1
    L = []
    if mat == 0:
        L.append("ds_read_b128 %s, v%d" % (vr(P2_X0 if (s_ & 1) == 0 else P2_X1, 4), RA.XR + s_))
    F = P2_W + 12 * (hs & 3)
    for u in range(3):
        for q in range(2):
            L.append("ds_read_b64_tr_b16 %s, v%d offset:%d" % (vr(F + 4 * u + 2 * q, 2), RA.WR, 16384 + mat * 12288 + s_ * 3072 + q * 768 + u * 64))
    return L
def p2_mfma_list(hs, zero=False):
    s_, mat = hs >> 1, hs & 1
    X = P2_X0 if (s_ & 1) == 0 else P2_X1
    F = P2_W + 12 * (hs & 3)
    return [mfma(vr(V_ACC2 + 48 * mat + 16 * u, 16), vr(F + 4 * u, 4), vr(X, 4), "0" if zero else vr(V_ACC2 + 48 * mat + 16 * u, 16)) for u in range(3)]
def group_blocks(typ):
    B = Buf(); issue_group(B, typ)
    blocks, cur = [], []
    for l in B.lines:
        cur.append(l)
        if l.startswith("buffer_load"): blocks.append(cur); cur = []
    blocks[-1] = blocks[-1] + cur
    return blocks

def p2_chunk(A, vm=None, zero=False, nobar=False, dma0=False, dma1=False):
    gaps = [[] for _ in range(24)]
    for half_, on in ((0, dma0), (1, dma1)):
        if on:
            for k, b in enumerate(group_blocks(2)): gaps[12 * half_ + k] = b
    for hs in range(8):
        if hs == 4 and not nobar:
            if vm is not None: A("s_waitcnt vmcnt(%d)" % vm)
            A("s_barrier")
        if hs == 6:
            adv_slot(A, S_SLR)
            set_read_addrs(A)
        A("s_waitcnt lgkmcnt(%d)" % (7 if ((hs + 1) & 1) == 0 else 6))
        ms = p2_mfma_list(hs, zero and hs < 2); rs = p2_read_list((hs + 2) & 7)
        k = 0
        for i, m in enumerate(ms):
            A(m)
            emit(A, gaps[3 * hs + i])
            cnt = (len(rs) * (i + 1)) // 3 - (len(rs) * i) // 3
            for _ in range(cnt):
                A(rs[k]); k += 1

def p2(A):
    A.comment("==== P2: FFN up (B waves) ====")
    RA.XR, RA.WR = 88, 92
    A("s_mov_b32 s%d, 0" % S_SLR)
    set_read_addrs(A)
    emit(A, p2_read_list(0)); emit(A, p2_read_list(1))
    if Cfg.trans == 'v3':
        p2_chunk(A, vm=10, zero=True, dma0=True, dma1=True)
        p2_chunk(A, vm=10, dma1=True)
        p2_chunk(A, vm=10)
        p2_chunk(A, vm=0)
        n = 3
    else:
        p2_chunk(A, vm=0, zero=True)
        n = 6
    if Cfg.bz:
        loop(A, "P2_L", n + 1, lambda: p2_chunk(A))
    else:
        loop(A, "P2_L", n, lambda: p2_chunk(A))
        p2_chunk(A, nobar=True)
    A("s_waitcnt lgkmcnt(0)")

def p2_epilogue(A, items_a, items_b):
    A.comment("P2 epilogue: GEGLU (+ interleaved attention loads)")
    c1 = -2.0 * 0.7978845608028654 * 1.4426950408889634
    c2 = c1 * 0.044715
    A("s_mov_b32 s%d, 0x%x" % (S_C, f32bits(c2)))
    A("s_mov_b32 s%d, 0x%x" % (S_C + 1, f32bits(c2)))
    A("s_mov_b32 s%d, 1.0" % (S_C + 2))
    A("s_mov_b32 s%d, 1.0" % (S_C + 3))
    C1 = 40
    A("v_mov_b32 v%d, 0x%x" % (C1, f32bits(c1)))
    A("v_mov_b32 v%d, 0x%x" % (C1 + 1, f32bits(c1)))
    A("s_lshl_b32 s%d, s%d, 2" % (S_T0, S_RB2))
    A("s_add_u32 s%d, s%d, s%d" % (S_T0, S_T0, S_WAVE))
    A("s_mul_i32 s%d, s%d, 86" % (S_T0, S_T0))
    A("s_mul_i32 s%d, s%d, 6" % (S_T1, S_CG2))
    A("s_add_u32 s%d, s%d, s%d" % (S_T0, S_T0, S_T1))
    A("s_lshl_b32 s%d, s%d, 10" % (S_T0, S_T0))
    A("s_add_u32 s%d, s%d, 0x%x" % (S_T0, S_T0, WS_HF))
    A("s_cmp_eq_u32 s%d, 15" % S_CG2)
    A("s_cselect_b32 s%d, 0x40000000, s%d" % (S_T0, S_T0))
    T = 32
    pa = split(items_a, 16); pb = split(items_b, 32)
    slots = pa + pb
    blk = [0]
    def slot():
        for it in slots[blk[0]]: emit(A, it)
        blk[0] += 1
    for u in range(3):
        G = V_ACC2 + 16 * u; U = V_ACC2 + 48 + 16 * u
        for grp in range(2):
            prs = [G + 8 * grp + 2 * i for i in range(4)]
            tm = [T + 2 * i for i in range(4)]
            for g, t in zip(prs, tm): A("v_pk_mul_f32 %s, %s, %s" % (vr(t, 2), vr(g, 2), vr(g, 2)))
            slot()
            for g, t in zip(prs, tm): A("v_pk_fma_f32 %s, %s, %s, %s" % (vr(t, 2), vr(t, 2), sr(S_C, 2), vr(C1, 2)))
            slot()
            for g, t in zip(prs, tm): A("v_pk_mul_f32 %s, %s, %s" % (vr(t, 2), vr(t, 2), vr(g, 2)))
            slot()
            for g, t in zip(prs, tm):
                A("v_exp_f32 v%d, v%d" % (t, t)); A("v_exp_f32 v%d, v%d" % (t + 1, t + 1))
            slot()
            for g, t in zip(prs, tm): A("v_pk_add_f32 %s, %s, %s" % (vr(t, 2), vr(t, 2), sr(S_C + 2, 2)))
            slot()
            for g, t in zip(prs, tm):
                A("v_rcp_f32 v%d, v%d" % (t, t)); A("v_rcp_f32 v%d, v%d" % (t + 1, t + 1))
            slot()
            for g, t in zip(prs, tm): A("v_pk_mul_f32 %s, %s, %s" % (vr(g, 2), vr(g, 2), vr(U + (g - G), 2)))
            slot()
            for g, t in zip(prs, tm): A("v_pk_mul_f32 %s, %s, %s" % (vr(t, 2), vr(t, 2), vr(g, 2)))
            P = 48 + 4 * grp + 8 * (u & 1)
            for i, t in enumerate(tm): A("v_cvt_pk_bf16_f32 v%d, v%d, v%d" % (P + i, t, t + 1))
            A("buffer_store_dwordx4 %s, v%d, s[%d:%d], s%d offen offset:%d%s" % (vr(P, 4), V_L16, S_WS, S_WS + 3, S_T0, grp * 1024, SC))
            slot()
        A("s_add_u32 s%d, s%d, 2048" % (S_T0, S_T0))
        if u == 0:
            A("s_cmp_eq_u32 s%d, 14" % S_CG2)
            A("s_cselect_b32 s%d, 0x40000000, s%d" % (S_T0, S_T0))

V_FL, V_DO, V_RA, V_FLG, V_VOFF, V_MXA = 6, 7, 8, 10, 12, 13
V_NRM = 14
V_S = [16, 32]
V_C = 48
V_P = 64
V_Q, V_QN = 72, 76
V_K = 80
V_O = 112
V_ACCB = 128
V_ACT = 160
V_WF = 176
A_V = 0
OSLOT = 2304
L_OB = 0
L_W = 73728
L_MX = L_W + 65536
NT = 8
V_FL4 = 0

def tile(A, t, extra=None, oinit=False, it=0):
    S = V_S[t & 1]; Sp = V_S[(t + 1) & 1]
    e = lambda i: "v_exp_f32 v%d, v%d" % (S + i, S + i)
    c = lambda j: "v_cvt_pk_bf16_f32 v%d, v%d, v%d" % (V_P + j, S + 2 * j, S + 2 * j + 1)
    c7p = "v_cvt_pk_bf16_f32 v%d, v%d, v%d" % (V_P + 7, Sp + 14, Sp + 15)
    tp = (t - 1) % NT
    pvb = mfma(vr(V_O, 16), ar(A_V + 4 * (2 * tp + 1), 4), vr(V_P + 4, 4), vr(V_O, 16))
    pva = mfma(vr(V_O, 16), ar(A_V + 4 * (2 * t), 4), vr(V_P, 4), "0" if (t == 0 and not oinit) else vr(V_O, 16))
    tn = (t + 1) % NT
    qreg = V_Q
    if Cfg.qalt:
        qi_ = it + (1 if t == NT - 1 else 0)
        qreg = V_Q if (qi_ & 1) == 0 else V_QN
    qk = mfma(vr(Sp, 16), vr(V_K + 4 * tn, 4), vr(qreg, 4), vr(V_C, 16))
    seq = [e(0), c7p, e(1), e(2), pvb, c(0), e(3), e(4), c(1), qk, e(5), e(6), c(2), e(7), e(8), c(3), e(9), e(10), None if oinit else pva,
           c(4), e(11), e(12), c(5), "X", e(13), e(14), c(6), e(15), "END"]
    if Cfg.ord2:
        seq = [e(0), c7p, e(1), e(2), c(0), pvb, e(3), e(4), c(1), e(5), e(6), qk, c(2), e(7), e(8), c(3), e(9), e(10), c(4),
               None if oinit else pva, e(11), e(12), c(5), "X", e(13), e(14), c(6), e(15), "END"]
    extra = extra or {}
    for i, ins in enumerate(seq):
        for l in extra.get(i, []): A(l)
        if ins == "X":
            for l in extra.get("x", []): A(l)
        elif ins == "END":
            if oinit:
                A("WAITDS:OI")
                A(pva)
        elif ins is not None:
            A(ins)

def flush_lines(slot):
    o = slot * OSLOT
    return ["ds_write_b128 v%d, %s offset:%d" % (V_FL, vr(V_O, 4), o),
            "ds_write_b128 v%d, %s offset:%d" % (V_FL, vr(V_O + 4, 4), o + 1024),
            "ds_write_b32 v%d, v%d offset:%d" % (V_FL4, V_O + 8, o + 2048)]
def oinit_lines(slot):
    o = slot * OSLOT
    return ["ds_read_b128 %s, v%d offset:%d" % (vr(V_O, 4), V_FL, o),
            "ds_read_b128 %s, v%d offset:%d" % (vr(V_O + 4, 4), V_FL, o + 1024),
            "ds_read_b32 v%d, v%d offset:%d" % (V_O + 8, V_FL4, o + 2048)]

S_KO, S_VO = S_GX, S_GW0
def attn_pre_valu(A):
    t0, t1 = V_T, V_T + 1
    A("s_lshl_b32 s%d, s%d, 16" % (S_T0, S_HEAD))
    A("s_lshl_b32 s%d, s%d, 13" % (S_T1, S_QB))
    A("s_add_u32 s%d, s%d, s%d" % (S_QOFF, S_T0, S_T1))
    A("s_lshr_b32 s%d, s%d, 2" % (S_T1, S_W8))
    A("s_lshl_b32 s%d, s%d, 12" % (S_T1, S_T1))
    A("s_add_u32 s%d, s%d, s%d" % (S_QOFF, S_QOFF, S_T1))
    A("s_add_u32 s%d, s%d, 0x%x" % (S_QOFF, S_QOFF, WS_QF))
    A("s_lshl_b32 s%d, s%d, 14" % (S_T1, S_WAVE))
    A("s_add_u32 s%d, s%d, s%d" % (S_T1, S_T1, S_T0))
    A("s_add_u32 s%d, s%d, 0x%x" % (S_KO, S_T1, WS_KF))
    A("s_add_u32 s%d, s%d, 0x%x" % (S_VO, S_T1, WS_VF))
    Z = V_QN
    for r in range(4): A("v_mov_b32 v%d, 0" % (Z + r))
    if Cfg.zrows:
        A("v_and_b32 v%d, 31, v%d" % (t1, V_LANE))
        A("v_cmp_eq_u32 vcc, 16, v%d" % t1)
        A("v_mov_b32 v%d, 0x3f803f80" % (t1))
        A("s_nop 1")
        A("v_cndmask_b32 v%d, 0, v%d, vcc" % (t0, t1))
    else:
        A("v_mov_b32 v%d, 0x3f803f80" % (t0))
    A("s_nop 0")
    for r in range(16): A("v_accvgpr_write_b32 a%d, v%d" % (A_V + r, t0))
    A("s_nop 1")
    for g in range(1, 4):
        A(mfma(ar(A_V + 16 * g, 16), vr(Z, 4), vr(Z, 4), ar(A_V, 16)))
    A("v_lshrrev_b32 v%d, 5, v%d" % (t0, V_LANE))
    A("v_lshlrev_b32 v%d, 8, v%d" % (t0, t0))
    A("v_and_b32 v%d, 15, v%d" % (t1, V_LANE))
    A("v_lshlrev_b32 v%d, 4, v%d" % (t1, t1))
    A("v_add_u32 v%d, v%d, v%d" % (V_VOFF, t0, t1))
    A("s_mov_b32 s%d, 0x0000ffff" % S_EXM)
    A("s_mov_b32 s%d, 0x0000ffff" % (S_EXM + 1))
    A("s_nop 7")

def attn_pre_loads(A):
    t0, t1 = V_T, V_T + 1
    A("v_lshlrev_b32 v%d, 2, v%d" % (t0, V_LANE))
    A("s_lshl_b32 s%d, s%d, 8" % (S_T0, S_HEAD))
    A("s_add_u32 s%d, s%d, 0x%x" % (S_T1, S_T0, WS_NK))
    A("buffer_load_dword v%d, v%d, s[%d:%d], s%d offen%s" % (V_NRM, t0, S_WS, S_WS + 3, S_T1, SC))
    A("v_and_b32 v%d, 7, v%d" % (t1, V_LANE))
    A("v_lshlrev_b32 v%d, 2, v%d" % (t1, t1))
    A("s_lshl_b32 s%d, s%d, 5" % (S_T2, S_QB))
    A("s_add_u32 s%d, s%d, s%d" % (S_T1, S_T0, S_T2))
    A("s_add_u32 s%d, s%d, 0x%x" % (S_T1, S_T1, WS_NQ))
    A("buffer_load_dword v%d, v%d, s[%d:%d], s%d offen%s" % (V_NRM + 1, t1, S_WS, S_WS + 3, S_T1, SC))
    A("buffer_load_dwordx4 %s, v%d, s[%d:%d], s%d offen%s" % (vr(V_Q, 4), V_L16, S_WS, S_WS + 3, S_QOFF, SC))

def attn_loads_pre(A):
    attn_pre_valu(A)
    attn_pre_loads(A)

def k_item(i):
    it = ["buffer_load_dwordx4 %s, v%d, s[%d:%d], s%d offen offset:%d%s" % (vr(V_K + 4 * i, 4), V_L16, S_WS, S_WS + 3, S_KO, (i & 3) * 1024, SC)]
    if i == 3: it.append("s_add_u32 s%d, s%d, 4096" % (S_KO, S_KO))
    return it
def v_item(i):
    it = ["s_mov_b64 exec, s[%d:%d]" % (S_EXM, S_EXM + 1)]
    for g in (2 * i, 2 * i + 1):
        it.append("buffer_load_dwordx4 %s, v%d, s[%d:%d], s%d offen offset:%d%s" % (ar(A_V + 4 * g, 4), V_VOFF, S_WS, S_WS + 3, S_VO, (g & 7) * 512, SC))
    it.append("s_mov_b64 exec, -1")
    if i == 3: it.append("s_add_u32 s%d, s%d, 4096" % (S_VO, S_VO))
    return it

def bound(A):
    M = V_NRM
    lane_reduce(A, [M, M + 1], [V_T, V_T + 1], "v_max_f32", "v_max_f32")
    A("v_mul_f32 v%d, v%d, v%d" % (M, M, M + 1))
    A("v_sqrt_f32 v%d, v%d" % (M, M))
    A("v_mov_b32 v%d, 0x42400000" % (M + 1))
    A("v_cmp_nle_f32 vcc, v%d, v%d" % (M, M + 1))
    A("v_sub_f32 v%d, 0, v%d" % (M, M))
    A("s_nop 1")
    A("s_cmp_lg_u64 vcc, 0")
    A("s_cselect_b32 s%d, 1, 0" % S_SLOW)
    for r in range(16): A("v_mov_b32 v%d, v%d" % (V_C + r, M))

def slow_set_c(A, tag, T, qi):
    A("s_cmp_eq_u32 s%d, 0" % S_SLOW)
    A("s_cbranch_scc1 SLOWC_%s" % tag)
    for kg in range(4):
        A("ds_read_b32 v%d, v%d offset:%d" % (T + kg, V_MXA, kg * 1024 + qi * 128))
    A("s_waitcnt lgkmcnt(0)")
    for kg in range(1, 4):
        A("v_max_f32 v%d, v%d, v%d" % (T, T, T + kg))
    A("v_sub_f32 v%d, 0, v%d" % (T, T))
    A("s_nop 7")
    for r in range(16): A("v_mov_b32 v%d, v%d" % (V_C + r, T))
    A("s_nop 1")
    A("SLOWC_%s:" % tag)

def slow_prepass(A):
    A("s_cmp_eq_u32 s%d, 0" % S_SLOW)
    A("s_cbranch_scc1 SLOWP_END")
    if not Cfg.bz: A("s_barrier")
    S0 = V_S[0]; MX = V_S[1]; AD = V_S[1] + 6
    A("v_and_b32 v%d, 31, v%d" % (AD, V_LANE))
    A("v_lshlrev_b32 v%d, 2, v%d" % (AD, AD))
    A("s_lshr_b32 s%d, s%d, 2" % (S_T0, S_W8))
    A("s_lshl_b32 s%d, s%d, 9" % (S_T0, S_T0))
    A("s_add_u32 s%d, s%d, %d" % (S_T0, S_T0, L_MX))
    A("v_add_u32 v%d, s%d, v%d" % (V_MXA, S_T0, AD))
    A("s_lshl_b32 s%d, s%d, 10" % (S_T0, S_WAVE))
    A("v_add_u32 v%d, s%d, v%d" % (AD, S_T0, V_MXA))
    for q in range(4): A("v_mov_b32 v%d, 0xff800000" % (MX + q))
    A("s_sub_u32 s%d, s%d, 4096" % (S_T3, S_KO))
    A("s_mov_b32 s%d, 0" % S_I)
    A("SLOWP_H:")
    for t in range(NT):
        A("s_add_u32 s%d, s%d, %d" % (S_T2, S_T3, t * 1024))
        A("buffer_load_dwordx4 %s, v%d, s[%d:%d], s%d offen%s" % (vr(V_K + 4 * t, 4), V_L16, S_WS, S_WS + 3, S_T2, SC))
    for q in range(4):
        A("s_add_u32 s%d, s%d, %d" % (S_T2, S_QOFF, q * 1024))
        A("buffer_load_dwordx4 %s, v%d, s[%d:%d], s%d offen%s" % (vr(V_QN, 4), V_L16, S_WS, S_WS + 3, S_T2, SC))
        A("s_waitcnt vmcnt(0)")
        for t in range(NT):
            A(mfma(vr(S0, 16), vr(V_K + 4 * t, 4), vr(V_QN, 4), "0"))
            A("s_nop 15")
            for r in range(0, 16, 2):
                A("v_max3_f32 v%d, v%d, v%d, v%d" % (MX + q, MX + q, S0 + r, S0 + r + 1))
            A("s_nop 1")
    A("s_add_u32 s%d, s%d, 8192" % (S_T3, S_T3))
    A("s_add_u32 s%d, s%d, 1" % (S_I, S_I))
    A("s_cmp_lt_u32 s%d, 2" % S_I)
    A("s_cbranch_scc1 SLOWP_H")
    for q in range(4):
        A("v_mov_b32 v%d, v%d" % (MX + 4, MX + q))
        A("s_nop 1")
        A("v_permlane32_swap_b32 v%d, v%d" % (MX + q, MX + 4))
        A("s_nop 1")
        A("v_max_f32 v%d, v%d, v%d" % (MX + q, MX + q, MX + 4))
        A("ds_write_b32 v%d, v%d offset:%d" % (AD, MX + q, q * 128))
    A("s_sub_u32 s%d, s%d, 4096" % (S_T3, S_KO))
    for t in range(NT):
        A("s_add_u32 s%d, s%d, %d" % (S_T2, S_T3, t * 1024))
        A("buffer_load_dwordx4 %s, v%d, s[%d:%d], s%d offen%s" % (vr(V_K + 4 * t, 4), V_L16, S_WS, S_WS + 3, S_T2, SC))
    A("s_waitcnt vmcnt(0) lgkmcnt(0)")
    A("s_barrier")
    slow_set_c(A, "P", V_S[1] + 8, 0)
    A("SLOWP_END:")

S_HSRD = 8
S_WD = 12
S_OUT = 16
def tail_setup(A):
    t0, t1, t2 = V_T, V_T + 1, V_T + 2
    A("s_and_b32 s%d, s2, 7" % S_T0)
    A("s_lshr_b32 s%d, s2, 3" % S_T1)
    A("s_lshl_b32 s%d, s%d, 2" % (S_RB3, S_T0))
    A("s_and_b32 s%d, s%d, 3" % (S_T2, S_T1))
    A("s_add_u32 s%d, s%d, s%d" % (S_RB3, S_RB3, S_T2))
    A("s_lshr_b32 s%d, s%d, 2" % (S_CB3, S_T1))
    A("v_lshrrev_b32 v%d, 3, v%d" % (t0, V_LANE))
    A("v_lshlrev_b32 v%d, 10, v%d" % (t0, t0))
    A("v_lshrrev_b32 v%d, 4, v%d" % (t1, V_LANE))
    A("v_and_b32 v%d, 1, v%d" % (t1, t1))
    A("v_lshlrev_b32 v%d, 2, v%d" % (t1, t1))
    A("v_and_b32 v%d, 7, v%d" % (t2, V_LANE))
    A("v_xor_b32 v%d, v%d, v%d" % (t1, t1, t2))
    A("v_lshlrev_b32 v%d, 4, v%d" % (t1, t1))
    A("v_add_u32 v%d, v%d, v%d" % (V_DO, t0, t1))
    A("s_lshl_b32 s%d, s%d, 13" % (S_LB, S_W8))
    A("s_add_u32 s%d, s%d, %d" % (S_LB, S_LB, L_W))
    A("v_and_b32 v%d, 15, v%d" % (t0, V_LANE))
    A("v_lshrrev_b32 v%d, 2, v%d" % (t0, t0))
    A("v_lshrrev_b32 v%d, 5, v%d" % (t1, V_LANE))
    A("v_lshlrev_b32 v%d, 2, v%d" % (t1, t1))
    A("v_add_u32 v%d, v%d, v%d" % (t1, t1, t0))
    A("v_lshlrev_b32 v%d, 7, v%d" % (t1, t1))
    A("v_lshrrev_b32 v%d, 1, v%d" % (t0, t0))
    A("v_lshlrev_b32 v%d, 6, v%d" % (t0, t0))
    A("v_add_u32 v%d, v%d, v%d" % (t1, t1, t0))
    A("v_lshrrev_b32 v%d, 4, v%d" % (t0, V_LANE))
    A("v_and_b32 v%d, 1, v%d" % (t0, t0))
    A("v_lshlrev_b32 v%d, 5, v%d" % (t0, t0))
    A("v_add_u32 v%d, v%d, v%d" % (t1, t1, t0))
    A("v_and_b32 v%d, 3, v%d" % (t0, V_LANE))
    A("v_lshlrev_b32 v%d, 3, v%d" % (t0, t0))
    A("v_add_u32 v%d, v%d, v%d" % (t1, t1, t0))
    A("v_add_u32 v%d, s%d, v%d" % (V_RA, S_LB, t1))
    A("v_xor_b32 v%d, 64, v%d" % (V_RA + 1, V_RA))
    A("s_lshl_b32 s%d, s%d, 1" % (S_T0, S_RB3))
    A("s_and_b32 s%d, s%d, 1" % (S_T1, S_W8))
    A("s_add_u32 s%d, s%d, s%d" % (S_T0, S_T0, S_T1))
    A("s_mul_i32 s%d, s%d, 86" % (S_T0, S_T0))
    A("s_lshr_b32 s%d, s%d, 1" % (S_T1, S_W8))
    A("s_mul_i32 s%d, s%d, %d" % (S_T1, S_T1, 22 if Cfg.n22 else 24))
    A("s_add_u32 s%d, s%d, s%d" % (S_T0, S_T0, S_T1))
    A("s_lshl_b32 s%d, s%d, 10" % (S_AO, S_T0))
    A("s_lshl_b32 s%d, s%d, 14" % (S_WO0, S_T1))
    A("s_lshl_b32 s%d, s%d, 7" % (S_T2, S_CB3))
    A("s_add_u32 s%d, s%d, s%d" % (S_WO0, S_WO0, S_T2))
    A("s_add_u32 s%d, s%d, 8192" % (S_WO1, S_WO0))
    A("s_lshl_b32 s%d, s%d, 7" % (S_FA, S_RB3))
    A("s_add_u32 s%d, s%d, 0x%x" % (S_FA, S_FA, WS_F2))
    A("v_and_b32 v%d, 31, v%d" % (V_FLG + 1, V_LANE))
    A("v_lshlrev_b32 v%d, 2, v%d" % (V_FLG + 1, V_FLG + 1))
    A("s_lshl_b32 s%d, s%d, 3" % (S_T0, S_WAVE))
    A("s_lshr_b32 s%d, s%d, 2" % (S_T1, S_W8))
    A("s_lshl_b32 s%d, s%d, 2" % (S_T1, S_T1))
    A("s_add_u32 s%d, s%d, s%d" % (S_T0, S_T0, S_T1))
    A("s_mul_i32 s%d, s%d, %d" % (S_T0, S_T0, OSLOT))
    A("v_add_u32 v%d, s%d, v%d" % (V_FL, S_T0, V_L16))
    A("v_lshlrev_b32 v%d, 2, v%d" % (V_FL4, V_LANE))
    A("v_add_u32 v%d, s%d, v%d" % (V_FL4, S_T0, V_FL4))

def tail_srds(A):
    srd(A, S_HSRD, P_WS, HF_BYTES, add=WS_HF)
    srd(A, S_WD, P_WD, 1376 * 1024)
    srd(A, S_OUT, P_OUT, 2048 * 1024)

def sh_load(slot):
    a = ["buffer_load_dwordx4 %s, v%d, s[%d:%d], s%d offen%s" % (vr(V_ACT + 4 * slot, 4), V_L16, S_HSRD, S_HSRD + 3, S_AO, SC),
         "s_add_u32 s%d, s%d, 1024" % (S_AO, S_AO)]
    b = ["s_add_u32 m0, s%d, %d" % (S_LB, slot * 2048), "s_nop 0",
         "buffer_load_dwordx4 v%d, s[%d:%d], s%d offen lds" % (V_DO, S_WD, S_WD + 3, S_WO0), "s_add_u32 s%d, s%d, 16384" % (S_WO0, S_WO0)]
    c = ["s_add_u32 m0, s%d, %d" % (S_LB, slot * 2048 + 1024), "s_nop 0",
         "buffer_load_dwordx4 v%d, s[%d:%d], s%d offen lds" % (V_DO, S_WD, S_WD + 3, S_WO1), "s_add_u32 s%d, s%d, 16384" % (S_WO1, S_WO1)]
    return a, b, c

def w_reads(slot, F):
    return ["ds_read_b64_tr_b16 %s, v%d offset:%d" % (vr(F + 4 * u + 2 * q, 2), V_RA + u, slot * 2048 + q * 1024) for u in range(2) for q in range(2)]

class Track:
    def __init__(self): self.vm = []; self.ds = []
    def resolve(self, A, lines):
        for l in lines:
            if l.startswith("VM:") or l.startswith("DS:"):
                tag, ins = l[3:].split("|", 1)
                (self.vm if l[0] == "V" else self.ds).append(tag); A(ins)
            elif l.startswith("WAITVM:") or l.startswith("WAITDS:"):
                ops = self.vm if l[4] == "V" else self.ds
                tag = l[7:]
                idx = max([k for k, t in enumerate(ops) if t == tag])
                n = len(ops) - 1 - idx
                if l[4] == "V": A("s_waitcnt vmcnt(%d)" % min(n, 63))
                else: A("s_waitcnt lgkmcnt(%d)" % min(n, 15))
            elif l.startswith("NT|"):
                A(l[3:])
            else:
                assert not (l.startswith("buffer_") or l.startswith("ds_") or l.startswith("global_")), l
                A(l)

def vmtag(tag, lines):
    return [("VM:%s|%s" % (tag, l)) if l.startswith("buffer_") else (("DS:%s|%s" % (tag, l)) if l.startswith("ds_") else l) for l in lines]

T_CHECK = 20
T_FIRST = 24
NSTEP = 24
def nstep(): return 22 if Cfg.n22 else 24
def tau(s): return T_FIRST + ((5 * s) // 3 if not Cfg.n22 else (20 * s) // 11)

def attn_all(B):
    X1, X2 = 13, 23
    ex = [dict() for _ in range(64)]
    def add(T, k, lines): ex[T].setdefault(k, []).extend(lines)
    if not Cfg.bz: add(16, 2, ["s_barrier"])
    if Cfg.prio_t is not None: add(Cfg.prio_t, 0, ["s_setprio 0"])
    if not Cfg.bdown: add(T_CHECK - 2, 6, ["VM:F|buffer_load_dword v%d, v%d, s[%d:%d], s%d offen sc1" % (V_FLG, V_FLG + 1, S_WS, S_WS + 3, S_FA)])
    if not Cfg.bdown: add(T_CHECK, 2, ["WAITVM:F", "v_cmp_ne_u32 vcc, s%d, v%d" % (S_NONCE, V_FLG), "s_nop 3", "s_and_b32 vcc_lo, vcc_lo, 0x3fffffff", "s_and_b32 vcc_hi, vcc_hi, 0x3fffffff",
                     "s_cmp_eq_u64 vcc, 0", "s_cbranch_scc1 S2_OK", "s_call_b64 s[0:1], S2_SPIN", "S2_OK:"])
    if Cfg.wtouch:
        add(2, 6, ["s_lshr_b32 s%d, s2, 3" % S_T0, "s_lshl_b32 s%d, s%d, 3" % (S_T0, S_T0), "s_add_u32 s%d, s%d, s%d" % (S_T0, S_T0, S_W8),
                   "s_mul_i32 s%d, s%d, %d" % (S_T1, S_T0, 43 * 128), "v_min_u32 v%d, 42, v%d" % (V_T, V_LANE), "v_lshlrev_b32 v%d, 7, v%d" % (V_T, V_T),
                   "VM:TD|buffer_load_dword v%d, v%d, s[%d:%d], s%d offen" % (V_T + 1, V_T, S_WD, S_WD + 3, S_T1)])
        Bs = Buf(); srd(Bs, 44, P_WO, 512 * 1024)
        add(4, 6, Bs.lines + ["s_lshr_b32 s%d, s2, 3" % S_T0, "s_lshl_b32 s%d, s%d, 3" % (S_T0, S_T0), "s_add_u32 s%d, s%d, s%d" % (S_T0, S_T0, S_W8),
                   "s_lshl_b32 s%d, s%d, 11" % (S_T1, S_T0), "v_and_b32 v%d, 15, v%d" % (V_T, V_LANE), "v_lshlrev_b32 v%d, 7, v%d" % (V_T, V_T),
                   "VM:TO|buffer_load_dword v%d, v%d, s[44:47], s%d offen" % (V_T + 2, V_T, S_T1)])
    if Cfg.t2 or Cfg.dp2:
        Bs = Buf(); srd(Bs, 44, P_WO, 512 * 1024)
        tl = list(Bs.lines)
        if Cfg.t2touch and not Cfg.bdown:
            tl += ["s_lshr_b32 s%d, s2, 3" % S_T0, "s_lshl_b32 s%d, s%d, 3" % (S_T0, S_T0), "s_add_u32 s%d, s%d, s%d" % (S_T0, S_T0, S_W8),
                   "s_lshl_b32 s%d, s%d, 11" % (S_T1, S_T0), "v_and_b32 v%d, 15, v%d" % (V_T, V_LANE), "v_lshlrev_b32 v%d, 7, v%d" % (V_T, V_T),
                   "VM:TO|buffer_load_dword v%d, v%d, s[44:47], s%d offen" % (V_T + 2, V_T, S_T1)]
        add(10, 6, tl)
        if Cfg.t2: add(47, 6, ["VM:FG|buffer_load_dword v%d, v%d, s[%d:%d], s%d offen sc1" % (V_FLG, V_FLG + 1, S_WS, S_WS + 3, S_FA)])
        if Cfg.t2: add(53, 2, ["WAITVM:FG", "v_cmp_ne_u32 vcc, s%d, v%d" % (S_NONCE, V_FLG), "s_nop 3",
                    "s_cmp_eq_u64 vcc, 0", "s_cbranch_scc1 FG_OK", "s_call_b64 s[0:1], FG_SPIN", "FG_OK:",
                    "v_and_b32 v%d, 31, v%d" % (V_T, V_LANE), "v_lshlrev_b32 v%d, 2, v%d" % (V_T, V_T),
                    "s_lshl_b32 s%d, s%d, 1" % (S_T0, S_RB3), "s_and_b32 s%d, s%d, 1" % (S_T1, S_W8), "s_add_u32 s%d, s%d, s%d" % (S_T0, S_T0, S_T1),
                    "s_lshl_b32 s%d, s%d, 7" % (S_T0, S_T0), "s_add_u32 s%d, s%d, 0x%x" % (S_T0, S_T0, WS_G),
                    "VM:G|buffer_load_dword v%d, v%d, s[%d:%d], s%d offen%s" % (V_G, V_T, S_WS, S_WS + 3, S_T0, SC)])
        wo_t = [None] * 4
        for k_ in range(nstep() - 4, nstep()): wo_t[k_ & 3] = min(63, tau(k_) + 1)
        if not Cfg.bdown: add(min(wo_t), 2, ["s_lshl_b32 s%d, s%d, 16" % (S_WO0, S_W8), "s_lshl_b32 s%d, s%d, 7" % (S_T1, S_CB3), "s_add_u32 s%d, s%d, s%d" % (S_WO0, S_WO0, S_T1),
                    "s_add_u32 s%d, s%d, 8192" % (S_WO1, S_WO0)])
        for i_, T_ in enumerate(wo_t if not Cfg.bdown else ()):
            add(T_, 7, ["s_add_u32 m0, s%d, %d" % (S_LB, i_ * 2048), "s_add_u32 s%d, s%d, %d" % (S_T2, S_WO0, i_ * 16384),
                        "VM:WO|buffer_load_dwordx4 v%d, s[44:47], s%d offen lds" % (V_DO, S_T2)])
            add(T_, 12, ["s_add_u32 m0, s%d, %d" % (S_LB, i_ * 2048 + 1024), "s_add_u32 s%d, s%d, %d" % (S_T2, S_WO1, i_ * 16384),
                         "VM:WO|buffer_load_dwordx4 v%d, s[44:47], s%d offen lds" % (V_DO, S_T2)])
    if Cfg.dp:
        add(46, 2, ["s_lshl_b32 s%d, s%d, 9" % (S_T0, S_W8), "s_add_u32 s%d, s%d, 0x%x" % (S_T0, S_T0, WS_F1),
                    "v_lshlrev_b32 v%d, 3, v%d" % (V_T, V_LANE),
                    "VM:FA|buffer_load_dwordx2 %s, v%d, s[%d:%d], s%d offen sc1" % (vr(V_T + 1, 2), V_T, S_WS, S_WS + 3, S_T0)])
        add(47, 6, ["VM:FG|buffer_load_dword v%d, v%d, s[%d:%d], s%d offen sc1" % (V_FLG, V_FLG + 1, S_WS, S_WS + 3, S_FA)])
        add(53, 2, ["WAITVM:FG", "v_cmp_ne_u32 vcc, s%d, v%d" % (S_NONCE, V_T + 1), "v_cmp_ne_u32 s[%d:%d], s%d, v%d" % (S_T2, S_T3, S_NONCE, V_T + 2),
                    "s_nop 3", "s_or_b64 vcc, vcc, s[%d:%d]" % (S_T2, S_T3),
                    "v_cmp_ne_u32 s[%d:%d], s%d, v%d" % (S_T2, S_T3, S_NONCE, V_FLG), "s_nop 3", "s_or_b64 vcc, vcc, s[%d:%d]" % (S_T2, S_T3),
                    "s_cmp_eq_u64 vcc, 0", "s_cbranch_scc1 FA_OK", "s_call_b64 s[0:1], FA_SPIN", "FA_OK:",
                    "v_and_b32 v%d, 31, v%d" % (V_T, V_LANE), "v_lshlrev_b32 v%d, 2, v%d" % (V_T, V_T),
                    "s_lshl_b32 s%d, s%d, 1" % (S_T0, S_RB3), "s_and_b32 s%d, s%d, 1" % (S_T1, S_W8), "s_add_u32 s%d, s%d, s%d" % (S_T0, S_T0, S_T1),
                    "s_lshl_b32 s%d, s%d, 7" % (S_T0, S_T0), "s_add_u32 s%d, s%d, 0x%x" % (S_T0, S_T0, WS_G),
                    "VM:G|buffer_load_dword v%d, v%d, s[%d:%d], s%d offen%s" % (V_G, V_T, S_WS, S_WS + 3, S_T0, SC)])
    used = {}
    for s_ in range(nstep() if ("nosh" not in Cfg.exp and not Cfg.bdown) else 0):
        TL = (T_CHECK + 1 + s_) if s_ < 3 else tau(s_ - 3)
        a, b, c = sh_load(s_ & 3)
        if s_ >= 86 - 3 * (22 if Cfg.n22 else 24):
            a = ["s_cmp_ge_u32 s%d, 6" % S_W8, "s_cselect_b32 s%d, 0x40000000, s%d" % (S_T0, S_AO),
                 a[0].replace("s%d offen" % S_AO, "s%d offen" % S_T0), a[1]]
        if "nosalu" in Cfg.exp:
            a = [l for l in a if l.startswith("buffer")]; b = [l for l in b if l.startswith("buffer")]; c = [l for l in c if l.startswith("buffer")]
        if "novm" in Cfg.exp:
            a = ["VM:L%d|s_nop 0" % s_]; b = []; c = []
            add(TL, 20, a)
        else:
            add(TL, 6, vmtag("L%d" % s_, b)); add(TL, 11, vmtag("L%d" % s_, c)); add(TL, 20, vmtag("L%d" % s_, a))
        TR = tau(s_) - 1
        if "nods" in Cfg.exp:
            add(TR, 26, ["WAITVM:L%d" % s_, "DS:W%d|s_nop 0" % s_])
        else:
            add(TR, 26, ["WAITVM:L%d" % s_] + vmtag("W%d" % s_, w_reads(s_ & 3, V_WF + 8 * (s_ & 1))))
        for u in range(2):
            T = tau(s_) + u
            d = vr(V_ACCB + 16 * u, 16)
            m = mfma(d, vr(V_WF + 8 * (s_ & 1) + 4 * u, 4), vr(V_ACT + 4 * (s_ & 3), 4), d)
            if "nox" in Cfg.exp: m = "s_nop 0"
            if u == 0:
                add(T, X2, ["WAITDS:W%d" % s_, m]); used[(T, X2)] = 1
            else:
                pos = X1 if (T, X1) not in used and any(tau(k) == T for k in range(nstep())) else X2
                add(T, pos, [m]); used[(T, pos)] = 1
    for it in range(8):
        qi = it & 3
        for t in range(NT):
            T = 8 * it + t
            oinit = (it >= 4 and t == 0)
            if t == 0:
                if it > 0:
                    fl = vmtag("O", flush_lines((it - 1) & 3))
                    if oinit: fl = fl + vmtag("OI", oinit_lines(qi))
                    add(T, 18 if Cfg.ord2 else 17, fl)
                add(T, 2, ["s_add_u32 s%d, s%d, %d" % (S_T0, S_QOFF, ((it + 1) & 3) * 1024),
                           "VM:Q%d|buffer_load_dwordx4 %s, v%d, s[%d:%d], s%d offen%s" % (it, vr(V_QN if (not Cfg.qalt or (it & 1) == 0) else V_Q, 4), V_L16, S_WS, S_WS + 3, S_T0, SC)])
            if it == 3:
                if t == 0: add(T, 3, ["s_add_u32 s%d, s%d, 4096" % (S_KO, S_KO)])
                kl = ["VM:K%d|buffer_load_dwordx4 %s, v%d, s[%d:%d], s%d offen offset:%d%s" % (t, vr(V_K + 4 * t, 4), V_L16, S_WS, S_WS + 3, S_KO, (t & 3) * 1024, SC)]
                if t == 3: kl.append("s_add_u32 s%d, s%d, 4096" % (S_KO, S_KO))
                add(T, 14, kl)
            if (it == 3 and t >= 1) or (it == 4 and t == 0):
                tv = (t - 1) % NT
                vl = []
                if tv == 0 or tv == 4: vl.append("s_add_u32 s%d, s%d, 4096" % (S_VO, S_VO))
                vl.append("s_mov_b64 exec, s[%d:%d]" % (S_EXM, S_EXM + 1))
                for gq in (2 * tv, 2 * tv + 1):
                    vl.append("VM:V%d|buffer_load_dwordx4 %s, v%d, s[%d:%d], s%d offen offset:%d%s" % (tv, ar(A_V + 4 * gq, 4), V_VOFF, S_WS, S_WS + 3, S_VO, (gq & 7) * 512, SC))
                vl.append("s_mov_b64 exec, -1")
                add(T, 7, vl)
            if it == 3 and t == 7: add(T, 8, ["WAITVM:K0"])
            if it == 4:
                if t < 7: add(T, 8, ["WAITVM:K%d" % (t + 1)])
                add(T, 16, ["WAITVM:V%d" % t])
            if t == 7:
                add(T, 1, ["WAITVM:Q%d" % it])
                if not Cfg.qalt: add(T, 2, ["v_mov_b32 v%d, v%d" % (V_Q + r, V_QN + r) for r in range(4)])
                Bf = Buf(); slow_set_c(Bf, "I%d" % it, V_S[0], (it + 1) & 3)
                for l in Bf.lines:
                    B(("NT|" + l) if l.startswith("ds_") else l)
            e_ = dict(ex[T]);
            if X2 in e_: e_["x"] = e_.pop(X2)
            tile(B, t, e_, oinit, it)

V_BACC = 128
def b_ffn_down(A):
    A.comment("==== FFN down (B waves, standalone) ====")
    D = Cfg.bd_depth
    RING, WFB, RB = 16, 112, 64
    S_A1, S_L2 = 44, 45
    A("s_mov_b32 s%d, 0" % S_SPIN)
    A("BD_S2:")
    A("buffer_load_dword v%d, v%d, s[%d:%d], s%d offen sc1" % (V_FLG, V_FLG + 1, S_WS, S_WS + 3, S_FA))
    A("s_waitcnt vmcnt(0)")
    A("v_cmp_ne_u32 vcc, s%d, v%d" % (S_NONCE, V_FLG))
    A("s_add_u32 s%d, s%d, 1" % (S_SPIN, S_SPIN))
    A("s_nop 3")
    A("s_and_b32 vcc_lo, vcc_lo, 0x3fffffff")
    A("s_and_b32 vcc_hi, vcc_hi, 0x3fffffff")
    A("s_cmp_gt_u32 s%d, 400000" % S_SPIN)
    A("s_cbranch_scc1 BD_S2_OK")
    A("s_cmp_eq_u64 vcc, 0")
    A("s_cbranch_scc1 BD_S2_OK")
    A("s_sleep 4")
    A("s_branch BD_S2")
    A("BD_S2_OK:")
    stamp(A, 6)
    A("s_lshl_b32 s%d, s%d, 1" % (S_T0, S_RB3))
    A("s_mul_i32 s%d, s%d, 86" % (S_T0, S_T0))
    A("s_mul_i32 s%d, s%d, 22" % (S_T1, S_WAVE))
    A("s_add_u32 s%d, s%d, s%d" % (S_T0, S_T0, S_T1))
    A("s_lshl_b32 s%d, s%d, 10" % (S_AO, S_T0))
    A("s_add_u32 s%d, s%d, %d" % (S_A1, S_AO, 86 * 1024))
    A("s_lshl_b32 s%d, s%d, 14" % (S_WO0, S_T1))
    A("s_lshl_b32 s%d, s%d, 7" % (S_T2, S_CB3))
    A("s_add_u32 s%d, s%d, s%d" % (S_WO0, S_WO0, S_T2))
    A("s_add_u32 s%d, s%d, 8192" % (S_WO1, S_WO0))
    A("s_lshl_b32 s%d, s%d, 14" % (S_L2, S_WAVE))
    A("s_add_u32 s%d, s%d, %d" % (S_L2, S_L2, L_W))
    A("s_sub_u32 s%d, s%d, s%d" % (S_T0, S_L2, S_LB))
    A("v_add_u32 v%d, s%d, v%d" % (RB, S_T0, V_RA))
    A("v_add_u32 v%d, s%d, v%d" % (RB + 1, S_T0, V_RA + 1))
    B = Buf()
    N = 22
    def L(i):
        r = RING + 8 * (i % D); sl = (i % 8) * 2048
        B("VM:L%d|buffer_load_dwordx4 %s, v%d, s[%d:%d], s%d offen%s" % (i, vr(r, 4), V_L16, S_HSRD, S_HSRD + 3, S_AO, SC))
        B("s_add_u32 m0, s%d, %d" % (S_L2, sl))
        B("VM:L%d|buffer_load_dwordx4 %s, v%d, s[%d:%d], s%d offen%s" % (i, vr(r + 4, 4), V_L16, S_HSRD, S_HSRD + 3, S_A1, SC))
        B("VM:L%d|buffer_load_dwordx4 v%d, s[%d:%d], s%d offen lds" % (i, V_DO, S_WD, S_WD + 3, S_WO0))
        B("s_add_u32 m0, s%d, %d" % (S_L2, sl + 1024))
        B("s_add_u32 s%d, s%d, 1024" % (S_AO, S_AO))
        B("VM:L%d|buffer_load_dwordx4 v%d, s[%d:%d], s%d offen lds" % (i, V_DO, S_WD, S_WD + 3, S_WO1))
        B("s_add_u32 s%d, s%d, 1024" % (S_A1, S_A1))
        B("s_add_u32 s%d, s%d, 16384" % (S_WO0, S_WO0))
        B("s_add_u32 s%d, s%d, 16384" % (S_WO1, S_WO1))
    def R(i):
        F = WFB + 8 * (i & 1)
        B("WAITVM:L%d" % i)
        for u in range(2):
            for q in range(2):
                B("DS:W%d|ds_read_b64_tr_b16 %s, v%d offset:%d" % (i, vr(F + 4 * u + 2 * q, 2), RB + u, (i % 8) * 2048 + q * 1024))
    for i in range(D): L(i)
    R(0)
    for i in range(N):
        if i + 1 < N: R(i + 1)
        B("WAITDS:W%d" % i)
        F = WFB + 8 * (i & 1); r = RING + 8 * (i % D)
        for u in range(2):
            for mt in range(2):
                d = vr(V_BACC + 16 * (2 * u + mt), 16)
                B(mfma(d, vr(F + 4 * u, 4), vr(r + 4 * mt, 4), "0" if i == 0 else d))
        if i + D < N: L(i + D)
    Track().resolve(A, B.lines)
    A("s_waitcnt lgkmcnt(0)")
    srd(A, S_WD, P_WO, 512 * 1024)
    A("s_lshl_b32 s%d, s%d, 17" % (S_WO0, S_WAVE))
    A("s_lshl_b32 s%d, s%d, 7" % (S_T1, S_CB3))
    A("s_add_u32 s%d, s%d, s%d" % (S_WO0, S_WO0, S_T1))
    A("s_add_u32 s%d, s%d, 8192" % (S_WO1, S_WO0))
    for i in range(8):
        A("s_add_u32 m0, s%d, %d" % (S_L2, i * 2048)); A("s_nop 0")
        A("buffer_load_dwordx4 v%d, s[%d:%d], s%d offen lds" % (V_DO, S_WD, S_WD + 3, S_WO0))
        A("s_add_u32 m0, s%d, %d" % (S_L2, i * 2048 + 1024)); A("s_add_u32 s%d, s%d, 16384" % (S_WO0, S_WO0))
        A("buffer_load_dwordx4 v%d, s[%d:%d], s%d offen lds" % (V_DO, S_WD, S_WD + 3, S_WO1))
        A("s_add_u32 s%d, s%d, 16384" % (S_WO1, S_WO1))

V_B8 = 24
def tail_bd(A):
    attn_epilogue(A)
    A("s_waitcnt vmcnt(0)")
    A("s_lshl_b32 s%d, s%d, 2" % (S_T0, S_QB))
    A("s_lshr_b32 s%d, s%d, 1" % (S_T1, S_W8))
    A("s_add_u32 s%d, s%d, s%d" % (S_T0, S_T0, S_T1))
    A("s_lshl_b32 s%d, s%d, 8" % (S_T0, S_T0))
    A("s_lshl_b32 s%d, s%d, 1" % (S_T1, S_HEAD))
    A("s_and_b32 s%d, s%d, 1" % (S_T2, S_W8))
    A("s_add_u32 s%d, s%d, s%d" % (S_T1, S_T1, S_T2))
    A("s_lshl_b32 s%d, s%d, 2" % (S_T1, S_T1))
    A("s_add_u32 s%d, s%d, s%d" % (S_T0, S_T0, S_T1))
    A("s_add_u32 s%d, s%d, 0x%x" % (S_T0, S_T0, WS_F3))
    store_flag(A, S_T0)
    stamp(A, 10)
    A("s_barrier")
    A("s_cmp_lt_u32 s%d, 4" % S_W8)
    A("s_cbranch_scc1 BD_NOW")
    A("s_lshl_b32 s%d, s%d, 14" % (S_T0, S_WAVE))
    A("v_add_u32 v%d, s%d, v%d" % (V_T, S_T0, V_L16))
    for tl in range(4):
        for q in range(4):
            A("ds_write_b128 v%d, %s offset:%d" % (V_T, vr(V_BACC + 16 * tl + 4 * q, 4), tl * 4096 + q * 1024))
    A("BD_NOW:")
    A("s_waitcnt lgkmcnt(0)")
    for i in range(8):
        emit(A, w_reads(i, V_WF8 + 8 * i))
        if i % 3 == 2: A("s_waitcnt lgkmcnt(0)")
    A("s_waitcnt lgkmcnt(0)")
    A("s_barrier")
    A("s_and_b32 s%d, s%d, 1" % (S_T0, S_W8))
    A("s_lshr_b32 s%d, s%d, 1" % (S_T1, S_W8))
    A("s_and_b32 s%d, s%d, 1" % (S_T1, S_T1))
    A("s_lshl_b32 s%d, s%d, 1" % (S_T1, S_T1))
    A("s_add_u32 s%d, s%d, s%d" % (S_T0, S_T0, S_T1))
    A("s_lshl_b32 s%d, s%d, 12" % (S_T0, S_T0))
    A("s_lshr_b32 s%d, s%d, 2" % (S_T1, S_W8))
    A("s_lshl_b32 s%d, s%d, 11" % (S_T1, S_T1))
    A("s_add_u32 s%d, s%d, s%d" % (S_T0, S_T0, S_T1))
    A("v_add_u32 v%d, s%d, v%d" % (V_T, S_T0, V_L16))
    R = 128
    for kq in range(4):
        for q in range(2):
            A("ds_read_b128 %s, v%d offset:%d" % (vr(R + 8 * kq + 4 * q, 4), V_T, kq * 16384 + q * 1024))
    A("v_sub_f32 v%d, 1.0, v%d" % (V_G + 1, V_G))
    A("s_waitcnt lgkmcnt(0)")
    for r in range(8):
        A("v_add_f32 v%d, v%d, v%d" % (R + r, R + r, R + 8 + r))
        A("v_add_f32 v%d, v%d, v%d" % (R + 16 + r, R + 16 + r, R + 24 + r))
    for r in range(8):
        A("v_add_f32 v%d, v%d, v%d" % (R + r, R + r, R + 16 + r))
    for r in range(8):
        A("v_mul_f32 v%d, v%d, v%d" % (V_B8 + r, V_G + 1, R + r))
    A("s_cmp_lg_u32 s%d, 0" % S_W8)
    A("s_cbranch_scc1 S3_SKIP")
    poll_flags(A, "3", WS_F3, S_RB3, 0, 64)
    A("S3_SKIP:")
    A("s_barrier")
    stamp(A, 11)
    outproj(A)

def s2_spin(A):
    A("S2_SPIN:")
    A("s_mov_b32 s%d, 0" % S_SPIN)
    A("S2_SPIN_L:")
    A("buffer_load_dword v%d, v%d, s[%d:%d], s%d offen sc1" % (V_FLG, V_FLG + 1, S_WS, S_WS + 3, S_FA))
    A("s_waitcnt vmcnt(0)")
    A("v_cmp_ne_u32 vcc, s%d, v%d" % (S_NONCE, V_FLG))
    A("s_add_u32 s%d, s%d, 1" % (S_SPIN, S_SPIN))
    A("s_nop 3")
    A("s_and_b32 vcc_lo, vcc_lo, 0x3fffffff")
    A("s_and_b32 vcc_hi, vcc_hi, 0x3fffffff")
    A("s_cmp_gt_u32 s%d, 400000" % S_SPIN)
    A("s_cbranch_scc1 S2_SPIN_D")
    A("s_cmp_eq_u64 vcc, 0")
    A("s_cbranch_scc1 S2_SPIN_D")
    A("s_sleep %d" % Cfg.s2sleep)
    A("s_branch S2_SPIN_L")
    A("S2_SPIN_D:")
    A("s_setpc_b64 s[0:1]")

def fa_spin(A):
    A("FA_SPIN:")
    A("s_mov_b32 s%d, 0" % S_SPIN)
    A("FA_SPIN_L:")
    A("s_lshl_b32 s%d, s%d, 9" % (S_T0, S_W8))
    A("s_add_u32 s%d, s%d, 0x%x" % (S_T0, S_T0, WS_F1))
    A("v_lshlrev_b32 v%d, 3, v%d" % (V_T, V_LANE))
    A("buffer_load_dwordx2 %s, v%d, s[%d:%d], s%d offen sc1" % (vr(V_T + 1, 2), V_T, S_WS, S_WS + 3, S_T0))
    A("buffer_load_dword v%d, v%d, s[%d:%d], s%d offen sc1" % (V_FLG, V_FLG + 1, S_WS, S_WS + 3, S_FA))
    A("s_waitcnt vmcnt(0)")
    A("v_cmp_ne_u32 vcc, s%d, v%d" % (S_NONCE, V_T + 1))
    A("v_cmp_ne_u32 s[%d:%d], s%d, v%d" % (S_T2, S_T3, S_NONCE, V_T + 2))
    A("s_nop 3")
    A("s_or_b64 vcc, vcc, s[%d:%d]" % (S_T2, S_T3))
    A("v_cmp_ne_u32 s[%d:%d], s%d, v%d" % (S_T2, S_T3, S_NONCE, V_FLG))
    A("s_add_u32 s%d, s%d, 1" % (S_SPIN, S_SPIN))
    A("s_nop 3")
    A("s_or_b64 vcc, vcc, s[%d:%d]" % (S_T2, S_T3))
    A("s_cmp_gt_u32 s%d, 400000" % S_SPIN)
    A("s_cbranch_scc1 FA_SPIN_D")
    A("s_cmp_eq_u64 vcc, 0")
    A("s_cbranch_scc1 FA_SPIN_D")
    A("s_sleep 4")
    A("s_branch FA_SPIN_L")
    A("FA_SPIN_D:")
    A("s_setpc_b64 s[0:1]")

def fg_spin(A):
    A("FG_SPIN:")
    A("s_mov_b32 s%d, 0" % S_SPIN)
    A("FG_SPIN_L:")
    A("buffer_load_dword v%d, v%d, s[%d:%d], s%d offen sc1" % (V_FLG, V_FLG + 1, S_WS, S_WS + 3, S_FA))
    A("s_waitcnt vmcnt(0)")
    A("v_cmp_ne_u32 vcc, s%d, v%d" % (S_NONCE, V_FLG))
    A("s_add_u32 s%d, s%d, 1" % (S_SPIN, S_SPIN))
    A("s_nop 3")
    A("s_cmp_gt_u32 s%d, 400000" % S_SPIN)
    A("s_cbranch_scc1 FG_SPIN_D")
    A("s_cmp_eq_u64 vcc, 0")
    A("s_cbranch_scc1 FG_SPIN_D")
    A("s_sleep 4")
    A("s_branch FG_SPIN_L")
    A("FG_SPIN_D:")
    A("s_setpc_b64 s[0:1]")

def tail_t2(A):
    attn_epilogue(A)
    A("s_waitcnt vmcnt(0)")
    A("s_lshl_b32 s%d, s%d, 2" % (S_T0, S_QB))
    A("s_lshr_b32 s%d, s%d, 1" % (S_T1, S_W8))
    A("s_add_u32 s%d, s%d, s%d" % (S_T0, S_T0, S_T1))
    A("s_lshl_b32 s%d, s%d, 8" % (S_T0, S_T0))
    A("s_lshl_b32 s%d, s%d, 1" % (S_T1, S_HEAD))
    A("s_and_b32 s%d, s%d, 1" % (S_T2, S_W8))
    A("s_add_u32 s%d, s%d, s%d" % (S_T1, S_T1, S_T2))
    A("s_lshl_b32 s%d, s%d, 2" % (S_T1, S_T1))
    A("s_add_u32 s%d, s%d, s%d" % (S_T0, S_T0, S_T1))
    A("s_add_u32 s%d, s%d, 0x%x" % (S_T0, S_T0, WS_F3))
    store_flag(A, S_T0)
    stamp(A, 10)
    A("s_barrier")
    for i in range(8):
        emit(A, w_reads(i, V_WF8 + 8 * i))
        if i % 3 == 2: A("s_waitcnt lgkmcnt(0)")
    A("v_sub_f32 v%d, 1.0, v%d" % (V_G + 1, V_G))
    for r in range(32):
        A("v_mul_f32 v%d, v%d, v%d" % (V_ACCB + r, V_G + 1, V_ACCB + r))
    A("s_waitcnt lgkmcnt(0)")
    A("s_cmp_lg_u32 s%d, 0" % S_W8)
    A("s_cbranch_scc1 S3_SKIP")
    poll_flags(A, "3", WS_F3, S_RB3, 0, 64)
    A("S3_SKIP:")
    A("s_barrier")
    stamp(A, 11)
    outproj(A)

def o_loads(A):
    for i in range(8):
        A("buffer_load_dwordx4 %s, v%d, s[%d:%d], s%d offen offset:%d%s" % (vr(V_ACT8 + 4 * i, 4), V_L16, S_WS, S_WS + 3, S_AO if i < 4 else S_WO0, (i & 3) * 1024, SC))

def tail_dp(A):
    attn_epilogue(A)
    A("s_lshl_b32 s%d, s%d, 1" % (S_T0, S_RB3))
    A("s_and_b32 s%d, s%d, 1" % (S_T1, S_W8))
    A("s_add_u32 s%d, s%d, s%d" % (S_T0, S_T0, S_T1))
    A("s_lshl_b32 s%d, s%d, 15" % (S_AO, S_T0))
    A("s_lshr_b32 s%d, s%d, 1" % (S_T1, S_W8))
    A("s_lshl_b32 s%d, s%d, 13" % (S_T1, S_T1))
    A("s_add_u32 s%d, s%d, s%d" % (S_AO, S_AO, S_T1))
    A("s_add_u32 s%d, s%d, 0x%x" % (S_AO, S_AO, WS_OF))
    A("s_add_u32 s%d, s%d, 4096" % (S_WO0, S_AO))
    o_loads(A)
    A("s_waitcnt vmcnt(9)")
    stamp(A, 10)
    A("s_barrier")
    for i in range(8):
        emit(A, w_reads(i, V_WF8 + 8 * i))
        if i % 3 == 2: A("s_waitcnt lgkmcnt(0)")
    A("v_sub_f32 v%d, 1.0, v%d" % (V_G + 1, V_G))
    for r in range(32):
        A("v_mul_f32 v%d, v%d, v%d" % (V_ACCB + r, V_G + 1, V_ACCB + r))
    A("s_waitcnt lgkmcnt(0)")
    A("s_barrier")
    A("s_mov_b32 s%d, 0" % S_SPIN)
    A("O_POLL:")
    A("s_waitcnt vmcnt(0)")
    T = 16
    for i in range(8):
        b = V_ACT8 + 4 * i
        A("v_max3_u32 v%d, v%d, v%d, v%d" % (T + i, b, b + 1, b + 2))
    for i in range(8):
        A("v_max_u32 v%d, v%d, v%d" % (T + i, T + i, V_ACT8 + 4 * i + 3))
    A("v_max3_u32 v%d, v%d, v%d, v%d" % (T, T, T + 1, T + 2))
    A("v_max3_u32 v%d, v%d, v%d, v%d" % (T + 3, T + 3, T + 4, T + 5))
    A("v_max3_u32 v%d, v%d, v%d, v%d" % (T, T, T + 6, T + 7))
    A("v_max_u32 v%d, v%d, v%d" % (T, T, T + 3))
    A("v_cmp_eq_u32 vcc, -1, v%d" % T)
    A("s_add_u32 s%d, s%d, 1" % (S_SPIN, S_SPIN))
    A("s_nop 3")
    A("s_cmp_eq_u64 vcc, 0")
    A("s_cbranch_scc1 O_OK")
    A("s_cmp_gt_u32 s%d, 400000" % S_SPIN)
    A("s_cbranch_scc1 O_OK")
    A("s_sleep %d" % Cfg.dpsleep)
    if Cfg.dplight:
        A("O_LIGHT:")
        A("v_lshrrev_b32 v%d, 3, v%d" % (T + 8, V_LANE))
        A("v_lshlrev_b32 v%d, 10, v%d" % (T + 8, T + 8))
        A("v_and_b32 v%d, 7, v%d" % (T + 9, V_LANE))
        A("v_lshlrev_b32 v%d, 7, v%d" % (T + 9, T + 9))
        A("v_add_u32 v%d, v%d, v%d" % (T + 8, T + 8, T + 9))
        A("buffer_load_dword v%d, v%d, s[%d:%d], s%d offen%s" % (T + 9, T + 8, S_WS, S_WS + 3, S_AO, SC))
        A("s_waitcnt vmcnt(0)")
        A("v_cmp_eq_u32 vcc, -1, v%d" % (T + 9))
        A("s_add_u32 s%d, s%d, 1" % (S_SPIN, S_SPIN))
        A("s_nop 3")
        A("s_cmp_eq_u64 vcc, 0")
        A("s_cbranch_scc1 O_RELOAD")
        A("s_cmp_gt_u32 s%d, 400000" % S_SPIN)
        A("s_cbranch_scc1 O_RELOAD")
        A("s_sleep %d" % Cfg.dpsleep)
        A("s_branch O_LIGHT")
        A("O_RELOAD:")
    o_loads(A)
    A("s_branch O_POLL")
    A("O_OK:")
    stamp(A, 11)
    for i in range(8):
        for u in range(2):
            d = vr(V_ACCA + 16 * u, 16)
            A(mfma(d, vr(V_WF8 + 8 * i + 4 * u, 4), vr(V_ACT8 + 4 * i, 4), "0" if i == 0 else d))

def attn_epilogue(A):
    t0 = V_T
    R = 16
    A("s_mul_i32 s%d, s%d, %d" % (S_T0, S_W8, OSLOT))
    A("v_add_u32 v%d, s%d, v%d" % (t0, S_T0, V_L16))
    A("v_lshlrev_b32 v%d, 2, v%d" % (t0 + 1, V_LANE))
    A("v_add_u32 v%d, s%d, v%d" % (t0 + 1, S_T0, t0 + 1))
    for kg in range(4):
        b = R + 12 * kg
        A("ds_read_b128 %s, v%d offset:%d" % (vr(b, 4), t0, kg * 8 * OSLOT))
        A("ds_read_b128 %s, v%d offset:%d" % (vr(b + 4, 4), t0, kg * 8 * OSLOT + 1024))
        A("ds_read_b32 v%d, v%d offset:%d" % (b + 8, t0 + 1, kg * 8 * OSLOT + 2048))
    A("s_lshl_b32 s%d, s%d, 3" % (S_T0, S_QB))
    A("s_add_u32 s%d, s%d, s%d" % (S_T0, S_T0, S_W8))
    A("s_lshl_b32 s%d, s%d, 5" % (S_T0, S_T0))
    A("s_add_u32 s%d, s%d, s%d" % (S_T0, S_T0, S_HEAD))
    A("s_lshl_b32 s%d, s%d, 10" % (S_T0, S_T0))
    A("s_add_u32 s%d, s%d, 0x%x" % (S_T0, S_T0, WS_OF))
    A("s_waitcnt lgkmcnt(0)")
    for r in range(9):
        A("v_add_f32 v%d, v%d, v%d" % (R + r, R + r, R + 12 + r))
        A("v_add_f32 v%d, v%d, v%d" % (R + 24 + r, R + 24 + r, R + 36 + r))
    for r in range(9):
        A("v_add_f32 v%d, v%d, v%d" % (R + r, R + r, R + 24 + r))
    if Cfg.zrows:
        A("v_mov_b32 v%d, v%d" % (R + 9, R + 8))
        A("s_nop 1")
        A("v_permlane32_swap_b32 v%d, v%d" % (R + 8, R + 9))
        A("s_nop 1")
    A("v_rcp_f32 v%d, v%d" % (R + 8, R + 8))
    A("s_nop 0")
    for r in range(8):
        A("v_mul_f32 v%d, v%d, v%d" % (R + r, R + r, R + 8))
    P = 64
    for p in range(4):
        A("v_cvt_pk_bf16_f32 v%d, v%d, v%d" % (P + p, R + 2 * p, R + 2 * p + 1))
    A("buffer_store_dwordx4 %s, v%d, s[%d:%d], s%d offen%s" % (vr(P, 4), V_L16, S_WS, S_WS + 3, S_T0, SC))

V_WF8 = 32
V_ACT8 = 96
V_ACCA = 160
V_G = 14
def outproj_prefetch(A):
    srd(A, S_WD, P_WO, 512 * 1024)
    A("s_lshl_b32 s%d, s%d, 16" % (S_WO0, S_W8))
    A("s_lshl_b32 s%d, s%d, 7" % (S_T1, S_CB3))
    A("s_add_u32 s%d, s%d, s%d" % (S_WO0, S_WO0, S_T1))
    A("s_add_u32 s%d, s%d, 8192" % (S_WO1, S_WO0))
    for i in range(4):
        A("s_add_u32 m0, s%d, %d" % (S_LB, i * 2048)); A("s_nop 0")
        A("buffer_load_dwordx4 v%d, s[%d:%d], s%d offen lds" % (V_DO, S_WD, S_WD + 3, S_WO0))
        A("s_add_u32 m0, s%d, %d" % (S_LB, i * 2048 + 1024)); A("s_add_u32 s%d, s%d, 16384" % (S_WO0, S_WO0))
        A("buffer_load_dwordx4 v%d, s[%d:%d], s%d offen lds" % (V_DO, S_WD, S_WD + 3, S_WO1))
        A("s_add_u32 s%d, s%d, 16384" % (S_WO1, S_WO1))
    A("s_and_b32 s%d, s%d, 1" % (S_T1, S_W8))
    A("s_lshl_b32 s%d, s%d, 13" % (S_T1, S_T1))
    A("v_subrev_u32 v%d, s%d, v%d" % (V_RA, S_T1, V_RA))
    A("v_subrev_u32 v%d, s%d, v%d" % (V_RA + 1, S_T1, V_RA + 1))

def outproj(A):
    A("s_lshl_b32 s%d, s%d, 1" % (S_T0, S_RB3))
    A("s_and_b32 s%d, s%d, 1" % (S_T1, S_W8))
    A("s_add_u32 s%d, s%d, s%d" % (S_T0, S_T0, S_T1))
    A("s_lshl_b32 s%d, s%d, 15" % (S_AO, S_T0))
    A("s_lshr_b32 s%d, s%d, 1" % (S_T1, S_W8))
    A("s_lshl_b32 s%d, s%d, 13" % (S_T1, S_T1))
    A("s_add_u32 s%d, s%d, s%d" % (S_AO, S_AO, S_T1))
    A("s_add_u32 s%d, s%d, 0x%x" % (S_AO, S_AO, WS_OF))
    for i in range(8):
        if i == 4: A("s_add_u32 s%d, s%d, 4096" % (S_AO, S_AO))
        A("buffer_load_dwordx4 %s, v%d, s[%d:%d], s%d offen offset:%d%s" % (vr(V_ACT8 + 4 * i, 4), V_L16, S_WS, S_WS + 3, S_AO, (i & 3) * 1024, SC))
    for i in range(8):
        A("s_waitcnt vmcnt(%d)" % (7 - i))
        for u in range(2):
            d = vr(V_ACCA + 16 * u, 16)
            A(mfma(d, vr(V_WF8 + 8 * i + 4 * u, 4), vr(V_ACT8 + 4 * i, 4), "0" if i == 0 else d))

def final(A):
    t0, t1 = V_T, V_T + 1
    A("s_lshl_b32 s%d, s%d, 13" % (S_T0, S_W8))
    A("s_nop 7")
    A("s_nop 3")
    VP = V_ACCA if Cfg.bdown else V_ACCB
    for r in range(32):
        if Cfg.bdown: A("v_mul_f32 v%d, v%d, v%d" % (V_ACCA + r, V_G, V_ACCA + r))
        else: A("v_fmac_f32 v%d, v%d, v%d" % (V_ACCB + r, V_G, V_ACCA + r))
    A("s_lshl_b32 s%d, s%d, 13" % (S_T0, S_W8))
    A("s_add_u32 s%d, s%d, %d" % (S_T0, S_T0, L_W))
    A("v_add_u32 v%d, s%d, v%d" % (t0, S_T0, V_L16))
    for u in range(2):
        for q in range(4):
            A("ds_write_b128 v%d, %s offset:%d" % (t0, vr(VP + 16 * u + 4 * q, 4), u * 4096 + q * 1024))
    A("s_waitcnt lgkmcnt(0)")
    A("s_barrier")
    A("s_and_b32 s%d, s%d, 1" % (S_T0, S_W8))
    A("s_lshl_b32 s%d, s%d, 13" % (S_T0, S_T0))
    A("s_lshr_b32 s%d, s%d, 1" % (S_T1, S_W8))
    A("s_and_b32 s%d, s%d, 1" % (S_T1, S_T1))
    A("s_lshl_b32 s%d, s%d, 12" % (S_T2, S_T1))
    A("s_add_u32 s%d, s%d, s%d" % (S_T0, S_T0, S_T2))
    A("s_lshr_b32 s%d, s%d, 2" % (S_T2, S_W8))
    A("s_lshl_b32 s%d, s%d, 11" % (S_T3, S_T2))
    A("s_add_u32 s%d, s%d, s%d" % (S_T0, S_T0, S_T3))
    A("s_add_u32 s%d, s%d, %d" % (S_T0, S_T0, L_W))
    A("v_add_u32 v%d, s%d, v%d" % (t0, S_T0, V_L16))
    R = 32
    for kq in range(4):
        for q in range(2):
            A("ds_read_b128 %s, v%d offset:%d" % (vr(R + 8 * kq + 4 * q, 4), t0, kq * 16384 + q * 1024))
    A("v_and_b32 v%d, 31, v%d" % (t1, V_LANE))
    A("v_lshlrev_b32 v%d, 10, v%d" % (t1, t1))
    A("v_lshrrev_b32 v%d, 5, v%d" % (t0 + 2, V_LANE))
    A("v_lshlrev_b32 v%d, 4, v%d" % (t0 + 2, t0 + 2))
    A("v_add_u32 v%d, v%d, v%d" % (t1, t1, t0 + 2))
    A("s_lshl_b32 s%d, s%d, 16" % (S_T0, S_RB3))
    A("s_and_b32 s%d, s%d, 1" % (S_T3, S_W8))
    A("s_lshl_b32 s%d, s%d, 15" % (S_T3, S_T3))
    A("s_add_u32 s%d, s%d, s%d" % (S_T0, S_T0, S_T3))
    A("s_lshl_b32 s%d, s%d, 7" % (S_T3, S_CB3))
    A("s_add_u32 s%d, s%d, s%d" % (S_T0, S_T0, S_T3))
    A("s_lshl_b32 s%d, s%d, 6" % (S_T1, S_T1))
    A("s_add_u32 s%d, s%d, s%d" % (S_T0, S_T0, S_T1))
    A("s_lshl_b32 s%d, s%d, 5" % (S_T2, S_T2))
    A("s_add_u32 s%d, s%d, s%d" % (S_T0, S_T0, S_T2))
    A("s_waitcnt lgkmcnt(0)")
    for r in range(8):
        A("v_add_f32 v%d, v%d, v%d" % (R + r, R + r, R + 8 + r))
        A("v_add_f32 v%d, v%d, v%d" % (R + 16 + r, R + 16 + r, R + 24 + r))
    for r in range(8):
        A("v_add_f32 v%d, v%d, v%d" % (R + r, R + r, R + 16 + r))
    if Cfg.bdown:
        for r in range(8):
            A("v_add_f32 v%d, v%d, v%d" % (R + r, R + r, V_B8 + r))
    P = 64
    for p in range(4):
        A("v_cvt_pk_bf16_f32 v%d, v%d, v%d" % (P + p, R + 2 * p, R + 2 * p + 1))
    A("s_nop 1")
    A("v_permlane32_swap_b32 v%d, v%d" % (P, P + 2))
    A("v_permlane32_swap_b32 v%d, v%d" % (P + 1, P + 3))
    A("buffer_store_dwordx4 %s, v%d, s[%d:%d], s%d offen%s" % (vr(P, 4), t1, S_OUT, S_OUT + 3, S_T0, Cfg.outmod))

def nonce_check(A, tag):
    A("v_readfirstlane_b32 s%d, v%d" % (S_NONCE, V_NONCE))
    A("s_nop 3")
    A("s_cmp_lg_u32 s%d, 0" % S_NONCE)
    A("s_cbranch_scc1 NONCE_OK%s" % tag)
    get_nonce(A, tag)
    A("NONCE_OK%s:" % tag)

def zero_ob(A):
    t0 = V_T
    for r in range(4): A("v_mov_b32 v%d, 0" % (32 + r))
    A("s_mul_i32 s%d, s%d, 4608" % (S_T0, S_WAVE))
    A("v_add_u32 v%d, s%d, v%d" % (t0, S_T0, V_L16))
    for k in range(4):
        A("ds_write_b128 v%d, %s offset:%d" % (t0, vr(32, 4), L_OB + k * 1024))
    A("s_mov_b64 exec, 0xffffffff")
    A("ds_write_b128 v%d, %s offset:%d" % (t0, vr(32, 4), L_OB + 4096))
    A("s_mov_b64 exec, -1")
    A("s_waitcnt lgkmcnt(0)")

def attn_setup_common(A):
    slow_prepass(A)
    for r in range(16): A("v_mov_b32 v%d, 0" % (V_S[1] + r))
    for r in range(8): A("v_mov_b32 v%d, 0" % (V_P + r))
    Z = V_QN
    for r in range(4): A("v_mov_b32 v%d, 0" % (Z + r))
    A("s_nop 1")
    if not Cfg.bdown:
        A(mfma(vr(V_ACCB, 16), vr(Z, 4), vr(Z, 4), "0"))
        A(mfma(vr(V_ACCB + 16, 16), vr(Z, 4), vr(Z, 4), "0"))
    A(mfma(vr(V_O, 16), vr(Z, 4), vr(Z, 4), "0"))
    A(mfma(vr(V_S[0], 16), vr(V_K, 4), vr(V_Q, 4), vr(V_C, 16)))
    A("s_nop 15")

def build():
    A = BarAsm()
    prologue(A)
    if "sv" in Cfg.exp:
        A("s_mov_b32 s%d, 0" % S_SVI)
        A("v_mov_b32 v13, 0")
        SV.reg = 13
        stampv(A)
        A.on = True
    rstamp(A, S_R0)
    stamp(A, 0)
    if "miss" in Cfg.exp:
        A("s_mov_b32 s%d, 0" % (S_ST + 2 + 11)); A("s_mov_b32 s%d, 0" % (S_ST + 2 + 12))
    A("s_cmp_ge_u32 s%d, 4" % S_W8)
    A("s_cbranch_scc1 K_B")
    role_a(A)
    A("s_branch K_ATT")
    A("K_B:")
    role_b(A)
    A("K_ATT:")
    A.on = False
    SV.reg = 40
    stampv(A)
    stampv_flush(A)
    stamp(A, 7)
    attn_setup_common(A)
    stamp(A, 8)
    B = Buf()
    attn_all(B)
    Track().resolve(A, B.lines)
    A("s_nop 0")
    A("v_cvt_pk_bf16_f32 v%d, v%d, v%d" % (V_P + 7, V_S[1] + 14, V_S[1] + 15))
    if Cfg.t2 or Cfg.dp2:
        A("s_waitcnt lgkmcnt(0)")
        A("s_nop 0")
        A(mfma(vr(V_O, 16), ar(A_V + 4 * 15, 4), vr(V_P + 4, 4), vr(V_O, 16)))
        A("s_and_b32 s%d, s%d, 1" % (S_T1, S_W8))
        A("s_lshl_b32 s%d, s%d, 13" % (S_T1, S_T1))
        A("v_subrev_u32 v%d, s%d, v%d" % (V_RA, S_T1, V_RA))
        A("v_subrev_u32 v%d, s%d, v%d" % (V_RA + 1, S_T1, V_RA + 1))
        A("s_nop 7")
    else:
        A("s_waitcnt vmcnt(0) lgkmcnt(0)")
        A("s_nop 0")
        A(mfma(vr(V_O, 16), ar(A_V + 4 * 15, 4), vr(V_P + 4, 4), vr(V_O, 16)))
        outproj_prefetch(A)
    emit(A, flush_lines(3))
    A("s_waitcnt lgkmcnt(0)")
    stamp(A, 9)
    A("s_barrier")
    if Cfg.dp:
        tail_dp(A)
    elif Cfg.bdown:
        tail_bd(A)
    elif Cfg.t2:
        tail_t2(A)
    else:
        attn_epilogue(A)
        A("s_waitcnt vmcnt(0)")
        A("s_lshl_b32 s%d, s%d, 2" % (S_T0, S_QB))
        A("s_lshr_b32 s%d, s%d, 1" % (S_T1, S_W8))
        A("s_add_u32 s%d, s%d, s%d" % (S_T0, S_T0, S_T1))
        A("s_lshl_b32 s%d, s%d, 8" % (S_T0, S_T0))
        A("s_lshl_b32 s%d, s%d, 1" % (S_T1, S_HEAD))
        A("s_and_b32 s%d, s%d, 1" % (S_T2, S_W8))
        A("s_add_u32 s%d, s%d, s%d" % (S_T1, S_T1, S_T2))
        A("s_lshl_b32 s%d, s%d, 2" % (S_T1, S_T1))
        A("s_add_u32 s%d, s%d, s%d" % (S_T0, S_T0, S_T1))
        A("s_add_u32 s%d, s%d, 0x%x" % (S_T0, S_T0, WS_F3))
        store_flag(A, S_T0)
        stamp(A, 10)
        A("s_barrier")
        poll_flags(A, "2g", WS_F2, S_RB3, 0)
        A("v_and_b32 v%d, 31, v%d" % (V_T, V_LANE))
        A("v_lshlrev_b32 v%d, 2, v%d" % (V_T, V_T))
        A("s_lshl_b32 s%d, s%d, 1" % (S_T0, S_RB3))
        A("s_and_b32 s%d, s%d, 1" % (S_T1, S_W8))
        A("s_add_u32 s%d, s%d, s%d" % (S_T0, S_T0, S_T1))
        A("s_lshl_b32 s%d, s%d, 7" % (S_T0, S_T0))
        A("s_add_u32 s%d, s%d, 0x%x" % (S_T0, S_T0, WS_G))
        A("buffer_load_dword v%d, v%d, s[%d:%d], s%d offen%s" % (V_G, V_T, S_WS, S_WS + 3, S_T0, SC))
        for i in range(8):
            emit(A, w_reads(i, V_WF8 + 8 * i))
            if i % 3 == 2: A("s_waitcnt lgkmcnt(0)")
        A("s_waitcnt lgkmcnt(0)")
        A("s_waitcnt vmcnt(0)")
        A("v_sub_f32 v%d, 1.0, v%d" % (V_G + 1, V_G))
        for r in range(32):
            A("v_mul_f32 v%d, v%d, v%d" % (V_ACCB + r, V_G + 1, V_ACCB + r))
        A("s_cmp_lg_u32 s%d, 0" % S_W8)
        A("s_cbranch_scc1 S3_SKIP")
        poll_flags(A, "3", WS_F3, S_RB3, 0, 64)
        A("S3_SKIP:")
        A("s_barrier")
        stamp(A, 11)
        outproj(A)
    final(A)
    stamp(A, 12)
    rstamp(A, S_R1)
    stamp_flush(A, 13)
    if not Cfg.noendwait: A("s_waitcnt vmcnt(0)")
    A("K_END:")
    A("s_endpgm")
    s2_spin(A)
    if Cfg.dp: fa_spin(A)
    if Cfg.t2: fg_spin(A)
    return A.text()

def write(fn, stamps=False):
    Cfg.stamps = stamps
    body = build()
    t, d = kernel_text(NAME + "_kernel", body, vgpr=192, agpr=64)
    t += "K_CODE_END:\n.set CODE_BYTES, K_CODE_END - %s_kernel\n" % NAME
    txt = file_text([(None, 256, 512, 163840)], [(t, d)])
    open(fn, "w").write(txt)
    return txt

def variant(name, stamps=False, **kw):
    old = {k: getattr(Cfg, k) for k in kw}
    for k, v_ in kw.items(): setattr(Cfg, k, v_)
    txt = write(name, stamps)
    for k, v_ in old.items(): setattr(Cfg, k, v_)
    return txt

if __name__ == "__main__":
    import hazard, sys
    if len(sys.argv) > 1:
        for e in sys.argv[1:]:
            Cfg.exp = set(e.split("+"))
            Cfg.prio_b = 1 if "pb1" in Cfg.exp else 0
            write("mk10_x_%s.s" % e, True)
        sys.exit(0)
    for st in (False, True):
        txt = write("mk10_st.s" if st else "mk10.s", st)
        hazard.check(txt)
```

```python
from gen import *
import struct

WS_QF = 0x0000000
WS_KF = 0x0200000
WS_VF = 0x0400000
WS_OF = 0x0600000
WS_HF = 0x0800000
HF_BYTES = 64 * 86 * 1024
WS_NQ = 0x0E00000
WS_NK = 0x0E02000
WS_G  = 0x0E04000
WS_F1 = 0x0E10000
WS_F2 = 0x0E11000
WS_F3 = 0x0E13000
WS_ST = 0x1700000
WS_SIZE = 0x1800000
QSCALE = 0.25 * 1.4426950408889634
def f32bits(x): return struct.unpack("<I", struct.pack("<f", x))[0]

class Cfg:
    stamps = False
    exp = set()
    prio_b = 1
    prio_t = 28
    dp = False
    p2prio = 0
    lateflag = False
    slg = 24
    sother = 8
    s3sleep = 2
    s2sleep = 4
    tlbw = False
    tlb = 0
    ord2 = False
    gfirst = False
    wmod1 = ''
    wmod2 = ''
    xmod = ''
    n22 = True
    qalt = True
    bt5 = None
    flagfirst = False
    bdown = False
    bd_depth = 6
    bd_prio = 1
    coop = 0
    noendwait = True
    outmod = ''
    dp2 = False
    dpsleep = 1
    dplight = False
    t2 = True
    t2touch = True
    m1b = 0.3
    map2 = False
    btouch = False
    ptouch = None
    zrows = True
    ct0 = True
    wtouch = False
    trans = 'm1'
    bz = True
    early = 13
SC = " sc1"

S_AX, S_B1, S_B2, S_B3, S_WS = 4, 8, 12, 16, 20
S_W8, S_WAVE = 24, 25
S_RB1, S_CG1, S_KC1, S_XB1, S_WB1, S_WX1 = 26, 27, 28, 29, 30, 31
S_RB2, S_CG2, S_KC2, S_XB2, S_WB2, S_WX2, S_WW2 = 32, 33, 34, 35, 36, 37, 38
S_I, S_SLI, S_SLR = 39, 40, 41
S_GX, S_GW0, S_GW1, S_GM, S_GM2 = 42, 43, 44, 45, 46
S_T0, S_T1, S_T2, S_T3 = 48, 49, 50, 51
S_C = 52
S_NONCE = 56
S_HEAD, S_QB, S_QOFF, S_SLOW = 57, 58, 59, 60
S_SPIN = 61
S_EXM = 62
S_PTR = 64
P_AX, P_WQKV, P_WO, P_BX, P_WG, P_WU, P_WD, P_GW, P_OUT, P_DBG, P_WS = [S_PTR + 2 * i for i in range(11)]
S_ST = 86
S_R0, S_R1 = 39 + 62, 3
S_RB3, S_CB3, S_LB, S_AO, S_WO0, S_WO1, S_FA = 70, 71, 66, 72, 73, 74, 75
S_HF = 8

def srd(A, d, p, nbytes, add=0):
    if add:
        A("s_add_u32 s%d, s%d, 0x%x" % (d, p, add))
        A("s_addc_u32 s%d, s%d, 0" % (d + 1, p + 1))
    else:
        A("s_mov_b32 s%d, s%d" % (d, p))
        A("s_mov_b32 s%d, s%d" % (d + 1, p + 1))
    A("s_mov_b32 s%d, 0x%x" % (d + 2, nbytes))
    A("s_mov_b32 s%d, 0x00020000" % (d + 3))

def stamp(A, idx):
    if not Cfg.stamps: return
    if "miss" in Cfg.exp and idx in (11, 12): return
    A("s_memtime s[%d:%d]" % (S_ST, S_ST + 1))
    A("s_waitcnt lgkmcnt(0)")
    A("s_mov_b32 s%d, s%d" % (S_ST + 2 + idx, S_ST))
V_STV = 10
class SV: reg = 10
def stampv(A, idx=None):
    if "sv" not in Cfg.exp: return
    A("s_memtime s[%d:%d]" % (S_ST, S_ST + 1))
    A("s_waitcnt lgkmcnt(0)")
    if idx is None:
        A("v_cmp_eq_u32 vcc, s%d, v%d" % (S_SVI, V_LANE))
        A("v_mov_b32 v%d, s%d" % (V_T + 1, S_ST))
        A("s_add_u32 s%d, s%d, 1" % (S_SVI, S_SVI))
        A("s_nop 1")
        A("v_cndmask_b32 v%d, v%d, v%d, vcc" % (SV.reg, SV.reg, V_T + 1))
def stampv_flush(A):
    if "sv" not in Cfg.exp: return
    A("s_lshl_b32 s%d, s2, 3" % (S_ST + 1))
    A("s_add_u32 s%d, s%d, s%d" % (S_ST + 1, S_ST + 1, S_W8))
    A("s_lshl_b32 s%d, s%d, 8" % (S_ST + 1, S_ST + 1))
    A("s_add_u32 s%d, s%d, 0x%x" % (S_ST + 1, S_ST + 1, WS_ST + 0x80000))
    A("v_lshlrev_b32 v%d, 2, v%d" % (V_T, V_LANE))
    A("buffer_store_dword v%d, v%d, s[%d:%d], s%d offen" % (40, V_T, S_WS, S_WS + 3, S_ST + 1))
S_SVI = 100
def rstamp(A, sreg):
    if not Cfg.stamps: return
    A("s_memrealtime s[%d:%d]" % (S_ST, S_ST + 1))
    A("s_waitcnt lgkmcnt(0)")
    A("s_mov_b32 s%d, s%d" % (sreg, S_ST))
def stamp_flush(A, n):
    if not Cfg.stamps: return
    A("s_lshl_b32 s%d, s2, 3" % (S_ST + 1))
    A("s_add_u32 s%d, s%d, s%d" % (S_ST + 1, S_ST + 1, S_W8))
    A("s_lshl_b32 s%d, s%d, 7" % (S_ST + 1, S_ST + 1))
    A("s_add_u32 s%d, s%d, 0x%x" % (S_ST + 1, S_ST + 1, WS_ST))
    A("v_mov_b32 v11, 0")
    A("s_mov_b64 exec, 1")
    for i in range(n):
        A("v_mov_b32 v10, s%d" % (S_ST + 2 + i))
        A("buffer_store_dword v10, v11, s[%d:%d], s%d offen offset:%d" % (S_WS, S_WS + 3, S_ST + 1, 4 * i))
    A("v_mov_b32 v10, s%d" % S_R0)
    A("buffer_store_dword v10, v11, s[%d:%d], s%d offen offset:%d" % (S_WS, S_WS + 3, S_ST + 1, 4 * 14))
    A("v_mov_b32 v10, s%d" % S_R1)
    A("buffer_store_dword v10, v11, s[%d:%d], s%d offen offset:%d" % (S_WS, S_WS + 3, S_ST + 1, 4 * 15))
    A("s_mov_b64 exec, -1")

def emit(A, lines):
    for l in lines: A(l)
def mfma(d, a_, b_, c):
    return "v_mfma_f32_32x32x16_bf16 %s, %s, %s, %s" % (d, a_, b_, c)
def loop(A, name, count, body):
    A("s_mov_b32 s%d, 0" % S_I)
    A(name + ":")
    body()
    A("s_add_u32 s%d, s%d, 1" % (S_I, S_I))
    A("s_cmp_lt_u32 s%d, %d" % (S_I, count))
    A("s_cbranch_scc1 " + name)
def split(lines, n):
    return [lines[(len(lines) * i) // n:(len(lines) * (i + 1)) // n] for i in range(n)]
class BarAsm(Asm):
    on = False
    def __call__(self, txt):
        Asm.__call__(self, txt)
        if self.on and txt.strip() == "s_barrier":
            self.on = False
            stampv(self)
            self.on = True
class Buf:
    def __init__(self): self.lines = []
    def __call__(self, t):
        for l in t.split("\n"):
            if l.strip(): self.lines.append(l.strip())
    def comment(self, t): pass

V_LANE, V_L16 = 1, 2
V_T = 3
V_XO1, V_WO1 = 14, 16
V_XO2, V_WO2 = 17, 21
V_XA, V_WA = 24, 28
V_NONCE = 29
V_TCH = 30
V_F = 32
V_ACC1 = 96
V_ACC2 = 96
SLOT = 40960
NSLOT = 4
NTOUCH = 3
class RA:
    XR, WR = 144, 148

def x_dma_offsets(A, dst, n_instr, rowbase_wave):
    t0, t1, t2 = V_T, V_T + 1, V_T + 2
    for n in range(n_instr):
        A("v_lshrrev_b32 v%d, 3, v%d" % (t0, V_LANE))
        A("s_mul_i32 s%d, s%d, %d" % (S_T0, S_WAVE, rowbase_wave))
        A("s_add_u32 s%d, s%d, %d" % (S_T0, S_T0, 8 * n))
        A("v_add_u32 v%d, s%d, v%d" % (t0, S_T0, t0))
        A("v_lshrrev_b32 v%d, 1, v%d" % (t1, t0))
        A("v_and_b32 v%d, 7, v%d" % (t1, t1))
        A("v_and_b32 v%d, 7, v%d" % (t2, V_LANE))
        A("v_xor_b32 v%d, v%d, v%d" % (t1, t1, t2))
        A("v_lshlrev_b32 v%d, 4, v%d" % (t1, t1))
        A("v_lshlrev_b32 v%d, 10, v%d" % (t0, t0))
        A("v_add_u32 v%d, v%d, v%d" % (dst + n, t0, t1))

def x_read_addrs(A, s_rowtile):
    t0, t1, t2 = V_T, V_T + 1, V_T + 2
    A("v_and_b32 v%d, 31, v%d" % (t0, V_LANE))
    A("s_lshl_b32 s%d, s%d, 5" % (S_T0, s_rowtile))
    A("v_add_u32 v%d, s%d, v%d" % (t0, S_T0, t0))
    A("v_lshrrev_b32 v%d, 1, v%d" % (t1, t0))
    A("v_and_b32 v%d, 7, v%d" % (t1, t1))
    A("v_lshrrev_b32 v%d, 5, v%d" % (t2, V_LANE))
    A("v_xor_b32 v%d, v%d, v%d" % (t1, t1, t2))
    A("v_lshlrev_b32 v%d, 7, v%d" % (t0, t0))
    for s_ in range(4):
        A("v_xor_b32 v%d, %d, v%d" % (t2, 2 * s_, t1))
        A("v_lshlrev_b32 v%d, 4, v%d" % (t2, t2))
        A("v_add_u32 v%d, v%d, v%d" % (V_XA + s_, t0, t2))

def adv_slot(A, sreg):
    A("s_add_u32 s%d, s%d, %d" % (sreg, sreg, SLOT))
    A("s_cmp_eq_u32 s%d, %d" % (sreg, NSLOT * SLOT))
    A("s_cselect_b32 s%d, 0, s%d" % (sreg, sreg))

def dma_lines(m0base, m0add, voff, srdn, soff, imm=0):
    mod = {S_AX: Cfg.xmod, S_B1: Cfg.wmod1, S_B2: Cfg.wmod2, S_B3: Cfg.wmod2}.get(srdn, "")
    return ["s_add_u32 m0, s%d, %d" % (m0base, m0add), "s_nop 0",
            "buffer_load_dwordx4 v%d, s[%d:%d], s%d offen%s%s lds" % (voff, srdn, srdn + 3, soff, (" offset:%d" % imm) if imm else "", mod)]

def issue_group_merged(A, typ, lines):
    B = Buf(); issue_group(B, typ)
    blocks, cur = [], []
    for l in B.lines:
        cur.append(l)
        if l.startswith("buffer_load"): blocks.append(cur); cur = []
    parts = split(lines, len(blocks))
    for b, p in zip(blocks, parts):
        emit(A, b); emit(A, p)
    emit(A, cur)

def issue_group(A, typ):
    if typ == 1:
        emit(A, ["s_lshl_b32 s%d, s%d, 7" % (S_GX, S_KC1), "s_add_u32 s%d, s%d, s%d" % (S_GX, S_GX, S_XB1),
              "s_mul_i32 s%d, s%d, %d" % (S_GW0, S_KC1, 64 * 3072), "s_add_u32 s%d, s%d, s%d" % (S_GW0, S_GW0, S_WB1),
              "s_add_u32 s%d, s%d, %d" % (S_GW1, S_GW0, 8 * 3072),
              "s_add_u32 s%d, s%d, s%d" % (S_GM, S_SLI, S_WX1),
              "s_add_u32 s%d, s%d, 1" % (S_KC1, S_KC1), "s_and_b32 s%d, s%d, 7" % (S_KC1, S_KC1)])
        for n in range(2): emit(A, dma_lines(S_GM, n * 1024, V_XO1 + n, S_AX, S_GX))
        for t in range(3):
            for n in range(2):
                emit(A, dma_lines(S_GM, 8192 + t * 8192 + n * 1024 - t * 1024, V_WO1, S_B1, S_GW0 if n == 0 else S_GW1, t * 1024))
    else:
        emit(A, ["s_lshl_b32 s%d, s%d, 7" % (S_GX, S_KC2), "s_add_u32 s%d, s%d, s%d" % (S_GX, S_GX, S_XB2),
              "s_mul_i32 s%d, s%d, %d" % (S_GW0, S_KC2, 64 * 2752), "s_add_u32 s%d, s%d, s%d" % (S_GW0, S_GW0, S_WB2),
              "s_add_u32 s%d, s%d, s%d" % (S_GM, S_SLI, S_WX2),
              "s_add_u32 s%d, s%d, s%d" % (S_GM2, S_SLI, S_WW2),
              "s_add_u32 s%d, s%d, 1" % (S_KC2, S_KC2), "s_and_b32 s%d, s%d, 7" % (S_KC2, S_KC2)])
        for n in range(4): emit(A, dma_lines(S_GM, n * 1024, V_XO2 + n, S_AX, S_GX))
        for mat in range(2):
            for e in range(3):
                emit(A, dma_lines(S_GM2, mat * 12288 + e * 1024, V_WO2 + e, S_B2 if mat == 0 else S_B3, S_GW0))
    adv_slot(A, S_SLI)

def set_read_addrs(A):
    for s_ in range(4):
        A("v_add_u32 v%d, s%d, v%d" % (RA.XR + s_, S_SLR, V_XA + s_))
    A("v_add_u32 v%d, s%d, v%d" % (RA.WR, S_SLR, V_WA))

def interleave(A, ms, rs):
    n = len(ms); k = 0
    for i, m in enumerate(ms):
        A(m)
        cnt = (len(rs) * (i + 1)) // n - (len(rs) * i) // n
        for _ in range(cnt):
            A(rs[k]); k += 1

def p1_read_list(s_, F):
    L = ["ds_read_b128 %s, v%d" % (vr(F, 4), RA.XR + s_)]
    for t in range(3):
        for q in range(2):
            L.append("ds_read_b64_tr_b16 %s, v%d offset:%d" % (vr(F + 4 + 4 * t + 2 * q, 2), RA.WR, t * 8192 + s_ * 2048 + q * 512))
    return L
A_ACC1 = 0
def p1_mfma_list(F):
    return [mfma(ar(A_ACC1, 16), vr(F + 4, 4), vr(F, 4), ar(A_ACC1, 16)),
            mfma(ar(A_ACC1 + 16, 16), vr(F + 8, 4), vr(F, 4), ar(A_ACC1 + 16, 16)),
            mfma(ar(A_ACC1 + 32, 16), vr(F, 4), vr(F + 12, 4), ar(A_ACC1 + 32, 16))]
def p1_chunk(A):
    for s_ in range(4):
        if Cfg.ptouch and s_ == 0: w_touch(A, 0, "g")
        if Cfg.ptouch and s_ == 2: w_touch(A, 1, "u")
        if s_ == 2:
            A("s_barrier")
            adv_slot(A, S_SLR)
            set_read_addrs(A)
        A("s_waitcnt lgkmcnt(7)")
        interleave(A, p1_mfma_list(V_F + 16 * s_), p1_read_list((s_ + 2) & 3, V_F + 16 * ((s_ + 2) & 3)))

def setup_ids(A):
    A("s_and_b32 s%d, s2, 7" % S_T0)
    A("s_lshr_b32 s%d, s2, 3" % S_T1)
    if not Cfg.map2:
        A("s_lshr_b32 s%d, s%d, 1" % (S_RB1, S_T0))
        A("s_lshl_b32 s%d, s%d, 3" % (S_RB1, S_RB1))
        A("s_and_b32 s%d, s%d, 7" % (S_T2, S_T1))
        A("s_add_u32 s%d, s%d, s%d" % (S_RB1, S_RB1, S_T2))
        A("s_and_b32 s%d, s%d, 1" % (S_CG1, S_T0))
        A("s_lshl_b32 s%d, s%d, 2" % (S_CG1, S_CG1))
        A("s_lshr_b32 s%d, s%d, 3" % (S_T2, S_T1))
        A("s_add_u32 s%d, s%d, s%d" % (S_CG1, S_CG1, S_T2))
        A("s_lshl_b32 s%d, s%d, 1" % (S_T2, S_T2))
        A("s_add_u32 s%d, s%d, s%d" % (S_KC1, S_T1, S_T2))
        A("s_and_b32 s%d, s%d, 7" % (S_KC1, S_KC1))
    else:
        A("s_lshr_b32 s%d, s%d, 2" % (S_RB1, S_T0))
        A("s_lshl_b32 s%d, s%d, 4" % (S_RB1, S_RB1))
        A("s_and_b32 s%d, s%d, 15" % (S_T2, S_T1))
        A("s_add_u32 s%d, s%d, s%d" % (S_RB1, S_RB1, S_T2))
        A("s_and_b32 s%d, s%d, 3" % (S_CG1, S_T0))
        A("s_lshl_b32 s%d, s%d, 1" % (S_CG1, S_CG1))
        A("s_lshr_b32 s%d, s%d, 4" % (S_T2, S_T1))
        A("s_add_u32 s%d, s%d, s%d" % (S_CG1, S_CG1, S_T2))
        A("s_lshl_b32 s%d, s%d, 2" % (S_T2, S_T2))
        A("s_add_u32 s%d, s%d, s%d" % (S_KC1, S_T1, S_T2))
        A("s_and_b32 s%d, s%d, 7" % (S_KC1, S_KC1))
    A("s_lshl_b32 s%d, s%d, 16" % (S_XB1, S_RB1))
    A("s_lshl_b32 s%d, s%d, 7" % (S_WB1, S_CG1))
    A("s_lshl_b32 s%d, s%d, 11" % (S_WX1, S_WAVE))
    if not Cfg.map2:
        A("s_lshr_b32 s%d, s%d, 1" % (S_RB2, S_T0))
        A("s_lshl_b32 s%d, s%d, 2" % (S_RB2, S_RB2))
        A("s_and_b32 s%d, s%d, 3" % (S_T2, S_T1))
        A("s_add_u32 s%d, s%d, s%d" % (S_RB2, S_RB2, S_T2))
        A("s_and_b32 s%d, s%d, 1" % (S_CG2, S_T0))
        A("s_lshl_b32 s%d, s%d, 3" % (S_CG2, S_CG2))
        A("s_lshr_b32 s%d, s%d, 2" % (S_T3, S_T1))
        A("s_add_u32 s%d, s%d, s%d" % (S_CG2, S_CG2, S_T3))
        A("s_lshl_b32 s%d, s%d, 1" % (S_T2, S_T2))
        A("s_add_u32 s%d, s%d, s%d" % (S_KC2, S_T3, S_T2))
        A("s_and_b32 s%d, s%d, 7" % (S_KC2, S_KC2))
    else:
        A("s_lshr_b32 s%d, s%d, 2" % (S_RB2, S_T0))
        A("s_lshl_b32 s%d, s%d, 3" % (S_RB2, S_RB2))
        A("s_and_b32 s%d, s%d, 7" % (S_T2, S_T1))
        A("s_add_u32 s%d, s%d, s%d" % (S_RB2, S_RB2, S_T2))
        A("s_and_b32 s%d, s%d, 3" % (S_CG2, S_T0))
        A("s_lshl_b32 s%d, s%d, 2" % (S_CG2, S_CG2))
        A("s_lshr_b32 s%d, s%d, 3" % (S_T3, S_T1))
        A("s_add_u32 s%d, s%d, s%d" % (S_CG2, S_CG2, S_T3))
        A("s_lshl_b32 s%d, s%d, 1" % (S_T3, S_T3))
        A("s_add_u32 s%d, s%d, s%d" % (S_KC2, S_T2, S_T3))
        A("s_and_b32 s%d, s%d, 7" % (S_KC2, S_KC2))
    A("s_lshl_b32 s%d, s%d, 17" % (S_XB2, S_RB2))
    A("s_mul_i32 s%d, s%d, 192" % (S_WB2, S_CG2))
    A("s_lshl_b32 s%d, s%d, 12" % (S_WX2, S_WAVE))
    A("s_mul_i32 s%d, s%d, 3072" % (S_WW2, S_WAVE))
    A("s_add_u32 s%d, s%d, 16384" % (S_WW2, S_WW2))
    A("s_lshl_b32 s%d, s%d, 2" % (S_HEAD, S_T0))
    A("s_and_b32 s%d, s%d, 3" % (S_T2, S_T1))
    A("s_add_u32 s%d, s%d, s%d" % (S_HEAD, S_HEAD, S_T2))
    A("s_lshr_b32 s%d, s%d, 2" % (S_QB, S_T1))

def w_read_base(A, rowbytes, swz):
    t0, t1 = V_T, V_T + 1
    A("v_and_b32 v%d, 15, v%d" % (t0, V_LANE))
    A("v_lshrrev_b32 v%d, 2, v%d" % (t0, t0))
    A("v_lshrrev_b32 v%d, 5, v%d" % (t1, V_LANE))
    A("v_lshlrev_b32 v%d, 3, v%d" % (t1, t1))
    A("v_add_u32 v%d, v%d, v%d" % (t1, t1, t0))
    A("v_mul_u32_u24 v%d, %d, v%d" % (t1, rowbytes, t1))
    if swz:
        A("v_lshrrev_b32 v%d, 1, v%d" % (t0, t0))
        A("s_and_b32 s%d, s%d, 1" % (S_T2, S_WAVE))
        A("v_xor_b32 v%d, s%d, v%d" % (t0, S_T2, t0))
        A("v_lshlrev_b32 v%d, 6, v%d" % (t0, t0))
        A("v_add_u32 v%d, v%d, v%d" % (t1, t1, t0))
    A("v_lshrrev_b32 v%d, 4, v%d" % (t0, V_LANE))
    A("v_and_b32 v%d, 1, v%d" % (t0, t0))
    A("v_lshlrev_b32 v%d, 5, v%d" % (t0, t0))
    A("v_add_u32 v%d, v%d, v%d" % (t1, t1, t0))
    A("v_and_b32 v%d, 3, v%d" % (t0, V_LANE))
    A("v_lshlrev_b32 v%d, 3, v%d" % (t0, t0))
    A("v_add_u32 v%d, v%d, v%d" % (t1, t1, t0))
    if swz: A("v_add_u32 v%d, 8192, v%d" % (V_WA, t1))
    else: A("v_mov_b32 v%d, v%d" % (V_WA, t1))

def prologue(A):
    A("s_cmp_ge_u32 s2, 256")
    A("s_cbranch_scc1 K_END")
    if Cfg.ct0:
        A("s_getpc_b64 s[%d:%d]" % (S_T2, S_T3))
        A("CODE_REF0:")
        A("s_lshr_b32 s%d, s2, 3" % S_T0)
        A("v_lshrrev_b32 v%d, 5, v0" % V_T)
        A("s_lshl_b32 s%d, s%d, 4" % (S_T0, S_T0))
        A("s_sub_u32 s%d, s%d, CODE_REF0 - %s_kernel" % (S_T2, S_T2, NAME))
        A("v_add_u32 v%d, s%d, v%d" % (V_T, S_T0, V_T))
        A("s_subb_u32 s%d, s%d, 0" % (S_T3, S_T3))
        A("v_lshlrev_b32 v%d, 7, v%d" % (V_T, V_T))
        A("v_min_u32 v%d, CODE_BYTES - 4, v%d" % (V_T, V_T))
        A("global_load_dword v%d, v%d, s[%d:%d]" % (V_TCH, V_T, S_T2, S_T3))
    A("s_load_dwordx16 s[%d:%d], s[0:1], 0" % (S_PTR, S_PTR + 15))
    A("s_load_dwordx4 s[%d:%d], s[0:1], 64" % (S_PTR + 16, S_PTR + 19))
    A("s_load_dwordx2 s[%d:%d], s[0:1], 80" % (S_PTR + 20, S_PTR + 21))
    A("v_lshrrev_b32 v%d, 6, v0" % V_T)
    A("v_and_b32 v%d, 63, v0" % V_LANE)
    A("v_readfirstlane_b32 s%d, v%d" % (S_W8, V_T))
    A("v_lshlrev_b32 v%d, 4, v%d" % (V_L16, V_LANE))
    A("s_nop 0")
    A("s_and_b32 s%d, s%d, 3" % (S_WAVE, S_W8))
    setup_ids(A)

def publish_nonce(A):
    A("s_cmp_lg_u32 s2, 0")
    A("s_cbranch_scc1 NONCE_SKIP")
    A("s_cmp_lg_u32 s%d, 0" % S_W8)
    A("s_cbranch_scc1 NONCE_SKIP")
    A("s_memrealtime s[%d:%d]" % (S_T0, S_T1))
    A("s_waitcnt lgkmcnt(0)")
    A("s_or_b32 s%d, s%d, 1" % (S_T0, S_T0))
    A("v_mov_b32 v%d, s%d" % (V_T, S_T0))
    A("v_mov_b32 v%d, 0" % (V_T + 1))
    A("s_mov_b64 exec, 1")
    A("global_store_dword v%d, v%d, s[%d:%d] sc1" % (V_T + 1, V_T, P_DBG, P_DBG + 1))
    A("s_mov_b64 exec, -1")
    A("NONCE_SKIP:")

def get_nonce(A, tag):
    A("s_mov_b32 s%d, 0" % S_SPIN)
    A("v_mov_b32 v%d, 0" % (V_T + 1))
    A("NONCE_L%s:" % tag)
    A("global_load_dword v%d, v%d, s[%d:%d] sc1" % (V_T, V_T + 1, P_DBG, P_DBG + 1))
    A("s_waitcnt vmcnt(0)")
    A("v_readfirstlane_b32 s%d, v%d" % (S_NONCE, V_T))
    A("s_add_u32 s%d, s%d, 1" % (S_SPIN, S_SPIN))
    A("s_cmp_gt_u32 s%d, 400000" % S_SPIN)
    A("s_cbranch_scc1 NONCE_D%s" % tag)
    A("s_cmp_eq_u32 s%d, 0" % S_NONCE)
    A("s_cbranch_scc1 NONCE_L%s" % tag)
    A("NONCE_D%s:" % tag)

def store_flag(A, s_off):
    A("v_mov_b32 v%d, s%d" % (V_T, S_NONCE))
    A("v_mov_b32 v%d, 0" % (V_T + 1))
    A("s_mov_b64 exec, 1")
    A("buffer_store_dword v%d, v%d, s[%d:%d], s%d offen sc1" % (V_T, V_T + 1, S_WS, S_WS + 3, s_off))
    A("s_mov_b64 exec, -1")

def set_flag(A, tag, base, s_line, s_idx):
    A("s_cmp_lg_u32 s%d, 0" % S_W8)
    A("s_cbranch_scc1 FLAG_SKIP%s" % tag)
    A("s_lshl_b32 s%d, s%d, 7" % (S_T0, s_line))
    A("s_lshl_b32 s%d, s%d, 2" % (S_T1, s_idx))
    A("s_add_u32 s%d, s%d, s%d" % (S_T0, S_T0, S_T1))
    A("s_add_u32 s%d, s%d, 0x%x" % (S_T0, S_T0, base))
    store_flag(A, S_T0)
    A("FLAG_SKIP%s:" % tag)

def poll_flags(A, tag, base, s_line, shift=0, n=32):
    t0, t1 = V_T, V_T + 1
    A("s_lshr_b32 s%d, s%d, %d" % (S_T0, s_line, shift))
    A("s_lshl_b32 s%d, s%d, %d" % (S_T0, S_T0, 7 if n == 32 else 8))
    A("s_add_u32 s%d, s%d, 0x%x" % (S_T0, S_T0, base))
    A("v_and_b32 v%d, %d, v%d" % (t1, n - 1, V_LANE))
    A("v_lshlrev_b32 v%d, 2, v%d" % (t1, t1))
    A("s_mov_b32 s%d, 0" % S_SPIN)
    A("POLL_L%s:" % tag)
    A("buffer_load_dword v%d, v%d, s[%d:%d], s%d offen sc1" % (t0, t1, S_WS, S_WS + 3, S_T0))
    A("s_waitcnt vmcnt(0)")
    A("v_cmp_ne_u32 vcc, s%d, v%d" % (S_NONCE, t0))
    A("s_add_u32 s%d, s%d, 1" % (S_SPIN, S_SPIN))
    A("s_cmp_gt_u32 s%d, 400000" % S_SPIN)
    A("s_cbranch_scc1 POLL_D%s" % tag)
    A("s_cmp_eq_u64 vcc, 0")
    A("s_cbranch_scc1 POLL_D%s" % tag)
    A("s_sleep %d" % (Cfg.s3sleep if tag == "3" else 2))
    A("s_branch POLL_L%s" % tag)
    A("POLL_D%s:" % tag)

def touches(A):
    t0 = V_T
    A("s_getpc_b64 s[%d:%d]" % (S_T2, S_T3))
    A("CODE_REF:")
    A("s_sub_u32 s%d, s%d, CODE_REF - %s_kernel" % (S_T2, S_T2, NAME))
    A("s_subb_u32 s%d, s%d, 0" % (S_T3, S_T3))
    A("s_lshr_b32 s%d, s2, 3" % S_T0)
    A("s_lshl_b32 s%d, s%d, 2" % (S_T0, S_T0))
    A("s_add_u32 s%d, s%d, s%d" % (S_T0, S_T0, S_WAVE))
    A("s_lshl_b32 s%d, s%d, 9" % (S_T0, S_T0))
    A("v_and_b32 v%d, 3, v%d" % (t0, V_LANE))
    A("v_lshlrev_b32 v%d, 7, v%d" % (t0, t0))
    A("v_add_u32 v%d, s%d, v%d" % (t0, S_T0, t0))
    A("v_min_u32 v%d, CODE_BYTES - 4, v%d" % (t0, t0))
    A("global_load_dword v%d, v%d, s[%d:%d]" % (V_TCH, t0, S_T2, S_T3))

S_TOFF = 47
def w_touch_addr(A):
    t0, t1, t2 = V_T, V_T + 1, V_T + 2
    A("s_lshr_b32 s%d, s2, 3" % S_T0)
    A("s_lshl_b32 s%d, s%d, 2" % (S_T0, S_T0))
    A("s_add_u32 s%d, s%d, s%d" % (S_T0, S_T0, S_WAVE))
    A("s_lshl_b32 s%d, s%d, 6" % (S_T0, S_T0))
    A("v_add_u32 v%d, s%d, v%d" % (t0, S_T0, V_LANE))
    A("v_mul_u32_u24 v%d, 20165, v%d" % (t1, t0))
    A("v_lshrrev_b32 v%d, 18, v%d" % (t1, t1))
    A("v_mul_u32_u24 v%d, 13, v%d" % (t2, t1))
    A("v_sub_u32 v%d, v%d, v%d" % (t2, t0, t2))
    A("v_mul_u32_u24 v%d, 2752, v%d" % (t1, t1))
    A("v_lshlrev_b32 v%d, 7, v%d" % (t2, t2))
    A("v_add_u32 v%d, v%d, v%d" % (31, t1, t2))
    A("s_and_b32 s%d, s2, 1" % S_T0)
    A("s_mul_i32 s%d, s%d, 1536" % (S_TOFF, S_T0))

def w_touch(A, which, tag):
    A("s_cmp_lg_u32 s%d, %d" % (S_I, Cfg.ptouch[which]))
    A("s_cbranch_scc1 PT_%s" % tag)
    srdn = S_B2 if which == 0 else S_B3
    A("buffer_load_dword v29, v31, s[%d:%d], s%d offen" % (srdn, srdn + 3, S_TOFF))
    A("PT_%s:" % tag)

def w_touches(A):
    pass

def p2_dma_setup(A):
    t0, t1, t2 = V_T, V_T + 1, V_T + 2
    x_dma_offsets(A, V_XO2, 4, 32)
    for e in range(3):
        A("v_add_u32 v%d, %d, v%d" % (t0, 64 * e, V_LANE))
        A("v_mul_u32_u24 v%d, 171, v%d" % (t1, t0))
        A("v_lshrrev_b32 v%d, 11, v%d" % (t1, t1))
        A("v_mul_u32_u24 v%d, 12, v%d" % (t2, t1))
        A("v_sub_u32 v%d, v%d, v%d" % (t2, t0, t2))
        A("s_lshl_b32 s%d, s%d, 4" % (S_T0, S_WAVE))
        A("v_add_u32 v%d, s%d, v%d" % (t1, S_T0, t1))
        A("v_mul_u32_u24 v%d, 2752, v%d" % (t1, t1))
        A("v_lshlrev_b32 v%d, 4, v%d" % (t2, t2))
        A("v_add_u32 v%d, v%d, v%d" % (V_WO2 + e, t1, t2))

def coop_touches(A):
    t0, t1, t2 = V_T, V_T + 1, V_T + 2
    G = S_T3
    A("s_lshr_b32 s%d, s2, 3" % G)
    A("s_lshl_b32 s%d, s%d, 3" % (G, G))
    A("s_add_u32 s%d, s%d, s%d" % (G, G, S_W8))
    if Cfg.coop in (1, 2):
        A("s_lshl_b32 s%d, s%d, 11" % (S_T0, G))
        A("s_and_b32 s%d, s2, 7" % S_T1)
        A("s_lshr_b32 s%d, s%d, 1" % (S_T1, S_T1))
        A("s_lshl_b32 s%d, s%d, 19" % (S_T1, S_T1))
        A("s_add_u32 s%d, s%d, s%d" % (S_T0, S_T0, S_T1))
        A("v_min_u32 v%d, 15, v%d" % (t0, V_LANE))
        A("v_lshlrev_b32 v%d, 7, v%d" % (t0, t0))
        A("buffer_load_dword v30, v%d, s[%d:%d], s%d offen" % (t0, S_AX, S_AX + 3, S_T0))
        A("s_mul_i32 s%d, s%d, 24" % (S_T0, G))
        A("v_min_u32 v%d, 23, v%d" % (t0, V_LANE))
        A("v_add_u32 v%d, s%d, v%d" % (t0, S_T0, t0))
        A("v_mul_u32_u24 v%d, 5462, v%d" % (t1, t0))
        A("v_lshrrev_b32 v%d, 16, v%d" % (t1, t1))
        A("v_mul_u32_u24 v%d, 12, v%d" % (t2, t1))
        A("v_sub_u32 v%d, v%d, v%d" % (t2, t0, t2))
        A("v_mul_u32_u24 v%d, 3072, v%d" % (t1, t1))
        A("v_lshrrev_b32 v%d, 2, v%d" % (t0, t2))
        A("v_lshlrev_b32 v%d, 10, v%d" % (t0, t0))
        A("v_add_u32 v%d, v%d, v%d" % (t1, t1, t0))
        A("v_and_b32 v%d, 3, v%d" % (t2, t2))
        A("v_lshlrev_b32 v%d, 7, v%d" % (t2, t2))
        A("v_add_u32 v%d, v%d, v%d" % (t1, t1, t2))
        A("s_and_b32 s%d, s2, 1" % S_T0)
        A("s_lshl_b32 s%d, s%d, 9" % (S_T0, S_T0))
        A("buffer_load_dword v30, v%d, s[%d:%d], s%d offen" % (t1, S_B1, S_B1 + 3, S_T0))
    if Cfg.coop in (1, 3):
        A("s_mul_i32 s%d, s%d, 26" % (S_T0, G))
        A("v_min_u32 v%d, 25, v%d" % (t0, V_LANE))
        A("v_add_u32 v%d, s%d, v%d" % (t0, S_T0, t0))
        A("v_mul_u32_u24 v%d, 20165, v%d" % (t1, t0))
        A("v_lshrrev_b32 v%d, 18, v%d" % (t1, t1))
        A("v_mul_u32_u24 v%d, 13, v%d" % (t2, t1))
        A("v_sub_u32 v%d, v%d, v%d" % (t2, t0, t2))
        A("v_mul_u32_u24 v%d, 2752, v%d" % (t1, t1))
        A("v_lshlrev_b32 v%d, 7, v%d" % (t2, t2))
        A("v_add_u32 v%d, v%d, v%d" % (t1, t1, t2))
        A("s_and_b32 s%d, s2, 1" % S_T0)
        A("s_mul_i32 s%d, s%d, 1536" % (S_T0, S_T0))
        A("buffer_load_dword v30, v%d, s[%d:%d], s%d offen" % (t1, S_B2, S_B2 + 3, S_T0))
        A("buffer_load_dword v30, v%d, s[%d:%d], s%d offen" % (t1, S_B3, S_B3 + 3, S_T0))

def all_srds(A):
    A("s_waitcnt lgkmcnt(0)")
    srd(A, S_AX, P_AX, 2048 * 1024)
    srd(A, S_B1, P_WQKV, 512 * 3072)
    srd(A, S_B2, P_WG, 512 * 2752)
    srd(A, S_B3, P_WU, 512 * 2752)
    srd(A, S_WS, P_WS, WS_SIZE)
    if Cfg.coop: coop_touches(A)

def role_b(A):
    A.comment("==== B waves: P1 loader ====")
    t0, t1, t2 = V_T, V_T + 1, V_T + 2
    x_dma_offsets(A, V_XO1, 2, 16)
    A("v_lshrrev_b32 v%d, 3, v%d" % (t0, V_LANE))
    A("s_lshl_b32 s%d, s%d, 4" % (S_T0, S_WAVE))
    A("v_add_u32 v%d, s%d, v%d" % (t0, S_T0, t0))
    A("v_mul_u32_u24 v%d, 3072, v%d" % (t0, t0))
    A("v_lshrrev_b32 v%d, 4, v%d" % (t1, V_LANE))
    A("v_and_b32 v%d, 1, v%d" % (t1, t1))
    A("v_lshlrev_b32 v%d, 2, v%d" % (t1, t1))
    A("v_and_b32 v%d, 7, v%d" % (t2, V_LANE))
    A("v_xor_b32 v%d, v%d, v%d" % (t1, t1, t2))
    A("v_lshlrev_b32 v%d, 4, v%d" % (t1, t1))
    A("v_add_u32 v%d, v%d, v%d" % (V_WO1, t0, t1))
    all_srds(A)
    A("s_mov_b32 s%d, 0" % S_SLI)
    loop(A, "LD_PRO", 2, lambda: issue_group(A, 1))
    nt = 0
    if Cfg.btouch:
        w_touch_addr(A)
        A("buffer_load_dword v30, v31, s[%d:%d], s%d offen" % (S_B2, S_B2 + 3, S_TOFF))
        A("buffer_load_dword v30, v31, s[%d:%d], s%d offen" % (S_B3, S_B3 + 3, S_TOFF))
        nt = 2
    p2_dma_setup(A)
    x_read_addrs(A, S_WAVE)
    w_read_base(A, 192, False)
    tail_setup(A)
    stamp(A, 1)
    A("s_waitcnt vmcnt(%d)" % (8 + nt)); A("s_barrier")
    stamp(A, 2)
    issue_group(A, 1)
    if not Cfg.ct0: touches(A)
    A("s_waitcnt vmcnt(%d)" % ((8 if Cfg.ct0 else 9) + nt)); A("s_barrier")
    issue_group(A, 1)
    def la():
        A("s_waitcnt vmcnt(8)"); A("s_barrier"); issue_group(A, 1)
    loop(A, "LD_A", 4, la)
    A("v_mov_b32 v%d, 0" % (V_T + 2))
    A("global_load_dword v%d, v%d, s[%d:%d] sc1" % (V_NONCE, V_T + 2, P_DBG, P_DBG + 1))
    A("s_cmp_eq_u32 s%d, 15" % S_CG2)
    A("s_cbranch_scc1 B_GATE")
    def bt():
        A("buffer_load_dword v30, v31, s[%d:%d], s%d offen" % (S_B2, S_B2 + 3, S_TOFF))
        A("buffer_load_dword v30, v31, s[%d:%d], s%d offen" % (S_B3, S_B3 + 3, S_TOFF))
    if Cfg.bt5 == 5:
        w_touch_addr(A)
        A("s_waitcnt vmcnt(9)"); A("s_barrier"); issue_group(A, 2); bt()
        A("s_waitcnt vmcnt(12)"); A("s_barrier"); issue_group(A, 2)
        A("s_waitcnt vmcnt(12)"); A("s_barrier")
    elif Cfg.bt5 == 4:
        w_touch_addr(A)
        bt()
        A("s_waitcnt vmcnt(11)"); A("s_barrier"); issue_group(A, 2)
        A("s_waitcnt vmcnt(13)"); A("s_barrier"); issue_group(A, 2)
        A("s_waitcnt vmcnt(10)"); A("s_barrier")
    else:
        A("s_waitcnt vmcnt(9)"); A("s_barrier"); issue_group(A, 2)
        A("s_waitcnt vmcnt(10)"); A("s_barrier"); issue_group(A, 2)
        A("s_waitcnt vmcnt(10)"); A("s_barrier")
    stamp(A, 3)
    nonce_check(A, "b1")
    p2(A)
    tail_srds(A)
    if Cfg.bz: A("s_barrier")
    A("s_branch B_C1")
    A("B_GATE:")
    A("s_waitcnt vmcnt(9)"); A("s_barrier")
    A("s_waitcnt vmcnt(0)"); A("s_barrier")
    A("s_barrier")
    nonce_check(A, "b2")
    tail_srds(A)
    if Cfg.bz: A("s_barrier")
    gate(A)
    A("B_C1:")
    A("s_setprio 3")
    stamp(A, 5)
    if Cfg.gfirst:
        p2_epilogue(A, [], [])
        A("s_mov_b32 s%d, 0" % S_SPIN)
        s1_flag_load(A)
        attn_pre_valu(A)
        A("s_waitcnt vmcnt(0)")
    else:
        A("s_mov_b32 s%d, 0" % S_SPIN)
        s1_flag_load(A)
        attn_pre_valu(A)
        A("s_waitcnt vmcnt(0)")
        s1_check(A, "c")
        stamp(A, 6)
        attn_pre_loads(A)
        p2_epilogue(A, [k_item(i) for i in range(4)] + [v_item(i) for i in range(4)], [v_item(i) for i in range(4, 8)] + [k_item(i) for i in range(4, 8)])
        A("s_waitcnt vmcnt(0)")
    A("s_lshl_b32 s%d, s%d, 1" % (S_T0, S_RB2))
    A("s_lshr_b32 s%d, s%d, 1" % (S_T1, S_WAVE))
    A("s_add_u32 s%d, s%d, s%d" % (S_T0, S_T0, S_T1))
    A("s_lshl_b32 s%d, s%d, 7" % (S_T0, S_T0))
    A("s_lshl_b32 s%d, s%d, 1" % (S_T1, S_CG2))
    A("s_and_b32 s%d, s%d, 1" % (S_T2, S_WAVE))
    A("s_add_u32 s%d, s%d, s%d" % (S_T1, S_T1, S_T2))
    A("s_lshl_b32 s%d, s%d, 2" % (S_T1, S_T1))
    A("s_add_u32 s%d, s%d, s%d" % (S_T0, S_T0, S_T1))
    A("s_add_u32 s%d, s%d, 0x%x" % (S_T0, S_T0, WS_F2))
    store_flag(A, S_T0)
    if Cfg.gfirst:
        s1_check(A, "c")
        stamp(A, 6)
        attn_pre_loads(A)
        for i in range(8):
            emit(A, k_item(i)); emit(A, v_item(i))
        A("s_waitcnt vmcnt(0)")
    if Cfg.bdown:
        A("s_setprio %d" % Cfg.bd_prio)
        b_ffn_down(A)
    bound(A)
    A("s_setprio %d" % Cfg.prio_b)
    if "sv" in Cfg.exp: A("v_mov_b32 v40, v%d" % SV.reg)

V_F1 = 14
def s1_addr(A):
    A("s_lshr_b32 s%d, s%d, 2" % (S_T0, S_HEAD))
    A("s_lshl_b32 s%d, s%d, 9" % (S_T0, S_T0))
    A("s_add_u32 s%d, s%d, 0x%x" % (S_T0, S_T0, WS_F1))
    A("v_lshlrev_b32 v%d, 3, v%d" % (V_T + 2, V_LANE))

def s1_flag_load(A):
    s1_addr(A)
    A("buffer_load_dwordx2 %s, v%d, s[%d:%d], s%d offen sc1" % (vr(V_F1, 2), V_T + 2, S_WS, S_WS + 3, S_T0))

def s1_check(A, tag):
    A("S1_CK%s:" % tag)
    A("v_cmp_ne_u32 vcc, s%d, v%d" % (S_NONCE, V_F1))
    A("v_cmp_ne_u32 s[%d:%d], s%d, v%d" % (S_T2, S_T3, S_NONCE, V_F1 + 1))
    A("s_nop 3")
    A("s_or_b64 vcc, vcc, s[%d:%d]" % (S_T2, S_T3))
    if "miss" in Cfg.exp and tag == "l":
        A("s_cmp_eq_u64 vcc, 0")
        A("s_cbranch_scc1 MISS_SKIP")
        A("s_mov_b32 s%d, vcc_lo" % (S_ST + 2 + 11))
        A("s_mov_b32 s%d, vcc_hi" % (S_ST + 2 + 12))
        A("MISS_SKIP:")
    A("s_cmp_eq_u64 vcc, 0")
    A("s_cbranch_scc1 S1_OK%s" % tag)
    A("s_add_u32 s%d, s%d, 1" % (S_SPIN, S_SPIN))
    A("s_cmp_gt_u32 s%d, 400000" % S_SPIN)
    A("s_cbranch_scc1 S1_OK%s" % tag)
    A("s_sleep %d" % (Cfg.slg if tag == "lg" else Cfg.sother))
    s1_flag_load(A)
    A("s_waitcnt vmcnt(0)")
    A("s_branch S1_CK%s" % tag)
    A("S1_OK%s:" % tag)

def s1_poll(A, tag):
    A("s_mov_b32 s%d, 0" % S_SPIN)
    s1_flag_load(A)
    A("s_waitcnt vmcnt(0)")
    s1_check(A, tag)

def s1_set(A):
    A("s_lshl_b32 s%d, s%d, 5" % (S_T0, S_CG1))
    A("s_add_u32 s%d, s%d, s%d" % (S_T0, S_T0, S_RB1))
    A("s_lshl_b32 s%d, s%d, 2" % (S_T0, S_T0))
    A("s_add_u32 s%d, s%d, s%d" % (S_T0, S_T0, S_WAVE))
    A("s_lshl_b32 s%d, s%d, 2" % (S_T0, S_T0))
    A("s_add_u32 s%d, s%d, 0x%x" % (S_T0, S_T0, WS_F1))
    store_flag(A, S_T0)

def o_sentinels(A):
    for r in range(4): A("v_mov_b32 v%d, -1" % (32 + r))
    A("s_lshl_b32 s%d, s%d, 3" % (S_T0, S_QB))
    A("s_lshl_b32 s%d, s%d, 1" % (S_T1, S_WAVE))
    A("s_add_u32 s%d, s%d, s%d" % (S_T0, S_T0, S_T1))
    A("s_lshl_b32 s%d, s%d, 5" % (S_T0, S_T0))
    A("s_add_u32 s%d, s%d, s%d" % (S_T0, S_T0, S_HEAD))
    A("s_lshl_b32 s%d, s%d, 10" % (S_T0, S_T0))
    A("s_add_u32 s%d, s%d, 0x%x" % (S_T0, S_T0, WS_OF))
    A("s_add_u32 s%d, s%d, 32768" % (S_T1, S_T0))
    A("buffer_store_dwordx4 %s, v%d, s[%d:%d], s%d offen%s" % (vr(32, 4), V_L16, S_WS, S_WS + 3, S_T0, SC))
    A("buffer_store_dwordx4 %s, v%d, s[%d:%d], s%d offen%s" % (vr(32, 4), V_L16, S_WS, S_WS + 3, S_T1, SC))
    A("s_nop 1")

def tlb_warm(A):
    sh = Cfg.tlb
    t0 = V_T
    n_ws = (0x1000000 >> sh)
    A("s_lshl_b32 s%d, s%d, 6" % (S_T0, S_WAVE))
    A("v_add_u32 v%d, s%d, v%d" % (t0, S_T0, V_LANE))
    A("v_lshlrev_b32 v%d, %d, v%d" % (t0, sh, t0))
    A("s_cmp_ge_u32 s%d, 2" % S_WAVE)
    A("s_cbranch_scc1 TLB_B")
    A("v_min_u32 v%d, 0xfffffc, v%d" % (t0, t0))
    A("buffer_load_dword v30, v%d, s[%d:%d], 0 offen" % (t0, S_WS, S_WS + 3))
    A("s_branch TLB_D")
    A("TLB_B:")
    A("v_lshlrev_b32 v%d, %d, v%d" % (t0, sh, V_LANE))
    A("s_cmp_eq_u32 s%d, 3" % S_WAVE)
    A("s_cbranch_scc1 TLB_C")
    A("v_min_u32 v%d, %d, v%d" % (t0 + 1, 1376 * 1024 - 4, t0))
    A("global_load_dword v30, v%d, s[%d:%d]" % (t0 + 1, P_WD, P_WD + 1))
    A("v_min_u32 v%d, %d, v%d" % (t0 + 1, 512 * 1024 - 4, t0))
    A("global_load_dword v30, v%d, s[%d:%d]" % (t0 + 1, P_WO, P_WO + 1))
    A("s_branch TLB_D")
    A("TLB_C:")
    A("v_min_u32 v%d, %d, v%d" % (t0 + 1, 2048 * 1024 - 4, t0))
    A("global_load_dword v30, v%d, s[%d:%d]" % (t0 + 1, P_OUT, P_OUT + 1))
    if Cfg.tlbw:
        A("v_min_u32 v%d, %d, v%d" % (t0 + 1, 512 * 2752 - 4, t0))
        A("buffer_load_dword v30, v%d, s[%d:%d], 0 offen" % (t0 + 1, S_B2, S_B2 + 3))
        A("buffer_load_dword v30, v%d, s[%d:%d], 0 offen" % (t0 + 1, S_B3, S_B3 + 3))
    A("TLB_D:")

def role_a(A):
    A.comment("==== A waves: P1 compute ====")
    if Cfg.coop: all_srds(A)
    RA.XR, RA.WR = 144, 148
    A("s_lshr_b32 s%d, s%d, 1" % (S_T1, S_WAVE))
    x_read_addrs(A, S_T1)
    w_read_base(A, 128, True)
    for r in range(48):
        A("v_accvgpr_write_b32 a%d, 0" % (A_ACC1 + r))
    A("s_mov_b32 s%d, 0" % S_SLR)
    set_read_addrs(A)
    p2_dma_setup(A)
    if not Cfg.coop: all_srds(A)
    publish_nonce(A)
    tail_setup(A)
    g0 = 13 if Cfg.trans == 'v3' else 10
    A("s_add_u32 s%d, s%d, %d" % (S_KC2, S_KC2, g0 - 8))
    A("s_and_b32 s%d, s%d, 7" % (S_KC2, S_KC2))
    A("s_mov_b32 s%d, %d" % (S_SLI, (g0 % 4) * SLOT))
    if Cfg.tlb: tlb_warm(A)
    if Cfg.ptouch: w_touch_addr(A)
    if Cfg.dp: o_sentinels(A)
    if "touch" in Cfg.exp: w_touches(A)
    stamp(A, 1)
    A("s_barrier")
    stamp(A, 2)
    emit(A, p1_read_list(0, V_F)); emit(A, p1_read_list(1, V_F + 16))
    loop(A, "P1_L", 8, lambda: p1_chunk(A))
    A("s_waitcnt lgkmcnt(0)")
    stamp(A, 3)
    A("v_mov_b32 v%d, 0" % (V_T + 2))
    A("global_load_dword v%d, v%d, s[%d:%d] sc1" % (V_NONCE, V_T + 2, P_DBG, P_DBG + 1))
    E = Buf(); p1_epilogue(E)
    L = E.lines
    A("s_cmp_eq_u32 s%d, 15" % S_CG2)
    A("s_cbranch_scc1 A_GATE")
    n1 = 40; n2 = [k_ for k_, l_ in enumerate(L) if "MARK" in l_][0]
    nm = [k_ for k_, l_ in enumerate(L) if "MARK" in l_][0]
    body, tail = L[:nm], L[nm:]
    if Cfg.trans == 'v3':
        n1 = len(body) * 1 // 2
        A("s_nop 7")
        emit(A, body[:n1])
        A("s_barrier")
        emit(A, body[n1:])
        emit(A, tail)
        A("s_barrier")
        A("s_waitcnt vmcnt(0)")
        stamp(A, 4)
        nonce_check(A, "a1")
        s1_set(A)
        A("s_barrier")
        issue_group(A, 2)
        A("s_barrier")
        issue_group(A, 2)
        A("s_waitcnt vmcnt(10)"); A("s_barrier")
    else:
        if Cfg.m1b is None:
            n1, n2 = len(body) * 2 // 7, len(body) * 5 // 7
        else:
            n1, n2 = int(len(body) * Cfg.m1b), len(body)
        B1 = Buf(); issue_group_merged(B1, 2, body[:n1])
        B2 = Buf(); issue_group_merged(B2, 2, body[n1:n2])
        if Cfg.m1b is not None: B2.lines += tail
        last = max(k_ for k_, l_ in enumerate(B1.lines) if l_.endswith(" lds"))
        newer = sum(1 for l_ in B1.lines[last + 1:] + B2.lines if l_.startswith("buffer_"))
        emit(A, B1.lines)
        A("s_barrier")
        emit(A, B2.lines)
        A("s_waitcnt vmcnt(%d)" % newer)
        A("s_barrier")
        if Cfg.m1b is None:
            emit(A, body[n2:])
            emit(A, tail)
        if Cfg.lateflag:
            lastg11 = max(k_ for k_, l_ in enumerate(B2.lines) if l_.endswith(" lds"))
            after = sum(1 for l_ in B2.lines[lastg11 + 1:] if l_.startswith("buffer_"))
            issue_group(A, 2)
            A("s_waitcnt vmcnt(%d)" % (after + 10))
            A("s_barrier")
            issue_group(A, 2)
            A("s_waitcnt vmcnt(20)")
            stamp(A, 4)
            nonce_check(A, "a1")
            s1_set(A)
            A("s_waitcnt vmcnt(11)"); A("s_barrier")
            issue_group(A, 2)
            A("s_waitcnt vmcnt(10)"); A("s_barrier")
        else:
            if Cfg.flagfirst:
                A("s_waitcnt vmcnt(0)")
                stamp(A, 4)
                nonce_check(A, "a1")
                s1_set(A)
                issue_group(A, 2)
            else:
                issue_group(A, 2)
                A("s_waitcnt vmcnt(10)")
                stamp(A, 4)
                nonce_check(A, "a1")
                s1_set(A)
            A("s_barrier")
            issue_group(A, 2)
            A("s_waitcnt vmcnt(10)"); A("s_barrier"); issue_group(A, 2)
            A("s_waitcnt vmcnt(10)"); A("s_barrier")
    A("s_mov_b32 s%d, 0" % S_SPIN)
    if Cfg.early == 13:
        s1_flag_load(A)
        issue_group(A, 2)
        A("s_waitcnt vmcnt(10)"); A("s_barrier")
        stamp(A, 5)
        s1_check(A, "l")
        stamp(A, 6)
        attn_loads_pre(A)
        for i in range(3):
            emit(A, k_item(i)); emit(A, v_item(i))
        A("s_waitcnt vmcnt(12)"); A("s_barrier")
        for i in range(3, 8):
            emit(A, k_item(i)); emit(A, v_item(i))
    else:
        issue_group(A, 2)
        A("s_waitcnt vmcnt(10)"); A("s_barrier")
        s1_flag_load(A)
        attn_pre_valu(A)
        A("s_waitcnt vmcnt(0)"); A("s_barrier")
        s1_check(A, "l")
        attn_pre_loads(A)
        for i in range(8):
            emit(A, k_item(i)); emit(A, v_item(i))
    tail_srds(A)
    if Cfg.bz: A("s_barrier")
    A("s_waitcnt vmcnt(0)")
    bound(A)
    if Cfg.bz: A("s_barrier")
    A("s_branch A_DONE")
    A("A_GATE:")
    A("s_nop 7")
    emit(A, [l.replace("LRX", "LRX") for l in L])
    A("s_waitcnt vmcnt(0)")
    nonce_check(A, "a2")
    s1_set(A)
    if Cfg.bz: A("s_barrier")
    s1_poll(A, "lg")
    attn_loads_pre(A)
    for i in range(8):
        emit(A, k_item(i)); emit(A, v_item(i))
    tail_srds(A)
    A("s_waitcnt vmcnt(0)")
    bound(A)
    A("A_DONE:")
    if "sv" in Cfg.exp: A("v_mov_b32 v40, v%d" % SV.reg)

def lane_reduce(A, rs, ts, op32, op):
    n = len(rs)
    def pad(k):
        if k > 0: A("s_nop %d" % (k - 1))
    for r, t in zip(rs, ts): A("v_mov_b32 v%d, v%d" % (t, r))
    pad(max(0, 2 - (n - 1)))
    for r, t in zip(rs, ts): A("v_permlane32_swap_b32 v%d, v%d" % (r, t))
    pad(1)
    for r, t in zip(rs, ts): A("%s v%d, v%d, v%d" % (op32, r, r, t))
    for r, t in zip(rs, ts): A("v_mov_b32 v%d, v%d" % (t, r))
    pad(max(0, 2 - (n - 1)))
    for r, t in zip(rs, ts): A("v_permlane16_swap_b32 v%d, v%d" % (r, t))
    pad(1)
    for r, t in zip(rs, ts): A("%s v%d, v%d, v%d" % (op, r, r, t))
    for sh in (8, 4, 2, 1):
        pad(max(0, 2 - (n - 1)))
        for r in rs: A("%s_dpp v%d, v%d, v%d row_ror:%d row_mask:0xf bank_mask:0xf" % (op, r, r, r, sh))

S_E0, S_E1, S_E2, S_E3 = 28, 29, 30, 31
def p1_epilogue(A):
    TA, TB, TC, TD = 32, 33, 34, 35
    PA, PB = 36, 40
    VADDR = 48
    N = [44, 45, 46, 47]
    A("s_and_b32 s%d, s%d, 1" % (S_E0, S_WAVE))
    A("s_lshl_b32 s%d, s%d, 1" % (S_E0, S_E0))
    A("s_lshl_b32 s%d, s%d, 2" % (S_E1, S_CG1))
    A("s_add_u32 s%d, s%d, s%d" % (S_E0, S_E0, S_E1))
    A("s_lshr_b32 s%d, s%d, 1" % (S_E1, S_WAVE))
    A("s_lshl_b32 s%d, s%d, 1" % (S_E2, S_RB1))
    A("s_add_u32 s%d, s%d, s%d" % (S_E1, S_E1, S_E2))
    A("s_lshl_b32 s%d, s%d, 16" % (S_E2, S_E0))
    A("s_lshl_b32 s%d, s%d, 10" % (S_E3, S_E1))
    A("s_add_u32 s%d, s%d, s%d" % (S_E2, S_E2, S_E3))
    A("v_lshrrev_b32 v%d, 4, v%d" % (TA, V_LANE))
    A("v_and_b32 v%d, 1, v%d" % (TA, TA))
    A("v_lshlrev_b32 v%d, 16, v%d" % (TA, TA))
    A("v_lshrrev_b32 v%d, 5, v%d" % (TB, V_LANE))
    A("v_lshlrev_b32 v%d, 8, v%d" % (TB, TB))
    A("v_add_u32 v%d, v%d, v%d" % (TA, TA, TB))
    A("v_and_b32 v%d, 15, v%d" % (TB, V_LANE))
    A("v_lshlrev_b32 v%d, 4, v%d" % (TB, TB))
    A("v_add_u32 v%d, v%d, v%d" % (VADDR, TA, TB))
    A("s_mov_b32 s%d, 0x%x" % (S_C, f32bits(QSCALE)))
    k = [0]
    def head_part(acc, scale, nrm, addr, soff_base, imm):
        P = PA if k[0] % 2 == 0 else PB; k[0] += 1
        for p in range(4):
            a_, b_ = (TA, TB) if p % 2 == 0 else (TC, TD)
            A("v_accvgpr_read_b32 v%d, a%d" % (a_, acc + 2 * p))
            A("v_accvgpr_read_b32 v%d, a%d" % (b_, acc + 2 * p + 1))
            if scale:
                A("v_mul_f32 v%d, s%d, v%d" % (a_, S_C, a_))
                A("v_mul_f32 v%d, s%d, v%d" % (b_, S_C, b_))
            A("v_cvt_pk_bf16_f32 v%d, v%d, v%d" % (P + p, a_, b_))
        A("s_add_u32 s%d, s%d, 0x%x" % (S_E3, S_E2, soff_base))
        A("buffer_store_dwordx4 %s, v%d, s[%d:%d], s%d offen%s%s" % (vr(P, 4), addr, S_WS, S_WS + 3, S_E3, (" offset:%d" % imm) if imm else "", SC))
        if nrm is not None:
            for p in range(4):
                A("v_dot2_f32_bf16 v%d, v%d, v%d, %s" % (nrm, P + p, P + p, "0" if p == 0 else "v%d" % nrm))
    head_part(A_ACC1 + 16, False, N[2], V_L16, WS_KF, 0)
    head_part(A_ACC1 + 24, False, N[3], V_L16, WS_KF + 65536, 0)
    head_part(A_ACC1 + 32, False, None, VADDR, WS_VF, 0)
    head_part(A_ACC1 + 40, False, None, VADDR, WS_VF, 512)
    head_part(A_ACC1 + 0, True, N[0], V_L16, WS_QF, 0)
    head_part(A_ACC1 + 8, True, N[1], V_L16, WS_QF + 65536, 0)
    A("s_nop 2")
    A("s_nop 0 ; MARK")
    lane_reduce(A, N, [TA, TB, TC, TD], "v_add_f32", "v_max_f32")
    A("s_lshl_b32 s%d, s%d, 8" % (S_E2, S_E0))
    A("s_lshl_b32 s%d, s%d, 2" % (S_E3, S_E1))
    A("s_add_u32 s%d, s%d, s%d" % (S_E2, S_E2, S_E3))
    A("s_add_u32 s%d, s%d, 0x%x" % (S_E2, S_E2, WS_NQ))
    A("v_mov_b32 v%d, 0" % TA)
    A("s_add_u32 s%d, s%d, 0x%x" % (S_E3, S_E2, WS_NK - WS_NQ))
    A("s_mov_b64 exec, 1")
    A("buffer_store_dword v%d, v%d, s[%d:%d], s%d offen%s" % (N[0], TA, S_WS, S_WS + 3, S_E2, SC))
    A("buffer_store_dword v%d, v%d, s[%d:%d], s%d offen offset:256%s" % (N[1], TA, S_WS, S_WS + 3, S_E2, SC))
    A("buffer_store_dword v%d, v%d, s[%d:%d], s%d offen%s" % (N[2], TA, S_WS, S_WS + 3, S_E3, SC))
    A("buffer_store_dword v%d, v%d, s[%d:%d], s%d offen offset:256%s" % (N[3], TA, S_WS, S_WS + 3, S_E3, SC))
    A("s_mov_b64 exec, -1")

def gate(A):
    A.comment("gate: 32 rows per wave")
    S_GS = 44
    srd(A, S_GS, P_GW, 1024)
    GW = 160; G = 32
    N = list(range(164, 172)); T = list(range(172, 180))
    A("buffer_load_dwordx4 %s, v%d, s[%d:%d], 0 offen" % (vr(GW, 4), V_L16, S_GS, S_GS + 3))
    A("s_lshl_b32 s%d, s%d, 7" % (S_T0, S_RB2))
    A("s_lshl_b32 s%d, s%d, 5" % (S_T1, S_WAVE))
    A("s_add_u32 s%d, s%d, s%d" % (S_T0, S_T0, S_T1))
    A("s_lshl_b32 s%d, s%d, 10" % (S_T1, S_T0))
    for r in range(32):
        A("buffer_load_dwordx4 %s, v%d, s[%d:%d], s%d offen offset:%d" % (vr(G + 4 * r, 4), V_L16, S_AX, S_AX + 3, S_T1, (r & 3) * 1024))
        if (r & 3) == 3: A("s_add_u32 s%d, s%d, 4096" % (S_T1, S_T1))
    A("s_mov_b32 s%d, 0x%x" % (S_C, f32bits(-1.4426950408889634)))
    A("s_lshl_b32 s%d, s%d, 2" % (S_T1, S_T0))
    A("s_add_u32 s%d, s%d, 0x%x" % (S_T1, S_T1, WS_G))
    A("v_mov_b32 v%d, 0" % V_T)
    for b in range(4):
        A("s_waitcnt vmcnt(%d)" % (24 - 8 * b + 8 * b))
        for p in range(4):
            for x in range(8):
                A("v_dot2_f32_bf16 v%d, v%d, v%d, %s" % (N[x], G + 32 * b + 4 * x + p, GW + p, "0" if p == 0 else "v%d" % N[x]))
        A("s_nop 2")
        lane_reduce(A, N, T, "v_add_f32", "v_add_f32")
        for x in range(8): A("v_mul_f32 v%d, s%d, v%d" % (N[x], S_C, N[x]))
        for x in range(8): A("v_exp_f32 v%d, v%d" % (N[x], N[x]))
        for x in range(8): A("v_add_f32 v%d, 1.0, v%d" % (N[x], N[x]))
        for x in range(8): A("v_rcp_f32 v%d, v%d" % (N[x], N[x]))
        A("s_mov_b64 exec, 1")
        for x in range(8):
            A("buffer_store_dword v%d, v%d, s[%d:%d], s%d offen offset:%d%s" % (N[x], V_T, S_WS, S_WS + 3, S_T1, 32 * b + 4 * x, SC))
        A("s_mov_b64 exec, -1")
        A("s_nop 1")

P2_X0, P2_X1, P2_W = 32, 36, 40
def p2_read_list(hs):
    s_, mat = hs >> 1, hs & 1
    L = []
    if mat == 0:
        L.append("ds_read_b128 %s, v%d" % (vr(P2_X0 if (s_ & 1) == 0 else P2_X1, 4), RA.XR + s_))
    F = P2_W + 12 * (hs & 3)
    for u in range(3):
        for q in range(2):
            L.append("ds_read_b64_tr_b16 %s, v%d offset:%d" % (vr(F + 4 * u + 2 * q, 2), RA.WR, 16384 + mat * 12288 + s_ * 3072 + q * 768 + u * 64))
    return L
def p2_mfma_list(hs, zero=False):
    s_, mat = hs >> 1, hs & 1
    X = P2_X0 if (s_ & 1) == 0 else P2_X1
    F = P2_W + 12 * (hs & 3)
    return [mfma(vr(V_ACC2 + 48 * mat + 16 * u, 16), vr(F + 4 * u, 4), vr(X, 4), "0" if zero else vr(V_ACC2 + 48 * mat + 16 * u, 16)) for u in range(3)]
def group_blocks(typ):
    B = Buf(); issue_group(B, typ)
    blocks, cur = [], []
    for l in B.lines:
        cur.append(l)
        if l.startswith("buffer_load"): blocks.append(cur); cur = []
    blocks[-1] = blocks[-1] + cur
    return blocks

def p2_chunk(A, vm=None, zero=False, nobar=False, dma0=False, dma1=False):
    gaps = [[] for _ in range(24)]
    for half_, on in ((0, dma0), (1, dma1)):
        if on:
            for k, b in enumerate(group_blocks(2)): gaps[12 * half_ + k] = b
    for hs in range(8):
        if hs == 4 and not nobar:
            if vm is not None: A("s_waitcnt vmcnt(%d)" % vm)
            A("s_barrier")
        if hs == 6:
            adv_slot(A, S_SLR)
            set_read_addrs(A)
        A("s_waitcnt lgkmcnt(%d)" % (7 if ((hs + 1) & 1) == 0 else 6))
        ms = p2_mfma_list(hs, zero and hs < 2); rs = p2_read_list((hs + 2) & 7)
        k = 0
        for i, m in enumerate(ms):
            A(m)
            emit(A, gaps[3 * hs + i])
            cnt = (len(rs) * (i + 1)) // 3 - (len(rs) * i) // 3
            for _ in range(cnt):
                A(rs[k]); k += 1

def p2(A):
    A.comment("==== P2: FFN up (B waves) ====")
    if Cfg.p2prio: A("s_setprio %d" % Cfg.p2prio)
    RA.XR, RA.WR = 88, 92
    A("s_mov_b32 s%d, 0" % S_SLR)
    set_read_addrs(A)
    emit(A, p2_read_list(0)); emit(A, p2_read_list(1))
    if Cfg.trans == 'v3':
        p2_chunk(A, vm=10, zero=True, dma0=True, dma1=True)
        p2_chunk(A, vm=10, dma1=True)
        p2_chunk(A, vm=10)
        p2_chunk(A, vm=0)
        n = 3
    else:
        p2_chunk(A, vm=0, zero=True)
        n = 6
    if Cfg.bz:
        loop(A, "P2_L", n + 1, lambda: p2_chunk(A))
    else:
        loop(A, "P2_L", n, lambda: p2_chunk(A))
        p2_chunk(A, nobar=True)
    A("s_waitcnt lgkmcnt(0)")

def p2_epilogue(A, items_a, items_b):
    A.comment("P2 epilogue: GEGLU (+ interleaved attention loads)")
    c1 = -2.0 * 0.7978845608028654 * 1.4426950408889634
    c2 = c1 * 0.044715
    A("s_mov_b32 s%d, 0x%x" % (S_C, f32bits(c2)))
    A("s_mov_b32 s%d, 0x%x" % (S_C + 1, f32bits(c2)))
    A("s_mov_b32 s%d, 1.0" % (S_C + 2))
    A("s_mov_b32 s%d, 1.0" % (S_C + 3))
    C1 = 40
    A("v_mov_b32 v%d, 0x%x" % (C1, f32bits(c1)))
    A("v_mov_b32 v%d, 0x%x" % (C1 + 1, f32bits(c1)))
    A("s_lshl_b32 s%d, s%d, 2" % (S_T0, S_RB2))
    A("s_add_u32 s%d, s%d, s%d" % (S_T0, S_T0, S_WAVE))
    A("s_mul_i32 s%d, s%d, 86" % (S_T0, S_T0))
    A("s_mul_i32 s%d, s%d, 6" % (S_T1, S_CG2))
    A("s_add_u32 s%d, s%d, s%d" % (S_T0, S_T0, S_T1))
    A("s_lshl_b32 s%d, s%d, 10" % (S_T0, S_T0))
    A("s_add_u32 s%d, s%d, 0x%x" % (S_T0, S_T0, WS_HF))
    A("s_cmp_eq_u32 s%d, 15" % S_CG2)
    A("s_cselect_b32 s%d, 0x40000000, s%d" % (S_T0, S_T0))
    T = 32
    pa = split(items_a, 16); pb = split(items_b, 32)
    slots = pa + pb
    blk = [0]
    def slot():
        for it in slots[blk[0]]: emit(A, it)
        blk[0] += 1
    for u in range(3):
        G = V_ACC2 + 16 * u; U = V_ACC2 + 48 + 16 * u
        for grp in range(2):
            prs = [G + 8 * grp + 2 * i for i in range(4)]
            tm = [T + 2 * i for i in range(4)]
            for g, t in zip(prs, tm): A("v_pk_mul_f32 %s, %s, %s" % (vr(t, 2), vr(g, 2), vr(g, 2)))
            slot()
            for g, t in zip(prs, tm): A("v_pk_fma_f32 %s, %s, %s, %s" % (vr(t, 2), vr(t, 2), sr(S_C, 2), vr(C1, 2)))
            slot()
            for g, t in zip(prs, tm): A("v_pk_mul_f32 %s, %s, %s" % (vr(t, 2), vr(t, 2), vr(g, 2)))
            slot()
            for g, t in zip(prs, tm):
                A("v_exp_f32 v%d, v%d" % (t, t)); A("v_exp_f32 v%d, v%d" % (t + 1, t + 1))
            slot()
            for g, t in zip(prs, tm): A("v_pk_add_f32 %s, %s, %s" % (vr(t, 2), vr(t, 2), sr(S_C + 2, 2)))
            slot()
            for g, t in zip(prs, tm):
                A("v_rcp_f32 v%d, v%d" % (t, t)); A("v_rcp_f32 v%d, v%d" % (t + 1, t + 1))
            slot()
            for g, t in zip(prs, tm): A("v_pk_mul_f32 %s, %s, %s" % (vr(g, 2), vr(g, 2), vr(U + (g - G), 2)))
            slot()
            for g, t in zip(prs, tm): A("v_pk_mul_f32 %s, %s, %s" % (vr(t, 2), vr(t, 2), vr(g, 2)))
            P = 48 + 4 * grp + 8 * (u & 1)
            for i, t in enumerate(tm): A("v_cvt_pk_bf16_f32 v%d, v%d, v%d" % (P + i, t, t + 1))
            A("buffer_store_dwordx4 %s, v%d, s[%d:%d], s%d offen offset:%d%s" % (vr(P, 4), V_L16, S_WS, S_WS + 3, S_T0, grp * 1024, SC))
            slot()
        A("s_add_u32 s%d, s%d, 2048" % (S_T0, S_T0))
        if u == 0:
            A("s_cmp_eq_u32 s%d, 14" % S_CG2)
            A("s_cselect_b32 s%d, 0x40000000, s%d" % (S_T0, S_T0))

V_FL, V_DO, V_RA, V_FLG, V_VOFF, V_MXA = 6, 7, 8, 10, 12, 13
V_NRM = 14
V_S = [16, 32]
V_C = 48
V_P = 64
V_Q, V_QN = 72, 76
V_K = 80
V_O = 112
V_ACCB = 128
V_ACT = 160
V_WF = 176
A_V = 0
OSLOT = 2304
L_OB = 0
L_W = 73728
L_MX = L_W + 65536
NT = 8
V_FL4 = 0

def tile(A, t, extra=None, oinit=False, it=0):
    S = V_S[t & 1]; Sp = V_S[(t + 1) & 1]
    e = lambda i: "v_exp_f32 v%d, v%d" % (S + i, S + i)
    c = lambda j: "v_cvt_pk_bf16_f32 v%d, v%d, v%d" % (V_P + j, S + 2 * j, S + 2 * j + 1)
    c7p = "v_cvt_pk_bf16_f32 v%d, v%d, v%d" % (V_P + 7, Sp + 14, Sp + 15)
    tp = (t - 1) % NT
    pvb = mfma(vr(V_O, 16), ar(A_V + 4 * (2 * tp + 1), 4), vr(V_P + 4, 4), vr(V_O, 16))
    pva = mfma(vr(V_O, 16), ar(A_V + 4 * (2 * t), 4), vr(V_P, 4), "0" if (t == 0 and not oinit) else vr(V_O, 16))
    tn = (t + 1) % NT
    qreg = V_Q
    if Cfg.qalt:
        qi_ = it + (1 if t == NT - 1 else 0)
        qreg = V_Q if (qi_ & 1) == 0 else V_QN
    qk = mfma(vr(Sp, 16), vr(V_K + 4 * tn, 4), vr(qreg, 4), vr(V_C, 16))
    seq = [e(0), c7p, e(1), e(2), pvb, c(0), e(3), e(4), c(1), qk, e(5), e(6), c(2), e(7), e(8), c(3), e(9), e(10), None if oinit else pva,
           c(4), e(11), e(12), c(5), "X", e(13), e(14), c(6), e(15), "END"]
    if Cfg.ord2:
        seq = [e(0), c7p, e(1), e(2), c(0), pvb, e(3), e(4), c(1), e(5), e(6), qk, c(2), e(7), e(8), c(3), e(9), e(10), c(4),
               None if oinit else pva, e(11), e(12), c(5), "X", e(13), e(14), c(6), e(15), "END"]
    extra = extra or {}
    for i, ins in enumerate(seq):
        for l in extra.get(i, []): A(l)
        if ins == "X":
            for l in extra.get("x", []): A(l)
        elif ins == "END":
            if oinit:
                A("WAITDS:OI")
                A(pva)
        elif ins is not None:
            A(ins)

def flush_lines(slot):
    o = slot * OSLOT
    return ["ds_write_b128 v%d, %s offset:%d" % (V_FL, vr(V_O, 4), o),
            "ds_write_b128 v%d, %s offset:%d" % (V_FL, vr(V_O + 4, 4), o + 1024),
            "ds_write_b32 v%d, v%d offset:%d" % (V_FL4, V_O + 8, o + 2048)]
def oinit_lines(slot):
    o = slot * OSLOT
    return ["ds_read_b128 %s, v%d offset:%d" % (vr(V_O, 4), V_FL, o),
            "ds_read_b128 %s, v%d offset:%d" % (vr(V_O + 4, 4), V_FL, o + 1024),
            "ds_read_b32 v%d, v%d offset:%d" % (V_O + 8, V_FL4, o + 2048)]

S_KO, S_VO = S_GX, S_GW0
def attn_pre_valu(A):
    t0, t1 = V_T, V_T + 1
    A("s_lshl_b32 s%d, s%d, 16" % (S_T0, S_HEAD))
    A("s_lshl_b32 s%d, s%d, 13" % (S_T1, S_QB))
    A("s_add_u32 s%d, s%d, s%d" % (S_QOFF, S_T0, S_T1))
    A("s_lshr_b32 s%d, s%d, 2" % (S_T1, S_W8))
    A("s_lshl_b32 s%d, s%d, 12" % (S_T1, S_T1))
    A("s_add_u32 s%d, s%d, s%d" % (S_QOFF, S_QOFF, S_T1))
    A("s_add_u32 s%d, s%d, 0x%x" % (S_QOFF, S_QOFF, WS_QF))
    A("s_lshl_b32 s%d, s%d, 14" % (S_T1, S_WAVE))
    A("s_add_u32 s%d, s%d, s%d" % (S_T1, S_T1, S_T0))
    A("s_add_u32 s%d, s%d, 0x%x" % (S_KO, S_T1, WS_KF))
    A("s_add_u32 s%d, s%d, 0x%x" % (S_VO, S_T1, WS_VF))
    Z = V_QN
    for r in range(4): A("v_mov_b32 v%d, 0" % (Z + r))
    if Cfg.zrows:
        A("v_and_b32 v%d, 31, v%d" % (t1, V_LANE))
        A("v_cmp_eq_u32 vcc, 16, v%d" % t1)
        A("v_mov_b32 v%d, 0x3f803f80" % (t1))
        A("s_nop 1")
        A("v_cndmask_b32 v%d, 0, v%d, vcc" % (t0, t1))
    else:
        A("v_mov_b32 v%d, 0x3f803f80" % (t0))
    A("s_nop 0")
    for r in range(16): A("v_accvgpr_write_b32 a%d, v%d" % (A_V + r, t0))
    A("s_nop 1")
    for g in range(1, 4):
        A(mfma(ar(A_V + 16 * g, 16), vr(Z, 4), vr(Z, 4), ar(A_V, 16)))
    A("v_lshrrev_b32 v%d, 5, v%d" % (t0, V_LANE))
    A("v_lshlrev_b32 v%d, 8, v%d" % (t0, t0))
    A("v_and_b32 v%d, 15, v%d" % (t1, V_LANE))
    A("v_lshlrev_b32 v%d, 4, v%d" % (t1, t1))
    A("v_add_u32 v%d, v%d, v%d" % (V_VOFF, t0, t1))
    A("s_mov_b32 s%d, 0x0000ffff" % S_EXM)
    A("s_mov_b32 s%d, 0x0000ffff" % (S_EXM + 1))
    A("s_nop 7")

def attn_pre_loads(A):
    t0, t1 = V_T, V_T + 1
    A("v_lshlrev_b32 v%d, 2, v%d" % (t0, V_LANE))
    A("s_lshl_b32 s%d, s%d, 8" % (S_T0, S_HEAD))
    A("s_add_u32 s%d, s%d, 0x%x" % (S_T1, S_T0, WS_NK))
    A("buffer_load_dword v%d, v%d, s[%d:%d], s%d offen%s" % (V_NRM, t0, S_WS, S_WS + 3, S_T1, SC))
    A("v_and_b32 v%d, 7, v%d" % (t1, V_LANE))
    A("v_lshlrev_b32 v%d, 2, v%d" % (t1, t1))
    A("s_lshl_b32 s%d, s%d, 5" % (S_T2, S_QB))
    A("s_add_u32 s%d, s%d, s%d" % (S_T1, S_T0, S_T2))
    A("s_add_u32 s%d, s%d, 0x%x" % (S_T1, S_T1, WS_NQ))
    A("buffer_load_dword v%d, v%d, s[%d:%d], s%d offen%s" % (V_NRM + 1, t1, S_WS, S_WS + 3, S_T1, SC))
    A("buffer_load_dwordx4 %s, v%d, s[%d:%d], s%d offen%s" % (vr(V_Q, 4), V_L16, S_WS, S_WS + 3, S_QOFF, SC))

def attn_loads_pre(A):
    attn_pre_valu(A)
    attn_pre_loads(A)

def k_item(i):
    it = ["buffer_load_dwordx4 %s, v%d, s[%d:%d], s%d offen offset:%d%s" % (vr(V_K + 4 * i, 4), V_L16, S_WS, S_WS + 3, S_KO, (i & 3) * 1024, SC)]
    if i == 3: it.append("s_add_u32 s%d, s%d, 4096" % (S_KO, S_KO))
    return it
def v_item(i):
    it = ["s_mov_b64 exec, s[%d:%d]" % (S_EXM, S_EXM + 1)]
    for g in (2 * i, 2 * i + 1):
        it.append("buffer_load_dwordx4 %s, v%d, s[%d:%d], s%d offen offset:%d%s" % (ar(A_V + 4 * g, 4), V_VOFF, S_WS, S_WS + 3, S_VO, (g & 7) * 512, SC))
    it.append("s_mov_b64 exec, -1")
    if i == 3: it.append("s_add_u32 s%d, s%d, 4096" % (S_VO, S_VO))
    return it

def bound(A):
    M = V_NRM
    lane_reduce(A, [M, M + 1], [V_T, V_T + 1], "v_max_f32", "v_max_f32")
    A("v_mul_f32 v%d, v%d, v%d" % (M, M, M + 1))
    A("v_sqrt_f32 v%d, v%d" % (M, M))
    A("v_mov_b32 v%d, 0x42400000" % (M + 1))
    A("v_cmp_nle_f32 vcc, v%d, v%d" % (M, M + 1))
    A("v_sub_f32 v%d, 0, v%d" % (M, M))
    A("s_nop 1")
    A("s_cmp_lg_u64 vcc, 0")
    A("s_cselect_b32 s%d, 1, 0" % S_SLOW)
    for r in range(16): A("v_mov_b32 v%d, v%d" % (V_C + r, M))

def slow_set_c(A, tag, T, qi):
    A("s_cmp_eq_u32 s%d, 0" % S_SLOW)
    A("s_cbranch_scc1 SLOWC_%s" % tag)
    for kg in range(4):
        A("ds_read_b32 v%d, v%d offset:%d" % (T + kg, V_MXA, kg * 1024 + qi * 128))
    A("s_waitcnt lgkmcnt(0)")
    for kg in range(1, 4):
        A("v_max_f32 v%d, v%d, v%d" % (T, T, T + kg))
    A("v_sub_f32 v%d, 0, v%d" % (T, T))
    A("s_nop 7")
    for r in range(16): A("v_mov_b32 v%d, v%d" % (V_C + r, T))
    A("s_nop 1")
    A("SLOWC_%s:" % tag)

def slow_prepass(A):
    A("s_cmp_eq_u32 s%d, 0" % S_SLOW)
    A("s_cbranch_scc1 SLOWP_END")
    if not Cfg.bz: A("s_barrier")
    S0 = V_S[0]; MX = V_S[1]; AD = V_S[1] + 6
    A("v_and_b32 v%d, 31, v%d" % (AD, V_LANE))
    A("v_lshlrev_b32 v%d, 2, v%d" % (AD, AD))
    A("s_lshr_b32 s%d, s%d, 2" % (S_T0, S_W8))
    A("s_lshl_b32 s%d, s%d, 9" % (S_T0, S_T0))
    A("s_add_u32 s%d, s%d, %d" % (S_T0, S_T0, L_MX))
    A("v_add_u32 v%d, s%d, v%d" % (V_MXA, S_T0, AD))
    A("s_lshl_b32 s%d, s%d, 10" % (S_T0, S_WAVE))
    A("v_add_u32 v%d, s%d, v%d" % (AD, S_T0, V_MXA))
    for q in range(4): A("v_mov_b32 v%d, 0xff800000" % (MX + q))
    A("s_sub_u32 s%d, s%d, 4096" % (S_T3, S_KO))
    A("s_mov_b32 s%d, 0" % S_I)
    A("SLOWP_H:")
    for t in range(NT):
        A("s_add_u32 s%d, s%d, %d" % (S_T2, S_T3, t * 1024))
        A("buffer_load_dwordx4 %s, v%d, s[%d:%d], s%d offen%s" % (vr(V_K + 4 * t, 4), V_L16, S_WS, S_WS + 3, S_T2, SC))
    for q in range(4):
        A("s_add_u32 s%d, s%d, %d" % (S_T2, S_QOFF, q * 1024))
        A("buffer_load_dwordx4 %s, v%d, s[%d:%d], s%d offen%s" % (vr(V_QN, 4), V_L16, S_WS, S_WS + 3, S_T2, SC))
        A("s_waitcnt vmcnt(0)")
        for t in range(NT):
            A(mfma(vr(S0, 16), vr(V_K + 4 * t, 4), vr(V_QN, 4), "0"))
            A("s_nop 15")
            for r in range(0, 16, 2):
                A("v_max3_f32 v%d, v%d, v%d, v%d" % (MX + q, MX + q, S0 + r, S0 + r + 1))
            A("s_nop 1")
    A("s_add_u32 s%d, s%d, 8192" % (S_T3, S_T3))
    A("s_add_u32 s%d, s%d, 1" % (S_I, S_I))
    A("s_cmp_lt_u32 s%d, 2" % S_I)
    A("s_cbranch_scc1 SLOWP_H")
    for q in range(4):
        A("v_mov_b32 v%d, v%d" % (MX + 4, MX + q))
        A("s_nop 1")
        A("v_permlane32_swap_b32 v%d, v%d" % (MX + q, MX + 4))
        A("s_nop 1")
        A("v_max_f32 v%d, v%d, v%d" % (MX + q, MX + q, MX + 4))
        A("ds_write_b32 v%d, v%d offset:%d" % (AD, MX + q, q * 128))
    A("s_sub_u32 s%d, s%d, 4096" % (S_T3, S_KO))
    for t in range(NT):
        A("s_add_u32 s%d, s%d, %d" % (S_T2, S_T3, t * 1024))
        A("buffer_load_dwordx4 %s, v%d, s[%d:%d], s%d offen%s" % (vr(V_K + 4 * t, 4), V_L16, S_WS, S_WS + 3, S_T2, SC))
    A("s_waitcnt vmcnt(0) lgkmcnt(0)")
    A("s_barrier")
    slow_set_c(A, "P", V_S[1] + 8, 0)
    A("SLOWP_END:")

S_HSRD = 8
S_WD = 12
S_OUT = 16
def tail_setup(A):
    t0, t1, t2 = V_T, V_T + 1, V_T + 2
    A("s_and_b32 s%d, s2, 7" % S_T0)
    A("s_lshr_b32 s%d, s2, 3" % S_T1)
    A("s_lshl_b32 s%d, s%d, 2" % (S_RB3, S_T0))
    A("s_and_b32 s%d, s%d, 3" % (S_T2, S_T1))
    A("s_add_u32 s%d, s%d, s%d" % (S_RB3, S_RB3, S_T2))
    A("s_lshr_b32 s%d, s%d, 2" % (S_CB3, S_T1))
    A("v_lshrrev_b32 v%d, 3, v%d" % (t0, V_LANE))
    A("v_lshlrev_b32 v%d, 10, v%d" % (t0, t0))
    A("v_lshrrev_b32 v%d, 4, v%d" % (t1, V_LANE))
    A("v_and_b32 v%d, 1, v%d" % (t1, t1))
    A("v_lshlrev_b32 v%d, 2, v%d" % (t1, t1))
    A("v_and_b32 v%d, 7, v%d" % (t2, V_LANE))
    A("v_xor_b32 v%d, v%d, v%d" % (t1, t1, t2))
    A("v_lshlrev_b32 v%d, 4, v%d" % (t1, t1))
    A("v_add_u32 v%d, v%d, v%d" % (V_DO, t0, t1))
    A("s_lshl_b32 s%d, s%d, 13" % (S_LB, S_W8))
    A("s_add_u32 s%d, s%d, %d" % (S_LB, S_LB, L_W))
    A("v_and_b32 v%d, 15, v%d" % (t0, V_LANE))
    A("v_lshrrev_b32 v%d, 2, v%d" % (t0, t0))
    A("v_lshrrev_b32 v%d, 5, v%d" % (t1, V_LANE))
    A("v_lshlrev_b32 v%d, 2, v%d" % (t1, t1))
    A("v_add_u32 v%d, v%d, v%d" % (t1, t1, t0))
    A("v_lshlrev_b32 v%d, 7, v%d" % (t1, t1))
    A("v_lshrrev_b32 v%d, 1, v%d" % (t0, t0))
    A("v_lshlrev_b32 v%d, 6, v%d" % (t0, t0))
    A("v_add_u32 v%d, v%d, v%d" % (t1, t1, t0))
    A("v_lshrrev_b32 v%d, 4, v%d" % (t0, V_LANE))
    A("v_and_b32 v%d, 1, v%d" % (t0, t0))
    A("v_lshlrev_b32 v%d, 5, v%d" % (t0, t0))
    A("v_add_u32 v%d, v%d, v%d" % (t1, t1, t0))
    A("v_and_b32 v%d, 3, v%d" % (t0, V_LANE))
    A("v_lshlrev_b32 v%d, 3, v%d" % (t0, t0))
    A("v_add_u32 v%d, v%d, v%d" % (t1, t1, t0))
    A("v_add_u32 v%d, s%d, v%d" % (V_RA, S_LB, t1))
    A("v_xor_b32 v%d, 64, v%d" % (V_RA + 1, V_RA))
    A("s_lshl_b32 s%d, s%d, 1" % (S_T0, S_RB3))
    A("s_and_b32 s%d, s%d, 1" % (S_T1, S_W8))
    A("s_add_u32 s%d, s%d, s%d" % (S_T0, S_T0, S_T1))
    A("s_mul_i32 s%d, s%d, 86" % (S_T0, S_T0))
    A("s_lshr_b32 s%d, s%d, 1" % (S_T1, S_W8))
    A("s_mul_i32 s%d, s%d, %d" % (S_T1, S_T1, 22 if Cfg.n22 else 24))
    A("s_add_u32 s%d, s%d, s%d" % (S_T0, S_T0, S_T1))
    A("s_lshl_b32 s%d, s%d, 10" % (S_AO, S_T0))
    A("s_lshl_b32 s%d, s%d, 14" % (S_WO0, S_T1))
    A("s_lshl_b32 s%d, s%d, 7" % (S_T2, S_CB3))
    A("s_add_u32 s%d, s%d, s%d" % (S_WO0, S_WO0, S_T2))
    A("s_add_u32 s%d, s%d, 8192" % (S_WO1, S_WO0))
    A("s_lshl_b32 s%d, s%d, 7" % (S_FA, S_RB3))
    A("s_add_u32 s%d, s%d, 0x%x" % (S_FA, S_FA, WS_F2))
    A("v_and_b32 v%d, 31, v%d" % (V_FLG + 1, V_LANE))
    A("v_lshlrev_b32 v%d, 2, v%d" % (V_FLG + 1, V_FLG + 1))
    A("s_lshl_b32 s%d, s%d, 3" % (S_T0, S_WAVE))
    A("s_lshr_b32 s%d, s%d, 2" % (S_T1, S_W8))
    A("s_lshl_b32 s%d, s%d, 2" % (S_T1, S_T1))
    A("s_add_u32 s%d, s%d, s%d" % (S_T0, S_T0, S_T1))
    A("s_mul_i32 s%d, s%d, %d" % (S_T0, S_T0, OSLOT))
    A("v_add_u32 v%d, s%d, v%d" % (V_FL, S_T0, V_L16))
    A("v_lshlrev_b32 v%d, 2, v%d" % (V_FL4, V_LANE))
    A("v_add_u32 v%d, s%d, v%d" % (V_FL4, S_T0, V_FL4))

def tail_srds(A):
    srd(A, S_HSRD, P_WS, HF_BYTES, add=WS_HF)
    srd(A, S_WD, P_WD, 1376 * 1024)
    srd(A, S_OUT, P_OUT, 2048 * 1024)

def sh_load(slot):
    a = ["buffer_load_dwordx4 %s, v%d, s[%d:%d], s%d offen%s" % (vr(V_ACT + 4 * slot, 4), V_L16, S_HSRD, S_HSRD + 3, S_AO, SC),
         "s_add_u32 s%d, s%d, 1024" % (S_AO, S_AO)]
    b = ["s_add_u32 m0, s%d, %d" % (S_LB, slot * 2048), "s_nop 0",
         "buffer_load_dwordx4 v%d, s[%d:%d], s%d offen lds" % (V_DO, S_WD, S_WD + 3, S_WO0), "s_add_u32 s%d, s%d, 16384" % (S_WO0, S_WO0)]
    c = ["s_add_u32 m0, s%d, %d" % (S_LB, slot * 2048 + 1024), "s_nop 0",
         "buffer_load_dwordx4 v%d, s[%d:%d], s%d offen lds" % (V_DO, S_WD, S_WD + 3, S_WO1), "s_add_u32 s%d, s%d, 16384" % (S_WO1, S_WO1)]
    return a, b, c

def w_reads(slot, F):
    return ["ds_read_b64_tr_b16 %s, v%d offset:%d" % (vr(F + 4 * u + 2 * q, 2), V_RA + u, slot * 2048 + q * 1024) for u in range(2) for q in range(2)]

class Track:
    def __init__(self): self.vm = []; self.ds = []
    def resolve(self, A, lines):
        for l in lines:
            if l.startswith("VM:") or l.startswith("DS:"):
                tag, ins = l[3:].split("|", 1)
                (self.vm if l[0] == "V" else self.ds).append(tag); A(ins)
            elif l.startswith("WAITVM:") or l.startswith("WAITDS:"):
                ops = self.vm if l[4] == "V" else self.ds
                tag = l[7:]
                idx = max([k for k, t in enumerate(ops) if t == tag])
                n = len(ops) - 1 - idx
                if l[4] == "V": A("s_waitcnt vmcnt(%d)" % min(n, 63))
                else: A("s_waitcnt lgkmcnt(%d)" % min(n, 15))
            elif l.startswith("NT|"):
                A(l[3:])
            else:
                assert not (l.startswith("buffer_") or l.startswith("ds_") or l.startswith("global_")), l
                A(l)

def vmtag(tag, lines):
    return [("VM:%s|%s" % (tag, l)) if l.startswith("buffer_") else (("DS:%s|%s" % (tag, l)) if l.startswith("ds_") else l) for l in lines]

T_CHECK = 20
T_FIRST = 24
NSTEP = 24
def nstep(): return 22 if Cfg.n22 else 24
def tau(s): return T_FIRST + ((5 * s) // 3 if not Cfg.n22 else (20 * s) // 11)

def attn_all(B):
    X1, X2 = 13, 23
    ex = [dict() for _ in range(64)]
    def add(T, k, lines): ex[T].setdefault(k, []).extend(lines)
    if not Cfg.bz: add(16, 2, ["s_barrier"])
    if Cfg.prio_t is not None: add(Cfg.prio_t, 0, ["s_setprio 0"])
    if not Cfg.bdown: add(T_CHECK - 2, 6, ["VM:F|buffer_load_dword v%d, v%d, s[%d:%d], s%d offen sc1" % (V_FLG, V_FLG + 1, S_WS, S_WS + 3, S_FA)])
    if not Cfg.bdown: add(T_CHECK, 2, ["WAITVM:F", "v_cmp_ne_u32 vcc, s%d, v%d" % (S_NONCE, V_FLG), "s_nop 3", "s_and_b32 vcc_lo, vcc_lo, 0x3fffffff", "s_and_b32 vcc_hi, vcc_hi, 0x3fffffff",
                     "s_cmp_eq_u64 vcc, 0", "s_cbranch_scc1 S2_OK", "s_call_b64 s[0:1], S2_SPIN", "S2_OK:"])
    if Cfg.wtouch:
        add(2, 6, ["s_lshr_b32 s%d, s2, 3" % S_T0, "s_lshl_b32 s%d, s%d, 3" % (S_T0, S_T0), "s_add_u32 s%d, s%d, s%d" % (S_T0, S_T0, S_W8),
                   "s_mul_i32 s%d, s%d, %d" % (S_T1, S_T0, 43 * 128), "v_min_u32 v%d, 42, v%d" % (V_T, V_LANE), "v_lshlrev_b32 v%d, 7, v%d" % (V_T, V_T),
                   "VM:TD|buffer_load_dword v%d, v%d, s[%d:%d], s%d offen" % (V_T + 1, V_T, S_WD, S_WD + 3, S_T1)])
        Bs = Buf(); srd(Bs, 44, P_WO, 512 * 1024)
        add(4, 6, Bs.lines + ["s_lshr_b32 s%d, s2, 3" % S_T0, "s_lshl_b32 s%d, s%d, 3" % (S_T0, S_T0), "s_add_u32 s%d, s%d, s%d" % (S_T0, S_T0, S_W8),
                   "s_lshl_b32 s%d, s%d, 11" % (S_T1, S_T0), "v_and_b32 v%d, 15, v%d" % (V_T, V_LANE), "v_lshlrev_b32 v%d, 7, v%d" % (V_T, V_T),
                   "VM:TO|buffer_load_dword v%d, v%d, s[44:47], s%d offen" % (V_T + 2, V_T, S_T1)])
    if Cfg.t2 or Cfg.dp2:
        Bs = Buf(); srd(Bs, 44, P_WO, 512 * 1024)
        tl = list(Bs.lines)
        if Cfg.t2touch and not Cfg.bdown:
            tl += ["s_lshr_b32 s%d, s2, 3" % S_T0, "s_lshl_b32 s%d, s%d, 3" % (S_T0, S_T0), "s_add_u32 s%d, s%d, s%d" % (S_T0, S_T0, S_W8),
                   "s_lshl_b32 s%d, s%d, 11" % (S_T1, S_T0), "v_and_b32 v%d, 15, v%d" % (V_T, V_LANE), "v_lshlrev_b32 v%d, 7, v%d" % (V_T, V_T),
                   "VM:TO|buffer_load_dword v%d, v%d, s[44:47], s%d offen" % (V_T + 2, V_T, S_T1)]
        add(10, 6, tl)
        if Cfg.t2: add(47, 6, ["VM:FG|buffer_load_dword v%d, v%d, s[%d:%d], s%d offen sc1" % (V_FLG, V_FLG + 1, S_WS, S_WS + 3, S_FA)])
        if Cfg.t2: add(53, 2, ["WAITVM:FG", "v_cmp_ne_u32 vcc, s%d, v%d" % (S_NONCE, V_FLG), "s_nop 3",
                    "s_cmp_eq_u64 vcc, 0", "s_cbranch_scc1 FG_OK", "s_call_b64 s[0:1], FG_SPIN", "FG_OK:",
                    "v_and_b32 v%d, 31, v%d" % (V_T, V_LANE), "v_lshlrev_b32 v%d, 2, v%d" % (V_T, V_T),
                    "s_lshl_b32 s%d, s%d, 1" % (S_T0, S_RB3), "s_and_b32 s%d, s%d, 1" % (S_T1, S_W8), "s_add_u32 s%d, s%d, s%d" % (S_T0, S_T0, S_T1),
                    "s_lshl_b32 s%d, s%d, 7" % (S_T0, S_T0), "s_add_u32 s%d, s%d, 0x%x" % (S_T0, S_T0, WS_G),
                    "VM:G|buffer_load_dword v%d, v%d, s[%d:%d], s%d offen%s" % (V_G, V_T, S_WS, S_WS + 3, S_T0, SC)])
        wo_t = [None] * 4
        for k_ in range(nstep() - 4, nstep()): wo_t[k_ & 3] = min(63, tau(k_) + 1)
        if not Cfg.bdown: add(min(wo_t), 2, ["s_lshl_b32 s%d, s%d, 16" % (S_WO0, S_W8), "s_lshl_b32 s%d, s%d, 7" % (S_T1, S_CB3), "s_add_u32 s%d, s%d, s%d" % (S_WO0, S_WO0, S_T1),
                    "s_add_u32 s%d, s%d, 8192" % (S_WO1, S_WO0)])
        for i_, T_ in enumerate(wo_t if not Cfg.bdown else ()):
            add(T_, 7, ["s_add_u32 m0, s%d, %d" % (S_LB, i_ * 2048), "s_add_u32 s%d, s%d, %d" % (S_T2, S_WO0, i_ * 16384),
                        "VM:WO|buffer_load_dwordx4 v%d, s[44:47], s%d offen lds" % (V_DO, S_T2)])
            add(T_, 12, ["s_add_u32 m0, s%d, %d" % (S_LB, i_ * 2048 + 1024), "s_add_u32 s%d, s%d, %d" % (S_T2, S_WO1, i_ * 16384),
                         "VM:WO|buffer_load_dwordx4 v%d, s[44:47], s%d offen lds" % (V_DO, S_T2)])
    if Cfg.dp:
        add(46, 2, ["s_lshl_b32 s%d, s%d, 9" % (S_T0, S_W8), "s_add_u32 s%d, s%d, 0x%x" % (S_T0, S_T0, WS_F1),
                    "v_lshlrev_b32 v%d, 3, v%d" % (V_T, V_LANE),
                    "VM:FA|buffer_load_dwordx2 %s, v%d, s[%d:%d], s%d offen sc1" % (vr(V_T + 1, 2), V_T, S_WS, S_WS + 3, S_T0)])
        add(47, 6, ["VM:FG|buffer_load_dword v%d, v%d, s[%d:%d], s%d offen sc1" % (V_FLG, V_FLG + 1, S_WS, S_WS + 3, S_FA)])
        add(53, 2, ["WAITVM:FG", "v_cmp_ne_u32 vcc, s%d, v%d" % (S_NONCE, V_T + 1), "v_cmp_ne_u32 s[%d:%d], s%d, v%d" % (S_T2, S_T3, S_NONCE, V_T + 2),
                    "s_nop 3", "s_or_b64 vcc, vcc, s[%d:%d]" % (S_T2, S_T3),
                    "v_cmp_ne_u32 s[%d:%d], s%d, v%d" % (S_T2, S_T3, S_NONCE, V_FLG), "s_nop 3", "s_or_b64 vcc, vcc, s[%d:%d]" % (S_T2, S_T3),
                    "s_cmp_eq_u64 vcc, 0", "s_cbranch_scc1 FA_OK", "s_call_b64 s[0:1], FA_SPIN", "FA_OK:",
                    "v_and_b32 v%d, 31, v%d" % (V_T, V_LANE), "v_lshlrev_b32 v%d, 2, v%d" % (V_T, V_T),
                    "s_lshl_b32 s%d, s%d, 1" % (S_T0, S_RB3), "s_and_b32 s%d, s%d, 1" % (S_T1, S_W8), "s_add_u32 s%d, s%d, s%d" % (S_T0, S_T0, S_T1),
                    "s_lshl_b32 s%d, s%d, 7" % (S_T0, S_T0), "s_add_u32 s%d, s%d, 0x%x" % (S_T0, S_T0, WS_G),
                    "VM:G|buffer_load_dword v%d, v%d, s[%d:%d], s%d offen%s" % (V_G, V_T, S_WS, S_WS + 3, S_T0, SC)])
    used = {}
    for s_ in range(nstep() if ("nosh" not in Cfg.exp and not Cfg.bdown) else 0):
        TL = (T_CHECK + 1 + s_) if s_ < 3 else tau(s_ - 3)
        a, b, c = sh_load(s_ & 3)
        if s_ >= 86 - 3 * (22 if Cfg.n22 else 24):
            a = ["s_cmp_ge_u32 s%d, 6" % S_W8, "s_cselect_b32 s%d, 0x40000000, s%d" % (S_T0, S_AO),
                 a[0].replace("s%d offen" % S_AO, "s%d offen" % S_T0), a[1]]
        if "nosalu" in Cfg.exp:
            a = [l for l in a if l.startswith("buffer")]; b = [l for l in b if l.startswith("buffer")]; c = [l for l in c if l.startswith("buffer")]
        if "novm" in Cfg.exp:
            a = ["VM:L%d|s_nop 0" % s_]; b = []; c = []
            add(TL, 20, a)
        else:
            add(TL, 6, vmtag("L%d" % s_, b)); add(TL, 11, vmtag("L%d" % s_, c)); add(TL, 20, vmtag("L%d" % s_, a))
        TR = tau(s_) - 1
        if "nods" in Cfg.exp:
            add(TR, 26, ["WAITVM:L%d" % s_, "DS:W%d|s_nop 0" % s_])
        else:
            add(TR, 26, ["WAITVM:L%d" % s_] + vmtag("W%d" % s_, w_reads(s_ & 3, V_WF + 8 * (s_ & 1))))
        for u in range(2):
            T = tau(s_) + u
            d = vr(V_ACCB + 16 * u, 16)
            m = mfma(d, vr(V_WF + 8 * (s_ & 1) + 4 * u, 4), vr(V_ACT + 4 * (s_ & 3), 4), d)
            if "nox" in Cfg.exp: m = "s_nop 0"
            if u == 0:
                add(T, X2, ["WAITDS:W%d" % s_, m]); used[(T, X2)] = 1
            else:
                pos = X1 if (T, X1) not in used and any(tau(k) == T for k in range(nstep())) else X2
                add(T, pos, [m]); used[(T, pos)] = 1
    for it in range(8):
        qi = it & 3
        for t in range(NT):
            T = 8 * it + t
            oinit = (it >= 4 and t == 0)
            if t == 0:
                if it > 0:
                    fl = vmtag("O", flush_lines((it - 1) & 3))
                    if oinit: fl = fl + vmtag("OI", oinit_lines(qi))
                    add(T, 18 if Cfg.ord2 else 17, fl)
                add(T, 2, ["s_add_u32 s%d, s%d, %d" % (S_T0, S_QOFF, ((it + 1) & 3) * 1024),
                           "VM:Q%d|buffer_load_dwordx4 %s, v%d, s[%d:%d], s%d offen%s" % (it, vr(V_QN if (not Cfg.qalt or (it & 1) == 0) else V_Q, 4), V_L16, S_WS, S_WS + 3, S_T0, SC)])
            if it == 3:
                if t == 0: add(T, 3, ["s_add_u32 s%d, s%d, 4096" % (S_KO, S_KO)])
                kl = ["VM:K%d|buffer_load_dwordx4 %s, v%d, s[%d:%d], s%d offen offset:%d%s" % (t, vr(V_K + 4 * t, 4), V_L16, S_WS, S_WS + 3, S_KO, (t & 3) * 1024, SC)]
                if t == 3: kl.append("s_add_u32 s%d, s%d, 4096" % (S_KO, S_KO))
                add(T, 14, kl)
            if (it == 3 and t >= 1) or (it == 4 and t == 0):
                tv = (t - 1) % NT
                vl = []
                if tv == 0 or tv == 4: vl.append("s_add_u32 s%d, s%d, 4096" % (S_VO, S_VO))
                vl.append("s_mov_b64 exec, s[%d:%d]" % (S_EXM, S_EXM + 1))
                for gq in (2 * tv, 2 * tv + 1):
                    vl.append("VM:V%d|buffer_load_dwordx4 %s, v%d, s[%d:%d], s%d offen offset:%d%s" % (tv, ar(A_V + 4 * gq, 4), V_VOFF, S_WS, S_WS + 3, S_VO, (gq & 7) * 512, SC))
                vl.append("s_mov_b64 exec, -1")
                add(T, 7, vl)
            if it == 3 and t == 7: add(T, 8, ["WAITVM:K0"])
            if it == 4:
                if t < 7: add(T, 8, ["WAITVM:K%d" % (t + 1)])
                add(T, 16, ["WAITVM:V%d" % t])
            if t == 7:
                add(T, 1, ["WAITVM:Q%d" % it])
                if not Cfg.qalt: add(T, 2, ["v_mov_b32 v%d, v%d" % (V_Q + r, V_QN + r) for r in range(4)])
                Bf = Buf(); slow_set_c(Bf, "I%d" % it, V_S[0], (it + 1) & 3)
                for l in Bf.lines:
                    B(("NT|" + l) if l.startswith("ds_") else l)
            e_ = dict(ex[T]);
            if X2 in e_: e_["x"] = e_.pop(X2)
            tile(B, t, e_, oinit, it)

V_BACC = 128
def b_ffn_down(A):
    A.comment("==== FFN down (B waves, standalone) ====")
    D = Cfg.bd_depth
    RING, WFB, RB = 16, 112, 64
    S_A1, S_L2 = 44, 45
    A("s_mov_b32 s%d, 0" % S_SPIN)
    A("BD_S2:")
    A("buffer_load_dword v%d, v%d, s[%d:%d], s%d offen sc1" % (V_FLG, V_FLG + 1, S_WS, S_WS + 3, S_FA))
    A("s_waitcnt vmcnt(0)")
    A("v_cmp_ne_u32 vcc, s%d, v%d" % (S_NONCE, V_FLG))
    A("s_add_u32 s%d, s%d, 1" % (S_SPIN, S_SPIN))
    A("s_nop 3")
    A("s_and_b32 vcc_lo, vcc_lo, 0x3fffffff")
    A("s_and_b32 vcc_hi, vcc_hi, 0x3fffffff")
    A("s_cmp_gt_u32 s%d, 400000" % S_SPIN)
    A("s_cbranch_scc1 BD_S2_OK")
    A("s_cmp_eq_u64 vcc, 0")
    A("s_cbranch_scc1 BD_S2_OK")
    A("s_sleep 4")
    A("s_branch BD_S2")
    A("BD_S2_OK:")
    stamp(A, 6)
    A("s_lshl_b32 s%d, s%d, 1" % (S_T0, S_RB3))
    A("s_mul_i32 s%d, s%d, 86" % (S_T0, S_T0))
    A("s_mul_i32 s%d, s%d, 22" % (S_T1, S_WAVE))
    A("s_add_u32 s%d, s%d, s%d" % (S_T0, S_T0, S_T1))
    A("s_lshl_b32 s%d, s%d, 10" % (S_AO, S_T0))
    A("s_add_u32 s%d, s%d, %d" % (S_A1, S_AO, 86 * 1024))
    A("s_lshl_b32 s%d, s%d, 14" % (S_WO0, S_T1))
    A("s_lshl_b32 s%d, s%d, 7" % (S_T2, S_CB3))
    A("s_add_u32 s%d, s%d, s%d" % (S_WO0, S_WO0, S_T2))
    A("s_add_u32 s%d, s%d, 8192" % (S_WO1, S_WO0))
    A("s_lshl_b32 s%d, s%d, 14" % (S_L2, S_WAVE))
    A("s_add_u32 s%d, s%d, %d" % (S_L2, S_L2, L_W))
    A("s_sub_u32 s%d, s%d, s%d" % (S_T0, S_L2, S_LB))
    A("v_add_u32 v%d, s%d, v%d" % (RB, S_T0, V_RA))
    A("v_add_u32 v%d, s%d, v%d" % (RB + 1, S_T0, V_RA + 1))
    B = Buf()
    N = 22
    def L(i):
        r = RING + 8 * (i % D); sl = (i % 8) * 2048
        B("VM:L%d|buffer_load_dwordx4 %s, v%d, s[%d:%d], s%d offen%s" % (i, vr(r, 4), V_L16, S_HSRD, S_HSRD + 3, S_AO, SC))
        B("s_add_u32 m0, s%d, %d" % (S_L2, sl))
        B("VM:L%d|buffer_load_dwordx4 %s, v%d, s[%d:%d], s%d offen%s" % (i, vr(r + 4, 4), V_L16, S_HSRD, S_HSRD + 3, S_A1, SC))
        B("VM:L%d|buffer_load_dwordx4 v%d, s[%d:%d], s%d offen lds" % (i, V_DO, S_WD, S_WD + 3, S_WO0))
        B("s_add_u32 m0, s%d, %d" % (S_L2, sl + 1024))
        B("s_add_u32 s%d, s%d, 1024" % (S_AO, S_AO))
        B("VM:L%d|buffer_load_dwordx4 v%d, s[%d:%d], s%d offen lds" % (i, V_DO, S_WD, S_WD + 3, S_WO1))
        B("s_add_u32 s%d, s%d, 1024" % (S_A1, S_A1))
        B("s_add_u32 s%d, s%d, 16384" % (S_WO0, S_WO0))
        B("s_add_u32 s%d, s%d, 16384" % (S_WO1, S_WO1))
    def R(i):
        F = WFB + 8 * (i & 1)
        B("WAITVM:L%d" % i)
        for u in range(2):
            for q in range(2):
                B("DS:W%d|ds_read_b64_tr_b16 %s, v%d offset:%d" % (i, vr(F + 4 * u + 2 * q, 2), RB + u, (i % 8) * 2048 + q * 1024))
    for i in range(D): L(i)
    R(0)
    for i in range(N):
        if i + 1 < N: R(i + 1)
        B("WAITDS:W%d" % i)
        F = WFB + 8 * (i & 1); r = RING + 8 * (i % D)
        for u in range(2):
            for mt in range(2):
                d = vr(V_BACC + 16 * (2 * u + mt), 16)
                B(mfma(d, vr(F + 4 * u, 4), vr(r + 4 * mt, 4), "0" if i == 0 else d))
        if i + D < N: L(i + D)
    Track().resolve(A, B.lines)
    A("s_waitcnt lgkmcnt(0)")
    srd(A, S_WD, P_WO, 512 * 1024)
    A("s_lshl_b32 s%d, s%d, 17" % (S_WO0, S_WAVE))
    A("s_lshl_b32 s%d, s%d, 7" % (S_T1, S_CB3))
    A("s_add_u32 s%d, s%d, s%d" % (S_WO0, S_WO0, S_T1))
    A("s_add_u32 s%d, s%d, 8192" % (S_WO1, S_WO0))
    for i in range(8):
        A("s_add_u32 m0, s%d, %d" % (S_L2, i * 2048)); A("s_nop 0")
        A("buffer_load_dwordx4 v%d, s[%d:%d], s%d offen lds" % (V_DO, S_WD, S_WD + 3, S_WO0))
        A("s_add_u32 m0, s%d, %d" % (S_L2, i * 2048 + 1024)); A("s_add_u32 s%d, s%d, 16384" % (S_WO0, S_WO0))
        A("buffer_load_dwordx4 v%d, s[%d:%d], s%d offen lds" % (V_DO, S_WD, S_WD + 3, S_WO1))
        A("s_add_u32 s%d, s%d, 16384" % (S_WO1, S_WO1))

V_B8 = 24
def tail_bd(A):
    attn_epilogue(A)
    A("s_waitcnt vmcnt(0)")
    A("s_lshl_b32 s%d, s%d, 2" % (S_T0, S_QB))
    A("s_lshr_b32 s%d, s%d, 1" % (S_T1, S_W8))
    A("s_add_u32 s%d, s%d, s%d" % (S_T0, S_T0, S_T1))
    A("s_lshl_b32 s%d, s%d, 8" % (S_T0, S_T0))
    A("s_lshl_b32 s%d, s%d, 1" % (S_T1, S_HEAD))
    A("s_and_b32 s%d, s%d, 1" % (S_T2, S_W8))
    A("s_add_u32 s%d, s%d, s%d" % (S_T1, S_T1, S_T2))
    A("s_lshl_b32 s%d, s%d, 2" % (S_T1, S_T1))
    A("s_add_u32 s%d, s%d, s%d" % (S_T0, S_T0, S_T1))
    A("s_add_u32 s%d, s%d, 0x%x" % (S_T0, S_T0, WS_F3))
    store_flag(A, S_T0)
    stamp(A, 10)
    A("s_barrier")
    A("s_cmp_lt_u32 s%d, 4" % S_W8)
    A("s_cbranch_scc1 BD_NOW")
    A("s_lshl_b32 s%d, s%d, 14" % (S_T0, S_WAVE))
    A("v_add_u32 v%d, s%d, v%d" % (V_T, S_T0, V_L16))
    for tl in range(4):
        for q in range(4):
            A("ds_write_b128 v%d, %s offset:%d" % (V_T, vr(V_BACC + 16 * tl + 4 * q, 4), tl * 4096 + q * 1024))
    A("BD_NOW:")
    A("s_waitcnt lgkmcnt(0)")
    for i in range(8):
        emit(A, w_reads(i, V_WF8 + 8 * i))
        if i % 3 == 2: A("s_waitcnt lgkmcnt(0)")
    A("s_waitcnt lgkmcnt(0)")
    A("s_barrier")
    A("s_and_b32 s%d, s%d, 1" % (S_T0, S_W8))
    A("s_lshr_b32 s%d, s%d, 1" % (S_T1, S_W8))
    A("s_and_b32 s%d, s%d, 1" % (S_T1, S_T1))
    A("s_lshl_b32 s%d, s%d, 1" % (S_T1, S_T1))
    A("s_add_u32 s%d, s%d, s%d" % (S_T0, S_T0, S_T1))
    A("s_lshl_b32 s%d, s%d, 12" % (S_T0, S_T0))
    A("s_lshr_b32 s%d, s%d, 2" % (S_T1, S_W8))
    A("s_lshl_b32 s%d, s%d, 11" % (S_T1, S_T1))
    A("s_add_u32 s%d, s%d, s%d" % (S_T0, S_T0, S_T1))
    A("v_add_u32 v%d, s%d, v%d" % (V_T, S_T0, V_L16))
    R = 128
    for kq in range(4):
        for q in range(2):
            A("ds_read_b128 %s, v%d offset:%d" % (vr(R + 8 * kq + 4 * q, 4), V_T, kq * 16384 + q * 1024))
    A("v_sub_f32 v%d, 1.0, v%d" % (V_G + 1, V_G))
    A("s_waitcnt lgkmcnt(0)")
    for r in range(8):
        A("v_add_f32 v%d, v%d, v%d" % (R + r, R + r, R + 8 + r))
        A("v_add_f32 v%d, v%d, v%d" % (R + 16 + r, R + 16 + r, R + 24 + r))
    for r in range(8):
        A("v_add_f32 v%d, v%d, v%d" % (R + r, R + r, R + 16 + r))
    for r in range(8):
        A("v_mul_f32 v%d, v%d, v%d" % (V_B8 + r, V_G + 1, R + r))
    A("s_cmp_lg_u32 s%d, 0" % S_W8)
    A("s_cbranch_scc1 S3_SKIP")
    poll_flags(A, "3", WS_F3, S_RB3, 0, 64)
    A("S3_SKIP:")
    A("s_barrier")
    stamp(A, 11)
    outproj(A)

def s2_spin(A):
    A("S2_SPIN:")
    A("s_mov_b32 s%d, 0" % S_SPIN)
    A("S2_SPIN_L:")
    A("buffer_load_dword v%d, v%d, s[%d:%d], s%d offen sc1" % (V_FLG, V_FLG + 1, S_WS, S_WS + 3, S_FA))
    A("s_waitcnt vmcnt(0)")
    A("v_cmp_ne_u32 vcc, s%d, v%d" % (S_NONCE, V_FLG))
    A("s_add_u32 s%d, s%d, 1" % (S_SPIN, S_SPIN))
    A("s_nop 3")
    A("s_and_b32 vcc_lo, vcc_lo, 0x3fffffff")
    A("s_and_b32 vcc_hi, vcc_hi, 0x3fffffff")
    A("s_cmp_gt_u32 s%d, 400000" % S_SPIN)
    A("s_cbranch_scc1 S2_SPIN_D")
    A("s_cmp_eq_u64 vcc, 0")
    A("s_cbranch_scc1 S2_SPIN_D")
    A("s_sleep %d" % Cfg.s2sleep)
    A("s_branch S2_SPIN_L")
    A("S2_SPIN_D:")
    A("s_setpc_b64 s[0:1]")

def fa_spin(A):
    A("FA_SPIN:")
    A("s_mov_b32 s%d, 0" % S_SPIN)
    A("FA_SPIN_L:")
    A("s_lshl_b32 s%d, s%d, 9" % (S_T0, S_W8))
    A("s_add_u32 s%d, s%d, 0x%x" % (S_T0, S_T0, WS_F1))
    A("v_lshlrev_b32 v%d, 3, v%d" % (V_T, V_LANE))
    A("buffer_load_dwordx2 %s, v%d, s[%d:%d], s%d offen sc1" % (vr(V_T + 1, 2), V_T, S_WS, S_WS + 3, S_T0))
    A("buffer_load_dword v%d, v%d, s[%d:%d], s%d offen sc1" % (V_FLG, V_FLG + 1, S_WS, S_WS + 3, S_FA))
    A("s_waitcnt vmcnt(0)")
    A("v_cmp_ne_u32 vcc, s%d, v%d" % (S_NONCE, V_T + 1))
    A("v_cmp_ne_u32 s[%d:%d], s%d, v%d" % (S_T2, S_T3, S_NONCE, V_T + 2))
    A("s_nop 3")
    A("s_or_b64 vcc, vcc, s[%d:%d]" % (S_T2, S_T3))
    A("v_cmp_ne_u32 s[%d:%d], s%d, v%d" % (S_T2, S_T3, S_NONCE, V_FLG))
    A("s_add_u32 s%d, s%d, 1" % (S_SPIN, S_SPIN))
    A("s_nop 3")
    A("s_or_b64 vcc, vcc, s[%d:%d]" % (S_T2, S_T3))
    A("s_cmp_gt_u32 s%d, 400000" % S_SPIN)
    A("s_cbranch_scc1 FA_SPIN_D")
    A("s_cmp_eq_u64 vcc, 0")
    A("s_cbranch_scc1 FA_SPIN_D")
    A("s_sleep 4")
    A("s_branch FA_SPIN_L")
    A("FA_SPIN_D:")
    A("s_setpc_b64 s[0:1]")

def fg_spin(A):
    A("FG_SPIN:")
    A("s_mov_b32 s%d, 0" % S_SPIN)
    A("FG_SPIN_L:")
    A("buffer_load_dword v%d, v%d, s[%d:%d], s%d offen sc1" % (V_FLG, V_FLG + 1, S_WS, S_WS + 3, S_FA))
    A("s_waitcnt vmcnt(0)")
    A("v_cmp_ne_u32 vcc, s%d, v%d" % (S_NONCE, V_FLG))
    A("s_add_u32 s%d, s%d, 1" % (S_SPIN, S_SPIN))
    A("s_nop 3")
    A("s_cmp_gt_u32 s%d, 400000" % S_SPIN)
    A("s_cbranch_scc1 FG_SPIN_D")
    A("s_cmp_eq_u64 vcc, 0")
    A("s_cbranch_scc1 FG_SPIN_D")
    A("s_sleep 4")
    A("s_branch FG_SPIN_L")
    A("FG_SPIN_D:")
    A("s_setpc_b64 s[0:1]")

def tail_t2(A):
    attn_epilogue(A)
    A("s_waitcnt vmcnt(0)")
    A("s_lshl_b32 s%d, s%d, 2" % (S_T0, S_QB))
    A("s_lshr_b32 s%d, s%d, 1" % (S_T1, S_W8))
    A("s_add_u32 s%d, s%d, s%d" % (S_T0, S_T0, S_T1))
    A("s_lshl_b32 s%d, s%d, 8" % (S_T0, S_T0))
    A("s_lshl_b32 s%d, s%d, 1" % (S_T1, S_HEAD))
    A("s_and_b32 s%d, s%d, 1" % (S_T2, S_W8))
    A("s_add_u32 s%d, s%d, s%d" % (S_T1, S_T1, S_T2))
    A("s_lshl_b32 s%d, s%d, 2" % (S_T1, S_T1))
    A("s_add_u32 s%d, s%d, s%d" % (S_T0, S_T0, S_T1))
    A("s_add_u32 s%d, s%d, 0x%x" % (S_T0, S_T0, WS_F3))
    store_flag(A, S_T0)
    stamp(A, 10)
    A("s_barrier")
    for i in range(8):
        emit(A, w_reads(i, V_WF8 + 8 * i))
        if i % 3 == 2: A("s_waitcnt lgkmcnt(0)")
    A("v_sub_f32 v%d, 1.0, v%d" % (V_G + 1, V_G))
    for r in range(32):
        A("v_mul_f32 v%d, v%d, v%d" % (V_ACCB + r, V_G + 1, V_ACCB + r))
    A("s_waitcnt lgkmcnt(0)")
    A("s_cmp_lg_u32 s%d, 0" % S_W8)
    A("s_cbranch_scc1 S3_SKIP")
    poll_flags(A, "3", WS_F3, S_RB3, 0, 64)
    A("S3_SKIP:")
    A("s_barrier")
    stamp(A, 11)
    outproj(A)

def o_loads(A):
    for i in range(8):
        A("buffer_load_dwordx4 %s, v%d, s[%d:%d], s%d offen offset:%d%s" % (vr(V_ACT8 + 4 * i, 4), V_L16, S_WS, S_WS + 3, S_AO if i < 4 else S_WO0, (i & 3) * 1024, SC))

def tail_dp(A):
    attn_epilogue(A)
    A("s_lshl_b32 s%d, s%d, 1" % (S_T0, S_RB3))
    A("s_and_b32 s%d, s%d, 1" % (S_T1, S_W8))
    A("s_add_u32 s%d, s%d, s%d" % (S_T0, S_T0, S_T1))
    A("s_lshl_b32 s%d, s%d, 15" % (S_AO, S_T0))
    A("s_lshr_b32 s%d, s%d, 1" % (S_T1, S_W8))
    A("s_lshl_b32 s%d, s%d, 13" % (S_T1, S_T1))
    A("s_add_u32 s%d, s%d, s%d" % (S_AO, S_AO, S_T1))
    A("s_add_u32 s%d, s%d, 0x%x" % (S_AO, S_AO, WS_OF))
    A("s_add_u32 s%d, s%d, 4096" % (S_WO0, S_AO))
    o_loads(A)
    A("s_waitcnt vmcnt(9)")
    stamp(A, 10)
    A("s_barrier")
    for i in range(8):
        emit(A, w_reads(i, V_WF8 + 8 * i))
        if i % 3 == 2: A("s_waitcnt lgkmcnt(0)")
    A("v_sub_f32 v%d, 1.0, v%d" % (V_G + 1, V_G))
    for r in range(32):
        A("v_mul_f32 v%d, v%d, v%d" % (V_ACCB + r, V_G + 1, V_ACCB + r))
    A("s_waitcnt lgkmcnt(0)")
    A("s_barrier")
    A("s_mov_b32 s%d, 0" % S_SPIN)
    A("O_POLL:")
    A("s_waitcnt vmcnt(0)")
    T = 16
    for i in range(8):
        b = V_ACT8 + 4 * i
        A("v_max3_u32 v%d, v%d, v%d, v%d" % (T + i, b, b + 1, b + 2))
    for i in range(8):
        A("v_max_u32 v%d, v%d, v%d" % (T + i, T + i, V_ACT8 + 4 * i + 3))
    A("v_max3_u32 v%d, v%d, v%d, v%d" % (T, T, T + 1, T + 2))
    A("v_max3_u32 v%d, v%d, v%d, v%d" % (T + 3, T + 3, T + 4, T + 5))
    A("v_max3_u32 v%d, v%d, v%d, v%d" % (T, T, T + 6, T + 7))
    A("v_max_u32 v%d, v%d, v%d" % (T, T, T + 3))
    A("v_cmp_eq_u32 vcc, -1, v%d" % T)
    A("s_add_u32 s%d, s%d, 1" % (S_SPIN, S_SPIN))
    A("s_nop 3")
    A("s_cmp_eq_u64 vcc, 0")
    A("s_cbranch_scc1 O_OK")
    A("s_cmp_gt_u32 s%d, 400000" % S_SPIN)
    A("s_cbranch_scc1 O_OK")
    A("s_sleep %d" % Cfg.dpsleep)
    if Cfg.dplight:
        A("O_LIGHT:")
        A("v_lshrrev_b32 v%d, 3, v%d" % (T + 8, V_LANE))
        A("v_lshlrev_b32 v%d, 10, v%d" % (T + 8, T + 8))
        A("v_and_b32 v%d, 7, v%d" % (T + 9, V_LANE))
        A("v_lshlrev_b32 v%d, 7, v%d" % (T + 9, T + 9))
        A("v_add_u32 v%d, v%d, v%d" % (T + 8, T + 8, T + 9))
        A("buffer_load_dword v%d, v%d, s[%d:%d], s%d offen%s" % (T + 9, T + 8, S_WS, S_WS + 3, S_AO, SC))
        A("s_waitcnt vmcnt(0)")
        A("v_cmp_eq_u32 vcc, -1, v%d" % (T + 9))
        A("s_add_u32 s%d, s%d, 1" % (S_SPIN, S_SPIN))
        A("s_nop 3")
        A("s_cmp_eq_u64 vcc, 0")
        A("s_cbranch_scc1 O_RELOAD")
        A("s_cmp_gt_u32 s%d, 400000" % S_SPIN)
        A("s_cbranch_scc1 O_RELOAD")
        A("s_sleep %d" % Cfg.dpsleep)
        A("s_branch O_LIGHT")
        A("O_RELOAD:")
    o_loads(A)
    A("s_branch O_POLL")
    A("O_OK:")
    stamp(A, 11)
    for i in range(8):
        for u in range(2):
            d = vr(V_ACCA + 16 * u, 16)
            A(mfma(d, vr(V_WF8 + 8 * i + 4 * u, 4), vr(V_ACT8 + 4 * i, 4), "0" if i == 0 else d))

def attn_epilogue(A):
    t0 = V_T
    R = 16
    A("s_mul_i32 s%d, s%d, %d" % (S_T0, S_W8, OSLOT))
    A("v_add_u32 v%d, s%d, v%d" % (t0, S_T0, V_L16))
    A("v_lshlrev_b32 v%d, 2, v%d" % (t0 + 1, V_LANE))
    A("v_add_u32 v%d, s%d, v%d" % (t0 + 1, S_T0, t0 + 1))
    for kg in range(4):
        b = R + 12 * kg
        A("ds_read_b128 %s, v%d offset:%d" % (vr(b, 4), t0, kg * 8 * OSLOT))
        A("ds_read_b128 %s, v%d offset:%d" % (vr(b + 4, 4), t0, kg * 8 * OSLOT + 1024))
        A("ds_read_b32 v%d, v%d offset:%d" % (b + 8, t0 + 1, kg * 8 * OSLOT + 2048))
    A("s_lshl_b32 s%d, s%d, 3" % (S_T0, S_QB))
    A("s_add_u32 s%d, s%d, s%d" % (S_T0, S_T0, S_W8))
    A("s_lshl_b32 s%d, s%d, 5" % (S_T0, S_T0))
    A("s_add_u32 s%d, s%d, s%d" % (S_T0, S_T0, S_HEAD))
    A("s_lshl_b32 s%d, s%d, 10" % (S_T0, S_T0))
    A("s_add_u32 s%d, s%d, 0x%x" % (S_T0, S_T0, WS_OF))
    A("s_waitcnt lgkmcnt(0)")
    for r in range(9):
        A("v_add_f32 v%d, v%d, v%d" % (R + r, R + r, R + 12 + r))
        A("v_add_f32 v%d, v%d, v%d" % (R + 24 + r, R + 24 + r, R + 36 + r))
    for r in range(9):
        A("v_add_f32 v%d, v%d, v%d" % (R + r, R + r, R + 24 + r))
    if Cfg.zrows:
        A("v_mov_b32 v%d, v%d" % (R + 9, R + 8))
        A("s_nop 1")
        A("v_permlane32_swap_b32 v%d, v%d" % (R + 8, R + 9))
        A("s_nop 1")
    A("v_rcp_f32 v%d, v%d" % (R + 8, R + 8))
    A("s_nop 0")
    for r in range(8):
        A("v_mul_f32 v%d, v%d, v%d" % (R + r, R + r, R + 8))
    P = 64
    for p in range(4):
        A("v_cvt_pk_bf16_f32 v%d, v%d, v%d" % (P + p, R + 2 * p, R + 2 * p + 1))
    A("buffer_store_dwordx4 %s, v%d, s[%d:%d], s%d offen%s" % (vr(P, 4), V_L16, S_WS, S_WS + 3, S_T0, SC))

V_WF8 = 32
V_ACT8 = 96
V_ACCA = 160
V_G = 14
def outproj_prefetch(A):
    srd(A, S_WD, P_WO, 512 * 1024)
    A("s_lshl_b32 s%d, s%d, 16" % (S_WO0, S_W8))
    A("s_lshl_b32 s%d, s%d, 7" % (S_T1, S_CB3))
    A("s_add_u32 s%d, s%d, s%d" % (S_WO0, S_WO0, S_T1))
    A("s_add_u32 s%d, s%d, 8192" % (S_WO1, S_WO0))
    for i in range(4):
        A("s_add_u32 m0, s%d, %d" % (S_LB, i * 2048)); A("s_nop 0")
        A("buffer_load_dwordx4 v%d, s[%d:%d], s%d offen lds" % (V_DO, S_WD, S_WD + 3, S_WO0))
        A("s_add_u32 m0, s%d, %d" % (S_LB, i * 2048 + 1024)); A("s_add_u32 s%d, s%d, 16384" % (S_WO0, S_WO0))
        A("buffer_load_dwordx4 v%d, s[%d:%d], s%d offen lds" % (V_DO, S_WD, S_WD + 3, S_WO1))
        A("s_add_u32 s%d, s%d, 16384" % (S_WO1, S_WO1))
    A("s_and_b32 s%d, s%d, 1" % (S_T1, S_W8))
    A("s_lshl_b32 s%d, s%d, 13" % (S_T1, S_T1))
    A("v_subrev_u32 v%d, s%d, v%d" % (V_RA, S_T1, V_RA))
    A("v_subrev_u32 v%d, s%d, v%d" % (V_RA + 1, S_T1, V_RA + 1))

def outproj(A):
    A("s_lshl_b32 s%d, s%d, 1" % (S_T0, S_RB3))
    A("s_and_b32 s%d, s%d, 1" % (S_T1, S_W8))
    A("s_add_u32 s%d, s%d, s%d" % (S_T0, S_T0, S_T1))
    A("s_lshl_b32 s%d, s%d, 15" % (S_AO, S_T0))
    A("s_lshr_b32 s%d, s%d, 1" % (S_T1, S_W8))
    A("s_lshl_b32 s%d, s%d, 13" % (S_T1, S_T1))
    A("s_add_u32 s%d, s%d, s%d" % (S_AO, S_AO, S_T1))
    A("s_add_u32 s%d, s%d, 0x%x" % (S_AO, S_AO, WS_OF))
    for i in range(8):
        if i == 4: A("s_add_u32 s%d, s%d, 4096" % (S_AO, S_AO))
        A("buffer_load_dwordx4 %s, v%d, s[%d:%d], s%d offen offset:%d%s" % (vr(V_ACT8 + 4 * i, 4), V_L16, S_WS, S_WS + 3, S_AO, (i & 3) * 1024, SC))
    for i in range(8):
        A("s_waitcnt vmcnt(%d)" % (7 - i))
        for u in range(2):
            d = vr(V_ACCA + 16 * u, 16)
            A(mfma(d, vr(V_WF8 + 8 * i + 4 * u, 4), vr(V_ACT8 + 4 * i, 4), "0" if i == 0 else d))

def final(A):
    t0, t1 = V_T, V_T + 1
    A("s_lshl_b32 s%d, s%d, 13" % (S_T0, S_W8))
    A("s_nop 7")
    A("s_nop 3")
    VP = V_ACCA if Cfg.bdown else V_ACCB
    for r in range(32):
        if Cfg.bdown: A("v_mul_f32 v%d, v%d, v%d" % (V_ACCA + r, V_G, V_ACCA + r))
        else: A("v_fmac_f32 v%d, v%d, v%d" % (V_ACCB + r, V_G, V_ACCA + r))
    A("s_lshl_b32 s%d, s%d, 13" % (S_T0, S_W8))
    A("s_add_u32 s%d, s%d, %d" % (S_T0, S_T0, L_W))
    A("v_add_u32 v%d, s%d, v%d" % (t0, S_T0, V_L16))
    for u in range(2):
        for q in range(4):
            A("ds_write_b128 v%d, %s offset:%d" % (t0, vr(VP + 16 * u + 4 * q, 4), u * 4096 + q * 1024))
    A("s_waitcnt lgkmcnt(0)")
    A("s_barrier")
    A("s_and_b32 s%d, s%d, 1" % (S_T0, S_W8))
    A("s_lshl_b32 s%d, s%d, 13" % (S_T0, S_T0))
    A("s_lshr_b32 s%d, s%d, 1" % (S_T1, S_W8))
    A("s_and_b32 s%d, s%d, 1" % (S_T1, S_T1))
    A("s_lshl_b32 s%d, s%d, 12" % (S_T2, S_T1))
    A("s_add_u32 s%d, s%d, s%d" % (S_T0, S_T0, S_T2))
    A("s_lshr_b32 s%d, s%d, 2" % (S_T2, S_W8))
    A("s_lshl_b32 s%d, s%d, 11" % (S_T3, S_T2))
    A("s_add_u32 s%d, s%d, s%d" % (S_T0, S_T0, S_T3))
    A("s_add_u32 s%d, s%d, %d" % (S_T0, S_T0, L_W))
    A("v_add_u32 v%d, s%d, v%d" % (t0, S_T0, V_L16))
    R = 32
    for kq in range(4):
        for q in range(2):
            A("ds_read_b128 %s, v%d offset:%d" % (vr(R + 8 * kq + 4 * q, 4), t0, kq * 16384 + q * 1024))
    A("v_and_b32 v%d, 31, v%d" % (t1, V_LANE))
    A("v_lshlrev_b32 v%d, 10, v%d" % (t1, t1))
    A("v_lshrrev_b32 v%d, 5, v%d" % (t0 + 2, V_LANE))
    A("v_lshlrev_b32 v%d, 4, v%d" % (t0 + 2, t0 + 2))
    A("v_add_u32 v%d, v%d, v%d" % (t1, t1, t0 + 2))
    A("s_lshl_b32 s%d, s%d, 16" % (S_T0, S_RB3))
    A("s_and_b32 s%d, s%d, 1" % (S_T3, S_W8))
    A("s_lshl_b32 s%d, s%d, 15" % (S_T3, S_T3))
    A("s_add_u32 s%d, s%d, s%d" % (S_T0, S_T0, S_T3))
    A("s_lshl_b32 s%d, s%d, 7" % (S_T3, S_CB3))
    A("s_add_u32 s%d, s%d, s%d" % (S_T0, S_T0, S_T3))
    A("s_lshl_b32 s%d, s%d, 6" % (S_T1, S_T1))
    A("s_add_u32 s%d, s%d, s%d" % (S_T0, S_T0, S_T1))
    A("s_lshl_b32 s%d, s%d, 5" % (S_T2, S_T2))
    A("s_add_u32 s%d, s%d, s%d" % (S_T0, S_T0, S_T2))
    A("s_waitcnt lgkmcnt(0)")
    for r in range(8):
        A("v_add_f32 v%d, v%d, v%d" % (R + r, R + r, R + 8 + r))
        A("v_add_f32 v%d, v%d, v%d" % (R + 16 + r, R + 16 + r, R + 24 + r))
    for r in range(8):
        A("v_add_f32 v%d, v%d, v%d" % (R + r, R + r, R + 16 + r))
    if Cfg.bdown:
        for r in range(8):
            A("v_add_f32 v%d, v%d, v%d" % (R + r, R + r, V_B8 + r))
    P = 64
    for p in range(4):
        A("v_cvt_pk_bf16_f32 v%d, v%d, v%d" % (P + p, R + 2 * p, R + 2 * p + 1))
    A("s_nop 1")
    A("v_permlane32_swap_b32 v%d, v%d" % (P, P + 2))
    A("v_permlane32_swap_b32 v%d, v%d" % (P + 1, P + 3))
    A("buffer_store_dwordx4 %s, v%d, s[%d:%d], s%d offen%s" % (vr(P, 4), t1, S_OUT, S_OUT + 3, S_T0, Cfg.outmod))

def nonce_check(A, tag):
    A("v_readfirstlane_b32 s%d, v%d" % (S_NONCE, V_NONCE))
    A("s_nop 3")
    A("s_cmp_lg_u32 s%d, 0" % S_NONCE)
    A("s_cbranch_scc1 NONCE_OK%s" % tag)
    get_nonce(A, tag)
    A("NONCE_OK%s:" % tag)

def zero_ob(A):
    t0 = V_T
    for r in range(4): A("v_mov_b32 v%d, 0" % (32 + r))
    A("s_mul_i32 s%d, s%d, 4608" % (S_T0, S_WAVE))
    A("v_add_u32 v%d, s%d, v%d" % (t0, S_T0, V_L16))
    for k in range(4):
        A("ds_write_b128 v%d, %s offset:%d" % (t0, vr(32, 4), L_OB + k * 1024))
    A("s_mov_b64 exec, 0xffffffff")
    A("ds_write_b128 v%d, %s offset:%d" % (t0, vr(32, 4), L_OB + 4096))
    A("s_mov_b64 exec, -1")
    A("s_waitcnt lgkmcnt(0)")

def attn_setup_common(A):
    slow_prepass(A)
    for r in range(16): A("v_mov_b32 v%d, 0" % (V_S[1] + r))
    for r in range(8): A("v_mov_b32 v%d, 0" % (V_P + r))
    Z = V_QN
    for r in range(4): A("v_mov_b32 v%d, 0" % (Z + r))
    A("s_nop 1")
    if not Cfg.bdown:
        A(mfma(vr(V_ACCB, 16), vr(Z, 4), vr(Z, 4), "0"))
        A(mfma(vr(V_ACCB + 16, 16), vr(Z, 4), vr(Z, 4), "0"))
    A(mfma(vr(V_O, 16), vr(Z, 4), vr(Z, 4), "0"))
    A(mfma(vr(V_S[0], 16), vr(V_K, 4), vr(V_Q, 4), vr(V_C, 16)))
    A("s_nop 15")

def build():
    A = BarAsm()
    prologue(A)
    if "sv" in Cfg.exp:
        A("s_mov_b32 s%d, 0" % S_SVI)
        A("v_mov_b32 v13, 0")
        SV.reg = 13
        stampv(A)
        A.on = True
    rstamp(A, S_R0)
    stamp(A, 0)
    if "miss" in Cfg.exp:
        A("s_mov_b32 s%d, 0" % (S_ST + 2 + 11)); A("s_mov_b32 s%d, 0" % (S_ST + 2 + 12))
    A("s_cmp_ge_u32 s%d, 4" % S_W8)
    A("s_cbranch_scc1 K_B")
    role_a(A)
    A("s_branch K_ATT")
    A("K_B:")
    role_b(A)
    A("K_ATT:")
    A.on = False
    SV.reg = 40
    stampv(A)
    stampv_flush(A)
    stamp(A, 7)
    attn_setup_common(A)
    stamp(A, 8)
    B = Buf()
    attn_all(B)
    Track().resolve(A, B.lines)
    A("s_nop 0")
    A("v_cvt_pk_bf16_f32 v%d, v%d, v%d" % (V_P + 7, V_S[1] + 14, V_S[1] + 15))
    if Cfg.t2 or Cfg.dp2:
        A("s_waitcnt lgkmcnt(0)")
        A("s_nop 0")
        A(mfma(vr(V_O, 16), ar(A_V + 4 * 15, 4), vr(V_P + 4, 4), vr(V_O, 16)))
        A("s_and_b32 s%d, s%d, 1" % (S_T1, S_W8))
        A("s_lshl_b32 s%d, s%d, 13" % (S_T1, S_T1))
        A("v_subrev_u32 v%d, s%d, v%d" % (V_RA, S_T1, V_RA))
        A("v_subrev_u32 v%d, s%d, v%d" % (V_RA + 1, S_T1, V_RA + 1))
        A("s_nop 7")
    else:
        A("s_waitcnt vmcnt(0) lgkmcnt(0)")
        A("s_nop 0")
        A(mfma(vr(V_O, 16), ar(A_V + 4 * 15, 4), vr(V_P + 4, 4), vr(V_O, 16)))
        outproj_prefetch(A)
    emit(A, flush_lines(3))
    A("s_waitcnt lgkmcnt(0)")
    stamp(A, 9)
    A("s_barrier")
    if Cfg.dp:
        tail_dp(A)
    elif Cfg.bdown:
        tail_bd(A)
    elif Cfg.t2:
        tail_t2(A)
    else:
        attn_epilogue(A)
        A("s_waitcnt vmcnt(0)")
        A("s_lshl_b32 s%d, s%d, 2" % (S_T0, S_QB))
        A("s_lshr_b32 s%d, s%d, 1" % (S_T1, S_W8))
        A("s_add_u32 s%d, s%d, s%d" % (S_T0, S_T0, S_T1))
        A("s_lshl_b32 s%d, s%d, 8" % (S_T0, S_T0))
        A("s_lshl_b32 s%d, s%d, 1" % (S_T1, S_HEAD))
        A("s_and_b32 s%d, s%d, 1" % (S_T2, S_W8))
        A("s_add_u32 s%d, s%d, s%d" % (S_T1, S_T1, S_T2))
        A("s_lshl_b32 s%d, s%d, 2" % (S_T1, S_T1))
        A("s_add_u32 s%d, s%d, s%d" % (S_T0, S_T0, S_T1))
        A("s_add_u32 s%d, s%d, 0x%x" % (S_T0, S_T0, WS_F3))
        store_flag(A, S_T0)
        stamp(A, 10)
        A("s_barrier")
        poll_flags(A, "2g", WS_F2, S_RB3, 0)
        A("v_and_b32 v%d, 31, v%d" % (V_T, V_LANE))
        A("v_lshlrev_b32 v%d, 2, v%d" % (V_T, V_T))
        A("s_lshl_b32 s%d, s%d, 1" % (S_T0, S_RB3))
        A("s_and_b32 s%d, s%d, 1" % (S_T1, S_W8))
        A("s_add_u32 s%d, s%d, s%d" % (S_T0, S_T0, S_T1))
        A("s_lshl_b32 s%d, s%d, 7" % (S_T0, S_T0))
        A("s_add_u32 s%d, s%d, 0x%x" % (S_T0, S_T0, WS_G))
        A("buffer_load_dword v%d, v%d, s[%d:%d], s%d offen%s" % (V_G, V_T, S_WS, S_WS + 3, S_T0, SC))
        for i in range(8):
            emit(A, w_reads(i, V_WF8 + 8 * i))
            if i % 3 == 2: A("s_waitcnt lgkmcnt(0)")
        A("s_waitcnt lgkmcnt(0)")
        A("s_waitcnt vmcnt(0)")
        A("v_sub_f32 v%d, 1.0, v%d" % (V_G + 1, V_G))
        for r in range(32):
            A("v_mul_f32 v%d, v%d, v%d" % (V_ACCB + r, V_G + 1, V_ACCB + r))
        A("s_cmp_lg_u32 s%d, 0" % S_W8)
        A("s_cbranch_scc1 S3_SKIP")
        poll_flags(A, "3", WS_F3, S_RB3, 0, 64)
        A("S3_SKIP:")
        A("s_barrier")
        stamp(A, 11)
        outproj(A)
    final(A)
    stamp(A, 12)
    rstamp(A, S_R1)
    stamp_flush(A, 13)
    if not Cfg.noendwait: A("s_waitcnt vmcnt(0)")
    A("K_END:")
    A("s_endpgm")
    s2_spin(A)
    if Cfg.dp: fa_spin(A)
    if Cfg.t2: fg_spin(A)
    return A.text()

DOC = """; ---------------------------------------------------------------------------------------------------------
; ---------------------------------------------------------------------------------------------------------
"""

def write(fn, stamps=False):
    Cfg.stamps = stamps
    body = build()
    t, d = kernel_text(NAME + "_kernel", body, vgpr=192, agpr=64)
    t += "K_CODE_END:\n.set CODE_BYTES, K_CODE_END - %s_kernel\n" % NAME
    txt = file_text([(None, 256, 512, 163840)], [(t, d)])
    txt = txt.replace(".text\n.globl", DOC + ".text\n.globl", 1)
    open(fn, "w").write(txt)
    return txt

def variant(name, stamps=False, **kw):
    old = {k: getattr(Cfg, k) for k in kw}
    for k, v_ in kw.items(): setattr(Cfg, k, v_)
    txt = write(name, stamps)
    for k, v_ in old.items(): setattr(Cfg, k, v_)
    return txt

if __name__ == "__main__":
    import hazard, sys
    if len(sys.argv) > 1:
        for e in sys.argv[1:]:
            Cfg.exp = set(e.split("+"))
            Cfg.prio_b = 1 if "pb1" in Cfg.exp else 0
            write("mk10_x_%s.s" % e, True)
        sys.exit(0)
    for st in (False, True):
        txt = write("mk10_st.s" if st else "mk10.s", st)
        hazard.check(txt)
```
